```python
import torch

def _softmax(x, axis=-1):
    return torch.softmax(x, dim=axis)

def _gelu(x):
    return torch.nn.functional.gelu(x, approximate='tanh')

def _silu(x):
    return torch.nn.functional.silu(x)

def _sigmoid(x):
    return torch.sigmoid(x)

def _layernorm(x, axis=-1, eps=1e-05):
    m = x.mean(dim=axis, keepdim=True)
    v = x.var(dim=axis, keepdim=True, unbiased=False)
    return (x - m) / torch.sqrt(v + eps)

def _scatter_add(tgt, idx, src, axis=0):
    return tgt.clone().index_add_(axis, idx, src)

def _segment_sum(src, seg, n):
    out = torch.zeros((n,) + src.shape[1:], dtype=src.dtype)
    return out.index_add_(0, seg, src)

def _pad(x, pw):
    flat = tuple((v for pair in reversed(pw) for v in pair))
    return torch.nn.functional.pad(x, flat)
kernel_name = 'standalone__tree_speculative_verify_tree_attention_over_candidate_token_tree__decode'

def setup_inputs():

    _w = lambda a: (lambda t: t.to(torch.bfloat16) if t.is_floating_point() else t)(torch.as_tensor(a))
    B, Hq, Hkv, T, C, D = (2, 32, 32, 1, 16384, 128)
    tree_mask = torch.zeros((B, T, T), dtype=float)
    for b in range(B):
        parent = torch.zeros(T, dtype=torch.int64)
        for i in range(1, T):
            parent[i] = int(torch.randint(0, i, (1,)).item())
        for i in range(T):
            j = i
            tree_mask[b, i, j] = 1.0
            while j > 0:
                j = parent[j]
                tree_mask[b, i, j] = 1.0
    return {'q': _w((lambda *s: torch.randn(*s, dtype=torch.bfloat16) * 0.8)(B, Hq, T, D)), 'k_cache': _w((lambda *s: torch.randn(*s, dtype=torch.bfloat16) * 0.8)(B, Hkv, C, D)), 'v_cache': _w((lambda *s: torch.randn(*s, dtype=torch.bfloat16) * 0.05)(B, Hkv, C, D)), 'k_tree': _w((lambda *s: torch.randn(*s, dtype=torch.bfloat16) * 0.8)(B, Hkv, T, D)), 'v_tree': _w((lambda *s: torch.randn(*s, dtype=torch.bfloat16) * 0.05)(B, Hkv, T, D)), 'tree_mask': _w(tree_mask)}

def reference(q, k_cache, v_cache, k_tree, v_tree, tree_mask):
    B, Hq, T, D = q.shape
    Hkv, C = (k_cache.shape[1], k_cache.shape[2])
    rep = Hq // Hkv
    kc = (lambda x, n, axis: torch.repeat_interleave(x, n, dim=axis))(k_cache, rep, axis=1)
    vc = (lambda x, n, axis: torch.repeat_interleave(x, n, dim=axis))(v_cache, rep, axis=1)
    kt = (lambda x, n, axis: torch.repeat_interleave(x, n, dim=axis))(k_tree, rep, axis=1)
    vt = (lambda x, n, axis: torch.repeat_interleave(x, n, dim=axis))(v_tree, rep, axis=1)
    k = torch.concatenate([kc, kt], axis=2)
    v = torch.concatenate([vc, vt], axis=2)
    scale = D ** (-0.5)
    scores = torch.einsum('bhqd,bhkd->bhqk', q, k) * scale
    ctx_mask = torch.ones((B, 1, T, C), dtype=scores.dtype)
    tm = tree_mask[:, None, :, :].clone()
    full_mask = torch.concatenate([ctx_mask, tm], axis=-1)
    scores = scores + (1.0 - full_mask) * -1000000000.0
    p = _softmax(scores, axis=-1)
    return torch.einsum('bhqk,bhkd->bhqd', p, v)
```

```python
import argparse, math, struct

NAME = "standalone__tree_speculative_verify_tree_attention_over_candidate_token_tree__decode"

HEADER = """; Kernarg layout for this problem (72 bytes, ptrs only, base s[0:1]):
"""


def f2u(x):
    return struct.unpack("<I", struct.pack("<f", x))[0]


def gen(NW=8, NS=4, NB=2, fl="nt", xcd=0, chunk=1, stamp=0, rot=0):
    NWG = 64 * NS
    groups_wg = 1024 // NS
    gpw = groups_wg // NW
    assert gpw % NB == 0 and gpw >= NB
    iters = gpw // NB
    range_bytes = groups_wg * 4096
    if chunk == 0:
        wave_off_shift = int(math.log2(gpw * 4096))
        gstride = 4096
    else:
        wave_off_shift = 12
        gstride = NW * 4096
    lds = NW * 512 + NW * 8
    o = []
    e = o.append

    vLane, vKoff, vVoff, vVt, vTt = 0, 1, 2, 3, 4
    vT, vT2, vP, vPk, vL, vM, vMt = 5, 6, 7, 8, 9, 10, 11
    vMask = 12
    vS = 16
    vB1, vB2 = 20, 24
    vA0, vA1 = 28, 32
    vQ = 36
    vK = 52
    vV = vK + 16 * NB
    nv = vV + 16 * NB
    vTr = nv
    if stamp == 2:
        nv += 1
    sK, sV = 8, 12
    sOff, sCnt, sC, sHead, sSplit, sWave = 16, 17, 18, 19, 20, 21
    sQp, sKp, sVp, sKtp, sVtp, sMp, sOutp, sDbg, sWs = 24, 26, 28, 30, 32, 34, 36, 38, 40
    sTmp = 42
    sMaskv = 48
    sSt = 52

    def r(b, n):
        return f"v[{b}:{b+n-1}]"

    e(HEADER.rstrip())
    e(f"; @launch grid=({NWG},1,1) block=({NW*64},1,1) lds={lds}")
    e('.amdgcn_target "amdgcn-amd-amdhsa--gfx950"')
    e(".text")
    e(f".globl {NAME}_kernel")
    e(".p2align 8")
    e(f".type {NAME}_kernel,@function")
    e(f"{NAME}_kernel:")
    e(f"    s_cmp_ge_u32 s2, {NWG}")
    e("    s_cbranch_scc1 L_end")
    if stamp:
        e(f"    s_memrealtime s[{sSt}:{sSt+1}]")
    e(f"    s_load_dwordx16 s[{sQp}:{sQp+15}], s[0:1], 0")
    e(f"    s_load_dwordx2 s[{sWs}:{sWs+1}], s[0:1], 64")
    lg = int(math.log2(NS))
    if xcd:
        e(f"    s_and_b32 s{sTmp}, s2, 7")
        e(f"    s_lshr_b32 s{sTmp+1}, s2, 3")
        e(f"    s_and_b32 s{sSplit}, s{sTmp+1}, {NS-1}")
        e(f"    s_lshr_b32 s{sTmp+1}, s{sTmp+1}, {lg}")
        e(f"    s_lshl_b32 s{sTmp}, s{sTmp}, 3")
        e(f"    s_add_u32 s{sHead}, s{sTmp}, s{sTmp+1}")
    else:
        e(f"    s_lshr_b32 s{sHead}, s2, {lg}")
        e(f"    s_and_b32 s{sSplit}, s2, {NS-1}")
    e(f"    v_lshrrev_b32 v{vT}, 6, v0")
    e(f"    v_and_b32 v{vLane}, 63, v0")
    e(f"    v_readfirstlane_b32 s{sWave}, v{vT}")
    e(f"    v_lshlrev_b32 v{vVoff}, 4, v{vLane}")
    e(f"    v_lshrrev_b32 v{vT}, 4, v{vLane}")
    e(f"    v_lshlrev_b32 v{vT}, 6, v{vT}")
    e(f"    v_and_b32 v{vT2}, 3, v{vLane}")
    e(f"    v_lshl_add_u32 v{vT}, v{vT2}, 4, v{vT}")
    e(f"    v_bfe_u32 v{vT2}, v{vLane}, 2, 2")
    e(f"    v_lshl_add_u32 v{vKoff}, v{vT2}, 8, v{vT}")
    e(f"    v_lshlrev_b32 v{vP}, 2, v{vLane}")
    e(f"    s_lshl_b32 s{sTmp}, s{sHead}, 22")
    e(f"    s_mul_i32 s{sTmp+1}, s{sSplit}, {range_bytes}")
    e(f"    s_add_u32 s{sTmp}, s{sTmp}, s{sTmp+1}")
    e(f"    s_lshl_b32 s{sTmp+2}, s{sHead}, 8")
    e(f"    s_lshl_b32 s{sOff}, s{sWave}, {wave_off_shift}")
    e(f"    s_mov_b32 s{sK+2}, {range_bytes}")
    e(f"    s_mov_b32 s{sK+3}, 0x20000")
    e(f"    s_mov_b32 s{sV+2}, {range_bytes}")
    e(f"    s_mov_b32 s{sV+3}, 0x20000")
    e("    s_waitcnt lgkmcnt(0)")
    e(f"    s_add_u32 s{sK}, s{sKp}, s{sTmp}")
    e(f"    s_addc_u32 s{sK+1}, s{sKp+1}, 0")
    e(f"    s_add_u32 s{sV}, s{sVp}, s{sTmp}")
    e(f"    s_addc_u32 s{sV+1}, s{sVp+1}, 0")
    e(f"    s_load_dword s{sMaskv}, s[{sMp}:{sMp+1}], 0")
    for p in (sQp, sKtp, sVtp, sOutp):
        e(f"    s_add_u32 s{p}, s{p}, s{sTmp+2}")
        e(f"    s_addc_u32 s{p+1}, s{p+1}, 0")
    e(f"    global_load_dwordx4 {r(vS,4)}, v{vT}, s[{sQp}:{sQp+1}]")
    e(f"    global_load_dword v{vB1}, v{vP}, s[{sQp}:{sQp+1}]")
    e(f"    global_load_dword v{vB1+1}, v{vP}, s[{sKtp}:{sKtp+1}]")
    e(f"    global_load_dword v{vVt}, v{vP}, s[{sVtp}:{sVtp+1}]")

    def loadK(b):
        for u in range(4):
            e(f"    buffer_load_dwordx4 {r(vK+16*b+4*u,4)}, v{vKoff}, s[{sK}:{sK+3}], s{sOff} offen offset:{1024*u} {fl}")

    def loadV(b):
        for u in range(4):
            e(f"    buffer_load_dwordx4 {r(vV+16*b+4*u,4)}, v{vVoff}, s[{sV}:{sV+3}], s{sOff} offen offset:{1024*u} {fl}")

    for b in range(NB):
        loadK(b)
        loadV(b)
        e(f"    s_add_u32 s{sOff}, s{sOff}, {gstride}")
    c = (128 ** -0.5) * math.log2(math.e)
    e(f"    s_mov_b32 s{sC}, {hex(f2u(c))}")
    e(f"    v_mov_b32 v{vL}, 0")
    e(f"    v_mov_b32 v{vM}, 0xff800000")
    e(f"    v_mov_b32 v{vMt}, 0xff800000")
    for i in range(8):
        e(f"    v_mov_b32 v{vA0+i}, 0")
    e(f"    v_and_b32 v{vT}, 1, v{vLane}")
    e(f"    v_lshlrev_b32 v{vT}, 4, v{vT}")
    e(f"    v_mov_b32 v{vPk}, 0xffff")
    e(f"    v_lshlrev_b32 v{vPk}, v{vT}, v{vPk}")
    e(f"    v_bfe_u32 v{vT}, v{vLane}, 1, 2")
    for i in range(4):
        e(f"    v_cmp_eq_u32 vcc, {i}, v{vT}")
        e("    s_nop 1")
        e(f"    v_cndmask_b32 v{vMask+i}, 0, v{vPk}, vcc")
    e(f"    s_waitcnt vmcnt({8*NB}) lgkmcnt(0)")
    for u in range(4):
        e(f"    v_cmp_eq_u32 vcc, {u}, v{vT2}")
        e("    s_nop 1")
        for i in range(4):
            e(f"    v_cndmask_b32 v{vQ+4*u+i}, 0, v{vS+i}, vcc")
    e(f"    v_lshlrev_b32 v{vT}, 16, v{vB1}")
    e(f"    v_lshlrev_b32 v{vT2}, 16, v{vB1+1}")
    e(f"    v_mul_f32 v{vTt}, v{vT}, v{vT2}")
    e(f"    v_and_b32 v{vT}, 0xffff0000, v{vB1}")
    e(f"    v_and_b32 v{vT2}, 0xffff0000, v{vB1+1}")
    e(f"    v_fmac_f32 v{vTt}, v{vT}, v{vT2}")
    for sh in (1, 2, 4, 8):
        e("    s_nop 1")
        e(f"    v_add_f32_dpp v{vTt}, v{vTt}, v{vTt} row_ror:{sh} row_mask:0xf bank_mask:0xf")

    def xrow(reg, tmp, op):
        for sw in ("v_permlane16_swap_b32", "v_permlane32_swap_b32"):
            e(f"    v_mov_b32 v{tmp}, v{reg}")
            e("    s_nop 1")
            e(f"    {sw} v{reg}, v{tmp}")
            e("    s_nop 1")
            e(f"    {op} v{reg}, v{reg}, v{tmp}")
    xrow(vTt, vT, "v_add_f32")
    e(f"    s_lshr_b32 s{sTmp}, s{sHead}, 5")
    e(f"    s_lshl_b32 s{sTmp}, s{sTmp}, 4")
    e(f"    s_lshr_b32 s{sMaskv}, s{sMaskv}, s{sTmp}")
    e(f"    s_lshl_b32 s{sMaskv}, s{sMaskv}, 16")
    e(f"    v_sub_f32 v{vT}, s{sMaskv}, 1.0               ; mask - 1")
    e(f"    v_mul_f32 v{vT}, {hex(f2u(1e9*math.log2(math.e)))}, v{vT}")
    e(f"    v_fma_f32 v{vTt}, v{vTt}, s{sC}, v{vT}")
    e(f"    s_mov_b32 s{sCnt}, {iters-1}")

    rare = []

    def group(b, tag, pre, nK, nV):
        K = vK + 16 * b
        V = vV + 16 * b
        e(f"    s_waitcnt vmcnt({nK})")
        for u in range(4):
            cc = "0" if u == 0 else r(vS, 4)
            e(f"    v_mfma_f32_16x16x32_bf16 {r(vS,4)}, {r(K+4*u,4)}, {r(vQ+4*u,4)}, {cc}")
        if pre:
            loadK(b)
            e("    s_nop 3")
        else:
            e("    s_nop 7")
        e(f"    v_mov_b32_dpp v{vT}, v{vS} quad_perm:[0,0,0,0] row_mask:0xf bank_mask:0xf")
        e(f"    v_mov_b32_dpp v{vT2}, v{vS+2} quad_perm:[2,2,2,2] row_mask:0xf bank_mask:0xf")
        e("    s_nop 0")
        e(f"    v_add_f32_dpp v{vT}, v{vS+1}, v{vT} quad_perm:[1,1,1,1] row_mask:0xf bank_mask:0xf")
        e(f"    v_add_f32_dpp v{vT2}, v{vS+3}, v{vT2} quad_perm:[3,3,3,3] row_mask:0xf bank_mask:0xf")
        e(f"    v_add_f32 v{vT}, v{vT}, v{vT2}")
        e(f"    v_cmp_gt_f32 vcc, v{vT}, v{vM}")
        e(f"    s_cbranch_vccnz L_rare_{tag}")
        e(f"L_back_{tag}:")
        rare.append(tag)
        e(f"    v_fma_f32 v{vP}, v{vT}, s{sC}, -v{vMt}")
        e(f"    v_exp_f32 v{vP}, v{vP}")
        e("    s_nop 0")
        e(f"    v_cvt_pk_bf16_f32 v{vPk}, v{vP}, v{vP}")
        e(f"    v_add_f32 v{vL}, v{vL}, v{vP}")
        e(f"    v_and_b32 v{vB1}, v{vPk}, v{vMask}")
        e(f"    v_and_b32 v{vB1+1}, v{vPk}, v{vMask+1}")
        e(f"    v_and_b32_dpp v{vB1+2}, v{vPk}, v{vMask+2} row_ror:4 row_mask:0xf bank_mask:0xf")
        e(f"    v_and_b32_dpp v{vB1+3}, v{vPk}, v{vMask+3} row_ror:4 row_mask:0xf bank_mask:0xf")
        e(f"    v_and_b32_dpp v{vB2}, v{vPk}, v{vMask} row_ror:12 row_mask:0xf bank_mask:0xf")
        e(f"    v_and_b32_dpp v{vB2+1}, v{vPk}, v{vMask+1} row_ror:12 row_mask:0xf bank_mask:0xf")
        e(f"    v_and_b32 v{vB2+2}, v{vPk}, v{vMask+2}")
        e(f"    v_and_b32 v{vB2+3}, v{vPk}, v{vMask+3}")
        e(f"    s_waitcnt vmcnt({nV})")
        e(f"    v_mfma_f32_16x16x32_bf16 {r(vA0,4)}, {r(V,4)}, {r(vB1,4)}, {r(vA0,4)}")
        e(f"    v_mfma_f32_16x16x32_bf16 {r(vA1,4)}, {r(V+8,4)}, {r(vB1,4)}, {r(vA1,4)}")
        e(f"    v_mfma_f32_16x16x32_bf16 {r(vA0,4)}, {r(V+4,4)}, {r(vB2,4)}, {r(vA0,4)}")
        e(f"    v_mfma_f32_16x16x32_bf16 {r(vA1,4)}, {r(V+12,4)}, {r(vB2,4)}, {r(vA1,4)}")
        if pre:
            loadV(b)
            e(f"    s_add_u32 s{sOff}, s{sOff}, {gstride}")

    if stamp == 2:
        e(f"    v_mov_b32 v{vTr}, 0")
        e("    s_mov_b32 m0, 0")
        e("    s_mov_b32 s62, 0")
        e("    s_memrealtime s[60:61]")
    if iters > 1:
        e("L_loop:")
        if stamp == 2:
            every = max(1, iters // 64)
            e("    s_waitcnt lgkmcnt(0)")
            e(f"    v_writelane_b32 v{vTr}, s60, m0")
            e("    s_add_u32 s62, s62, 1")
            e(f"    s_lshr_b32 m0, s62, {int(math.log2(every))}")
            e("    s_memrealtime s[60:61]")
        for b in range(NB):
            group(b, f"m{b}", True, 8 * NB - 4, 8 * NB - 4)
        e(f"    s_sub_u32 s{sCnt}, s{sCnt}, 1")
        e(f"    s_cmp_lg_u32 s{sCnt}, 0")
        e("    s_cbranch_scc1 L_loop")
    for b in range(NB):
        rem = 8 * (NB - b)
        group(b, f"t{b}", False, rem - 4, rem - 8)
    if stamp:
        e(f"    s_memrealtime s[{sSt+2}:{sSt+3}]")
    e(f"    v_add_f32_dpp v{vL}, v{vL}, v{vL} row_ror:4 row_mask:0xf bank_mask:0xf")
    e("    s_nop 1")
    e(f"    v_add_f32_dpp v{vL}, v{vL}, v{vL} row_ror:8 row_mask:0xf bank_mask:0xf")
    xrow(vL, vT, "v_add_f32")
    for t in range(4):
        e(f"    v_add_f32_dpp v{vA0+t}, v{vA1+t}, v{vA0+t} row_ror:8 row_mask:0xf bank_mask:0xf")
    e(f"    v_lshrrev_b32 v{vT}, 4, v{vLane}")
    e(f"    v_and_b32 v{vT2}, 7, v{vLane}")
    e(f"    v_lshlrev_b32 v{vT2}, 2, v{vT2}")
    e(f"    v_lshl_add_u32 v{vT}, v{vT}, 7, v{vT2}")
    e(f"    s_lshl_b32 s{sTmp}, s{sWave}, 9")
    e(f"    v_add_u32 v{vT}, s{sTmp}, v{vT}")
    e(f"    s_lshl_b32 s{sTmp}, s{sWave}, 3")
    e(f"    v_mov_b32 v{vT2}, s{sTmp}")
    e(f"    v_mov_b32 v{vM}, v{vMt}")
    e(f"    v_mov_b32 v{vMt}, v{vL}")
    e("    s_mov_b32 exec_lo, 0x00ff00ff")
    e("    s_mov_b32 exec_hi, 0x00ff00ff")
    for t in range(4):
        e(f"    ds_write_b32 v{vT}, v{vA0+t} offset:{32*t}")
    e(f"    ds_write_b64 v{vT2}, v[{vM}:{vMt}] offset:{NW*512}")
    e("    s_mov_b64 exec, -1")
    e("    s_waitcnt lgkmcnt(0)")
    e("    s_barrier")
    e(f"    s_cmp_lg_u32 s{sWave}, 0")
    e("    s_cbranch_scc1 L_end")
    vO = vK
    vML = vK + 2 * max(NW, NS)
    assert vML + 2 * max(NW, NS) <= nv, "not enough regs for the combine"
    e(f"    v_lshlrev_b32 v{vT}, 3, v{vLane}")
    e(f"    v_mov_b32 v{vT2}, 0")
    for w in range(NW):
        e(f"    ds_read_b64 v[{vML+2*w}:{vML+2*w+1}], v{vT2} offset:{NW*512+8*w}")
    for w in range(NW):
        e(f"    ds_read_b64 v[{vO+2*w}:{vO+2*w+1}], v{vT} offset:{512*w}")
    e("    s_waitcnt lgkmcnt(0)")

    def combine(n, tree):
        if tree:
            e(f"    v_max_f32 v{vM}, v{vTt}, v{vML}")
        else:
            e(f"    v_mov_b32 v{vM}, v{vML}")
        for w in range(1, n):
            e(f"    v_max_f32 v{vM}, v{vM}, v{vML+2*w}")
        for w in range(n):
            e(f"    v_sub_f32 v{vML+2*w}, v{vML+2*w}, v{vM}")
        if tree:
            e(f"    v_sub_f32 v{vTt}, v{vTt}, v{vM}")
        for w in range(n):
            e(f"    v_exp_f32 v{vML+2*w}, v{vML+2*w}")
        if tree:
            e(f"    v_exp_f32 v{vMt}, v{vTt}")
            e(f"    v_lshlrev_b32 v{vA0}, 16, v{vVt}")
            e(f"    v_and_b32 v{vA0+1}, 0xffff0000, v{vVt}")
            e(f"    v_mul_f32 v{vA0}, v{vMt}, v{vA0}")
            e(f"    v_mul_f32 v{vA0+1}, v{vMt}, v{vA0+1}")
        else:
            e(f"    v_mov_b32 v{vMt}, 0")
            e(f"    v_mov_b32 v{vA0}, 0")
            e(f"    v_mov_b32 v{vA0+1}, 0")
        for w in range(n):
            e(f"    v_fmac_f32 v{vMt}, v{vML+2*w}, v{vML+2*w+1}")
            e(f"    v_fmac_f32 v{vA0}, v{vML+2*w}, v{vO+2*w}")
            e(f"    v_fmac_f32 v{vA0+1}, v{vML+2*w}, v{vO+2*w+1}")
    combine(NW, False)
    e(f"    s_mul_i32 s{sTmp}, s{sHead}, {NS*1024}")
    e(f"    s_add_u32 s{sWs}, s{sWs}, s{sTmp}")
    e(f"    s_addc_u32 s{sWs+1}, s{sWs+1}, 0")
    e(f"    s_lshl_b32 s{sTmp}, s{sSplit}, 10")
    e(f"    v_add_u32 v{vP}, s{sTmp}, v{vT}")
    e(f"    v_mov_b32 v{vPk}, s{sTmp}")
    e(f"    global_store_dwordx2 v{vP}, v[{vA0}:{vA0+1}], s[{sWs}:{sWs+1}] sc1")
    e("    s_mov_b64 exec, 1")
    e(f"    global_store_dwordx2 v{vPk}, v[{vM}:{vMt}], s[{sWs}:{sWs+1}] offset:512 sc1")
    e(f"    s_lshl_b32 s{sTmp}, s{sHead}, 2")
    e(f"    v_mov_b32 v{vP}, s{sTmp}")
    e(f"    v_mov_b32 v{vPk}, 1")
    e("    s_waitcnt vmcnt(0)")
    e(f"    global_atomic_add v{vL}, v{vP}, v{vPk}, s[{sDbg}:{sDbg+1}] sc0")
    e("    s_waitcnt vmcnt(0)")
    e(f"    v_readfirstlane_b32 s{sTmp}, v{vL}")
    e("    s_mov_b64 exec, -1")
    if stamp:
        e(f"    s_memrealtime s[{sSt+4}:{sSt+5}]")
        e(f"    s_getreg_b32 s{sSt+6}, hwreg(HW_REG_XCC_ID)")
        e(f"    s_getreg_b32 s{sSt+7}, hwreg(HW_REG_HW_ID)")
        e("    s_waitcnt lgkmcnt(0)")
        e(f"    s_mul_i32 s{sTmp+1}, s{sHead}, {NS*1024}")
        e(f"    s_lshl_b32 s{sTmp+2}, s2, 5")
        e(f"    s_add_u32 s{sTmp+2}, s{sTmp+2}, 0x1000000")
        e(f"    s_sub_u32 s{sTmp+2}, s{sTmp+2}, s{sTmp+1}")
        e(f"    v_mov_b32 v{vP}, s{sTmp+2}")
        for i in range(8):
            e(f"    v_mov_b32 v{vQ+i}, s{sSt+i}")
        e("    s_mov_b64 exec, 1")
        e(f"    global_store_dwordx4 v{vP}, {r(vQ,4)}, s[{sWs}:{sWs+1}]")
        e(f"    global_store_dwordx4 v{vP}, {r(vQ+4,4)}, s[{sWs}:{sWs+1}] offset:16")
        e("    s_mov_b64 exec, -1")
        if stamp == 2:
            e(f"    s_lshl_b32 s{sTmp+2}, s2, 8")
            e(f"    s_add_u32 s{sTmp+2}, s{sTmp+2}, 0x2000000")
            e(f"    s_sub_u32 s{sTmp+2}, s{sTmp+2}, s{sTmp+1}")
            e(f"    v_lshlrev_b32 v{vP}, 2, v{vLane}")
            e(f"    v_add_u32 v{vP}, s{sTmp+2}, v{vP}")
            e(f"    global_store_dword v{vP}, v{vTr}, s[{sWs}:{sWs+1}]")
    e(f"    s_cmp_lg_u32 s{sTmp}, {NS-1}")
    e("    s_cbranch_scc1 L_end")
    for w in range(NS):
        if w and w % 4 == 0:
            e(f"    v_add_u32 v{vT}, 4096, v{vT}")
            e(f"    v_add_u32 v{vT2}, 4096, v{vT2}")
        e(f"    global_load_dwordx2 v[{vML+2*w}:{vML+2*w+1}], v{vT2}, s[{sWs}:{sWs+1}] offset:{1024*(w%4)+512} sc1")
        e(f"    global_load_dwordx2 v[{vO+2*w}:{vO+2*w+1}], v{vT}, s[{sWs}:{sWs+1}] offset:{1024*(w%4)} sc1")
    e("    s_waitcnt vmcnt(0)")
    combine(NS, True)
    e(f"    v_rcp_f32 v{vMt}, v{vMt}")
    e(f"    v_lshlrev_b32 v{vP}, 2, v{vLane}")
    e(f"    v_mul_f32 v{vA0}, v{vA0}, v{vMt}")
    e(f"    v_mul_f32 v{vA0+1}, v{vA0+1}, v{vMt}")
    e(f"    v_cvt_pk_bf16_f32 v{vA0}, v{vA0}, v{vA0+1}")
    e(f"    global_store_dword v{vP}, v{vA0}, s[{sOutp}:{sOutp+1}]")
    e("L_end:")
    e("    s_endpgm")
    for tag in rare:
        e(f"L_rare_{tag}:")
        e(f"    v_max_f32_dpp v{vM}, v{vT}, v{vT} row_ror:4 row_mask:0xf bank_mask:0xf")
        e("    s_nop 1")
        e(f"    v_max_f32_dpp v{vM}, v{vM}, v{vM} row_ror:8 row_mask:0xf bank_mask:0xf")
        xrow(vM, vT2, "v_max_f32")
        e(f"    v_mul_f32 v{vT2}, s{sC}, v{vM}")
        e(f"    v_sub_f32 v{vP}, v{vMt}, v{vT2}")
        e(f"    v_exp_f32 v{vP}, v{vP}")
        e(f"    v_mov_b32 v{vMt}, v{vT2}")
        e(f"    v_mul_f32 v{vL}, v{vL}, v{vP}")
        for i in range(8):
            e(f"    v_mul_f32 v{vA0+i}, v{vA0+i}, v{vP}")
        e(f"    s_branch L_back_{tag}")
    e('.section .rodata,"a"')
    e(".p2align 6")
    e(f".amdhsa_kernel {NAME}_kernel")
    e(f"  .amdhsa_next_free_vgpr {nv}")
    e("  .amdhsa_next_free_sgpr 64")
    e(f"  .amdhsa_accum_offset {(nv+3)//4*4}")
    e("  .amdhsa_group_segment_fixed_size 0")
    e("  .amdhsa_kernarg_size 72")
    e("  .amdhsa_user_sgpr_count 2")
    e("  .amdhsa_user_sgpr_kernarg_segment_ptr 1")
    e("  .amdhsa_system_sgpr_workgroup_id_x 1")
    e("  .amdhsa_float_denorm_mode_32 3")
    e(".end_amdhsa_kernel")
    return "\n".join(o) + "\n"


if __name__ == "__main__":
    ap = argparse.ArgumentParser()
    ap.add_argument("-o", default=f"cdna_kernels/{NAME}.s")
    ap.add_argument("--NW", type=int, default=8)
    ap.add_argument("--NS", type=int, default=4)
    ap.add_argument("--NB", type=int, default=2)
    ap.add_argument("--fl", default="nt")
    ap.add_argument("--xcd", type=int, default=0)
    ap.add_argument("--chunk", type=int, default=1)
    ap.add_argument("--stamp", type=int, default=0)
    a = ap.parse_args()
    open(a.o, "w").write(gen(a.NW, a.NS, a.NB, a.fl, a.xcd, a.chunk, a.stamp))
```

```python
import math, struct, sys
from gen1 import NAME, HEADER, f2u


def gen(NW=4, NR=8, IF="5", DEEP=8, ds=0, dm=1, de=1, fl="nt", stamp=0, map="d", pf=0):
    NS = 4
    NWG = 256
    IFp = [int(x) for x in str(IF).split(".")]
    assert max(IFp) <= NR and DEEP <= NR and NR % 8 == 0
    nload = 1024 // NW
    iters = nload // NR
    gpi = NR // 4
    ngrp = nload // 4
    if map == "d":
        if NW == 4:
            wsh, r0, r1, nstride = 8, 12, 13, 16384
        elif NW == 2:
            wsh, r0, r1, nstride = 9, 8, 12, 8192
        else:
            wsh, r0, r1, nstride = 8, 8, 9, 4096
    else:
        wsh, r0, r1, nstride = 12, 8, 9, 4096 * NW
    SC = (ngrp + 2) * 64
    ldsO = NW * SC
    ldsML = ldsO + NW * 512
    lds = ldsML + NW * 8
    o = []
    e = o.append

    vLane, vOff, vVoff, vVt, vTt = 0, 1, 2, 3, 4
    vT, vT2, vP, vPk, vL, vM, vMt = 5, 6, 7, 8, 9, 10, 11
    vMask = 12
    vS = 16
    vB1, vB2 = 16, 20
    vA0, vA1 = 24, 28
    vQ = 32
    vLd, vSc, vTr = 48, 49, 50
    vR = 52
    nv = vR + 4 * NR
    sR = 8
    sOff, sCnt, sC, sHead, sSplit, sWave = 16, 17, 18, 19, 20, 21
    sQp, sKp, sVp, sKtp, sVtp, sMp, sOutp, sDbg, sWs = 24, 26, 28, 30, 32, 34, 36, 38, 40
    sTmp = 42
    sMaskv = 48
    sSt = 52

    def r(b, n):
        return f"v[{b}:{b+n-1}]"
    DPP = "row_mask:0xf bank_mask:0xf"

    e(HEADER.rstrip())
    e(f"; @launch grid=({NWG},1,1) block=({NW*64},1,1) lds={lds}")
    e('.amdgcn_target "amdgcn-amd-amdhsa--gfx950"')
    e(".text")
    e(f".globl {NAME}_kernel")
    e(".p2align 8")
    e(f".type {NAME}_kernel,@function")
    e(f"{NAME}_kernel:")
    e(f"    s_cmp_ge_u32 s2, {NWG}")
    e("    s_cbranch_scc1 L_end")
    if stamp:
        e(f"    s_memrealtime s[{sSt}:{sSt+1}]")
    e(f"    s_load_dwordx16 s[{sQp}:{sQp+15}], s[0:1], 0")
    e(f"    s_load_dwordx2 s[{sWs}:{sWs+1}], s[0:1], 64")
    e(f"    s_lshr_b32 s{sHead}, s2, 2")
    e(f"    s_and_b32 s{sSplit}, s2, 3")
    e(f"    v_lshrrev_b32 v{vP}, 6, v0                   ; wave")
    e(f"    v_and_b32 v{vLane}, 63, v0")
    e(f"    v_readfirstlane_b32 s{sWave}, v{vP}")
    e(f"    s_lshl_b32 s{sTmp}, s{sSplit}, 10")
    e(f"    v_lshl_add_u32 v{vP}, v{vP}, {wsh}, s{sTmp}")
    e(f"    v_lshrrev_b32 v{vT}, 4, v{vLane}")
    e(f"    v_lshlrev_b32 v{vT}, 6, v{vT}")
    e(f"    v_and_b32 v{vT2}, 3, v{vLane}")
    e(f"    v_lshl_add_u32 v{vT}, v{vT2}, 4, v{vT}")
    e(f"    v_add_u32 v{vOff}, v{vT}, v{vP}")
    if r1 == r0 + 1:
        e(f"    v_bfe_u32 v{vT2}, v{vLane}, 2, 2")
        e(f"    v_lshl_add_u32 v{vOff}, v{vT2}, {r0}, v{vOff}")
    else:
        e(f"    v_bfe_u32 v{vT2}, v{vLane}, 2, 1")
        e(f"    v_lshl_add_u32 v{vOff}, v{vT2}, {r0}, v{vOff}")
        e(f"    v_bfe_u32 v{vT2}, v{vLane}, 3, 1")
        e(f"    v_lshl_add_u32 v{vOff}, v{vT2}, {r1}, v{vOff}")
    e(f"    s_lshl_b32 s{sTmp}, s{sHead}, 22")
    e(f"    s_lshl_b32 s{sTmp+2}, s{sHead}, 8")
    e(f"    s_mov_b32 s{sOff}, 0")
    e(f"    s_mov_b32 s{sR+2}, 0x400000")
    e(f"    s_mov_b32 s{sR+3}, 0x20000")
    e("    s_waitcnt lgkmcnt(0)")
    e(f"    s_add_u32 s{sQp}, s{sQp}, s{sTmp+2}")
    e(f"    s_addc_u32 s{sQp+1}, s{sQp+1}, 0")
    e(f"    s_add_u32 s{sR}, s{sKp}, s{sTmp}")
    e(f"    s_addc_u32 s{sR+1}, s{sKp+1}, 0")
    e(f"    global_load_dwordx4 {r(vS,4)}, v{vT}, s[{sQp}:{sQp+1}]")

    def load(slot):
        e(f"    buffer_load_dwordx4 {r(vR+4*slot,4)}, v{vOff}, s[{sR}:{sR+3}], s{sOff} offen {fl}")
        e(f"    s_add_u32 s{sOff}, s{sOff}, {nstride}")

    first = DEEP if ds else max(IFp)
    for i in range(first):
        load(i)
    e(f"    s_load_dword s{sMaskv}, s[{sMp}:{sMp+1}], 0")
    e(f"    s_add_u32 s{sVp}, s{sVp}, s{sTmp}")
    e(f"    s_addc_u32 s{sVp+1}, s{sVp+1}, 0")
    for p in (sKtp, sVtp, sOutp):
        e(f"    s_add_u32 s{p}, s{p}, s{sTmp+2}")
        e(f"    s_addc_u32 s{p+1}, s{p+1}, 0")
    e(f"    v_lshlrev_b32 v{vPk}, 2, v{vLane}")
    e(f"    global_load_dword v{vA0}, v{vPk}, s[{sQp}:{sQp+1}]")
    e(f"    global_load_dword v{vA0+1}, v{vPk}, s[{sKtp}:{sKtp+1}]")
    e(f"    global_load_dword v{vVt}, v{vPk}, s[{sVtp}:{sVtp+1}]")
    nsmall = 3
    if pf:
        e(f"    s_getpc_b64 s[{sTmp+4}:{sTmp+5}]")
        e(f"    v_lshlrev_b32 v{vPk}, 6, v{vLane}")
        e(f"    global_load_dword v{vSc}, v{vPk}, s[{sTmp+4}:{sTmp+5}]")
        nsmall += 1
    e(f"    v_and_b32 v{vVoff}, 15, v{vLane}")
    e(f"    v_lshl_add_u32 v{vVoff}, v{vVoff}, 4, v{vP}")
    e(f"    v_bfe_u32 v{vT2}, v{vLane}, 4, 1")
    e(f"    v_lshl_add_u32 v{vVoff}, v{vT2}, {r0}, v{vVoff}")
    e(f"    v_bfe_u32 v{vT2}, v{vLane}, 5, 1")
    e(f"    v_lshl_add_u32 v{vVoff}, v{vT2}, {r1}, v{vVoff}")
    c = (128 ** -0.5) * math.log2(math.e)
    e(f"    s_mov_b32 s{sC}, {hex(f2u(c))}")
    e(f"    v_mov_b32 v{vL}, 0")
    e(f"    v_mov_b32 v{vM}, 0xff800000")
    e(f"    s_mul_i32 s{sTmp}, s{sWave}, {SC}")
    e(f"    v_and_b32 v{vLd}, 60, v{vLane}")
    e(f"    v_add_u32 v{vLd}, s{sTmp}, v{vLd}")
    e(f"    v_and_b32 v{vT}, 1, v{vLane}")
    e(f"    v_lshlrev_b32 v{vT}, 4, v{vT}")
    e(f"    v_mov_b32 v{vPk}, 0xffff")
    e(f"    v_lshlrev_b32 v{vPk}, v{vT}, v{vPk}")
    e(f"    v_bfe_u32 v{vT}, v{vLane}, 1, 2")
    for i in range(4):
        e(f"    v_cmp_eq_u32 vcc, {i}, v{vT}")
        e("    s_nop 1")
        e(f"    v_cndmask_b32 v{vMask+i}, 0, v{vPk}, vcc")
    for i in range(4):
        e(f"    v_mov_b32 v{vS+4+i}, 0xff800000")
    e(f"    v_bfe_u32 v{vT2}, v{vLane}, 2, 2")
    e(f"    s_waitcnt vmcnt({first+nsmall})")
    quad = [0, 2, 1, 3]
    for u in range(4):
        e(f"    v_cmp_eq_u32 vcc, {quad[u]}, v{vT2}")
        e("    s_nop 1")
        for i in range(4):
            e(f"    v_cndmask_b32 v{vQ+4*u+i}, 0, v{vS+i}, vcc")
    for i in range(first, NR):
        e(f"    s_waitcnt vmcnt({first-1})")
        load(i)

    def xrow(reg, tmp, op):
        for sw in ("v_permlane16_swap_b32", "v_permlane32_swap_b32"):
            e(f"    v_mov_b32 v{tmp}, v{reg}")
            e("    s_nop 1")
            e(f"    {sw} v{reg}, v{tmp}")
            e("    s_nop 1")
            e(f"    {op} v{reg}, v{reg}, v{tmp}")

    lab = [0]

    def wait(i, extra=""):
        e(f"    s_waitcnt vmcnt({DEEP-1}){extra}")

    def throttle(i):
        x = IFp[i % len(IFp)] - 1
        if x < DEEP - 1:
            lab[0] += 1
            e(f"    s_cbranch_vccnz L_d{lab[0]}")
            e(f"    s_waitcnt vmcnt({x})")
            e(f"L_d{lab[0]}:")

    def tr_init():
        if stamp == 2:
            e(f"    v_mov_b32 v{vTr}, 0")
            e("    s_mov_b32 m0, 0")
            e("    s_mov_b32 s62, 0")
            e("    s_memrealtime s[60:61]")
    every = 1
    while 2 * iters > 64 * every:
        every *= 2

    def tr():
        if stamp == 2:
            e("    s_waitcnt lgkmcnt(0)")
            e(f"    v_writelane_b32 v{vTr}, s60, m0")
            e("    s_add_u32 s62, s62, 1")
            e(f"    s_lshr_b32 m0, s62, {int(math.log2(every))}")
            e("    s_memrealtime s[60:61]")

    def fin_a(S):
        e(f"    v_mov_b32_dpp v{vT}, v{S} quad_perm:[0,0,0,0] {DPP}")
        e(f"    v_mov_b32_dpp v{vT2}, v{S+2} quad_perm:[2,2,2,2] {DPP}")

    def fin_b(S, off):
        e(f"    v_add_f32_dpp v{vT}, v{S+1}, v{vT} quad_perm:[1,1,1,1] {DPP}")
        e(f"    v_add_f32_dpp v{vT2}, v{S+3}, v{vT2} quad_perm:[3,3,3,3] {DPP}")
        e(f"    v_add_f32 v{vT}, v{vT}, v{vT2}")
        e(f"    v_max_f32 v{vM}, v{vM}, v{vT}")
        e(f"    ds_write_b32 v{vLd}, v{vT} offset:{off}")

    tr_init()
    e(f"    s_mov_b32 s{sCnt}, 0")
    e(f"    s_mov_b64 vcc, {-1 if ds else 0}")
    e("L_k:")
    tr()
    for i in range(NR):
        g, u = divmod(i, 4)
        S = vS + 4 * (g & 1)
        Sp = vS + 4 * ((g + 1) & 1)
        wait(i)
        cc = "0" if u == 0 else r(S, 4)
        e(f"    v_mfma_f32_16x16x32_bf16 {r(S,4)}, {r(vR+4*i,4)}, {r(vQ+4*u,4)}, {cc}")
        throttle(i)
        load(i)
        if u == 1:
            fin_a(Sp)
        if u == 2:
            fin_b(Sp, 64 * g)
    e(f"    v_add_u32 v{vLd}, {64*gpi}, v{vLd}")
    e(f"    s_add_u32 s{sCnt}, s{sCnt}, 1")
    e(f"    s_sub_u32 s{sTmp}, s{sCnt}, {ds}")
    e(f"    s_cmp_ge_u32 s{sTmp}, {iters-dm-ds}")
    e("    s_cselect_b64 vcc, -1, 0")
    e(f"    s_cmp_lt_u32 s{sCnt}, {iters-1}")
    e("    s_cbranch_scc1 L_k")
    e(f"    s_cmp_eq_u32 s{sCnt}, {iters}")
    e("    s_cbranch_scc1 L_kdone")
    e(f"    s_mov_b32 s{sR}, s{sVp}")
    e(f"    s_mov_b32 s{sR+1}, s{sVp+1}")
    e(f"    s_mov_b32 s{sOff}, 0")
    e(f"    v_mov_b32 v{vOff}, v{vVoff}")
    e(f"    v_lshlrev_b32 v{vP}, 16, v{vA0}")
    e(f"    v_lshlrev_b32 v{vPk}, 16, v{vA0+1}")
    e(f"    v_mul_f32 v{vTt}, v{vP}, v{vPk}")
    e(f"    v_and_b32 v{vP}, 0xffff0000, v{vA0}")
    e(f"    v_and_b32 v{vPk}, 0xffff0000, v{vA0+1}")
    e(f"    v_fmac_f32 v{vTt}, v{vP}, v{vPk}")
    for i in range(8):
        e(f"    v_mov_b32 v{vA0+i}, 0")
    e("    s_branch L_k")
    e("L_kdone:")
    Sl = vS + 4 * ((gpi - 1) & 1)
    e(f"    v_mov_b32 v{vP}, 0xff800000")
    e(f"    ds_write_b32 v{vLd}, v{vP} offset:64")
    fin_a(Sl)
    e("    s_nop 0")
    fin_b(Sl, 0)
    e(f"    v_subrev_u32 v{vLd}, {64*(ngrp-1)}, v{vLd}")
    e(f"    ds_read_b32 v{vP}, v{vLd}")
    e(f"    ds_read_b32 v{vSc}, v{vLd} offset:64")
    e(f"    v_max_f32_dpp v{vM}, v{vM}, v{vM} row_ror:4 {DPP}")
    e("    s_nop 1")
    e(f"    v_max_f32_dpp v{vM}, v{vM}, v{vM} row_ror:8 {DPP}")
    xrow(vM, vT, "v_max_f32")
    e(f"    v_mul_f32 v{vMt}, s{sC}, v{vM}")
    e("    s_waitcnt lgkmcnt(0)")
    e(f"    v_fma_f32 v{vP}, v{vP}, s{sC}, -v{vMt}")
    e(f"    v_exp_f32 v{vP}, v{vP}")
    e(f"    s_mov_b32 s{sCnt}, 0")

    def pk_and_b1a():
        e(f"    v_cvt_pk_bf16_f32 v{vPk}, v{vP}, v{vP}")
        e(f"    v_add_f32 v{vL}, v{vL}, v{vP}")
        e(f"    v_and_b32 v{vB1}, v{vPk}, v{vMask}")
        e(f"    v_and_b32 v{vB1+1}, v{vPk}, v{vMask+1}")

    def b1b():
        e(f"    v_and_b32_dpp v{vB1+2}, v{vPk}, v{vMask+2} row_ror:4 {DPP}")
        e(f"    v_and_b32_dpp v{vB1+3}, v{vPk}, v{vMask+3} row_ror:4 {DPP}")
    pk_and_b1a()
    b1b()
    e(f"    s_mov_b64 vcc, {-1 if de >= iters else 0}")
    e("L_v:")
    tr()
    for i in range(NR):
        g, u = divmod(i, 4)
        wait(i, " lgkmcnt(0)" if u == 1 else "")
        A = vA0 if u % 2 == 0 else vA1
        Bm = vB1 if u < 2 else vB2
        e(f"    v_mfma_f32_16x16x32_bf16 {r(A,4)}, {r(vR+4*i,4)}, {r(Bm,4)}, {r(A,4)}")
        throttle(i)
        load(i)
        if u == 0:
            e(f"    v_and_b32_dpp v{vB2}, v{vPk}, v{vMask} row_ror:12 {DPP}")
            e(f"    v_and_b32_dpp v{vB2+1}, v{vPk}, v{vMask+1} row_ror:12 {DPP}")
            e(f"    v_and_b32 v{vB2+2}, v{vPk}, v{vMask+2}")
            e(f"    v_and_b32 v{vB2+3}, v{vPk}, v{vMask+3}")
        if u == 1:
            e(f"    v_fma_f32 v{vP}, v{vSc}, s{sC}, -v{vMt}")
            e(f"    v_exp_f32 v{vP}, v{vP}")
            e(f"    ds_read_b32 v{vSc}, v{vLd} offset:{64*(g+2)}")
        if u == 2:
            pk_and_b1a()
        if u == 3:
            b1b()
            e("    s_nop 0")
    e(f"    v_add_u32 v{vLd}, {64*gpi}, v{vLd}")
    e(f"    s_add_u32 s{sCnt}, s{sCnt}, 1")
    e(f"    s_cmp_ge_u32 s{sCnt}, {iters-de}")
    e("    s_cselect_b64 vcc, -1, 0")
    e(f"    s_cmp_ge_u32 s{sCnt}, {iters-1}")
    e(f"    s_cselect_b32 s{sR+2}, 0, s{sR+2}")
    e(f"    s_cmp_lt_u32 s{sCnt}, {iters}")
    e("    s_cbranch_scc1 L_v")
    if stamp:
        e(f"    s_memrealtime s[{sSt+2}:{sSt+3}]")
    e(f"    v_add_f32_dpp v{vL}, v{vL}, v{vL} row_ror:4 {DPP}")
    e(f"    v_lshrrev_b32 v{vP}, 4, v{vLane}")
    e(f"    v_and_b32 v{vT2}, 7, v{vLane}")
    e(f"    v_add_f32_dpp v{vL}, v{vL}, v{vL} row_ror:8 {DPP}")
    xrow(vL, vT, "v_add_f32")
    for t in range(4):
        e(f"    v_add_f32_dpp v{vA0+t}, v{vA1+t}, v{vA0+t} row_ror:8 {DPP}")
    e(f"    v_lshlrev_b32 v{vT2}, 2, v{vT2}")
    e(f"    v_lshl_add_u32 v{vT}, v{vP}, 7, v{vT2}")
    e(f"    s_lshl_b32 s{sTmp}, s{sWave}, 9")
    e(f"    v_add_u32 v{vT}, s{sTmp}, v{vT}")
    e(f"    s_lshl_b32 s{sTmp}, s{sWave}, 3")
    e(f"    v_mov_b32 v{vT2}, s{sTmp}")
    e(f"    v_mov_b32 v{vM}, v{vMt}")
    e(f"    v_mov_b32 v{vMt}, v{vL}")
    e("    s_mov_b32 exec_lo, 0x00ff00ff")
    e("    s_mov_b32 exec_hi, 0x00ff00ff")
    for t in range(4):
        e(f"    ds_write_b32 v{vT}, v{vA0+t} offset:{ldsO+32*t}")
    e(f"    ds_write_b64 v{vT2}, v[{vM}:{vMt}] offset:{ldsML}")
    e("    s_mov_b64 exec, -1")
    e("    s_waitcnt vmcnt(0) lgkmcnt(0)")
    e("    s_barrier")
    e(f"    s_cmp_lg_u32 s{sWave}, 0")
    e("    s_cbranch_scc1 L_end")
    vO = vR
    vML = vR + 8
    e(f"    v_lshlrev_b32 v{vT}, 3, v{vLane}")
    e(f"    v_mov_b32 v{vT2}, 0")
    for w in range(NW):
        e(f"    ds_read_b64 v[{vML+2*w}:{vML+2*w+1}], v{vT2} offset:{ldsML+8*w}")
    for w in range(NW):
        e(f"    ds_read_b64 v[{vO+2*w}:{vO+2*w+1}], v{vT} offset:{ldsO+512*w}")
    e(f"    s_lshl_b32 s{sTmp}, s{sHead}, 12")
    e(f"    s_add_u32 s{sWs}, s{sWs}, s{sTmp}")
    e(f"    s_addc_u32 s{sWs+1}, s{sWs+1}, 0")
    e(f"    s_lshl_b32 s{sTmp}, s{sSplit}, 10")
    e(f"    v_add_u32 v{vP}, s{sTmp}, v{vT}")
    e(f"    v_mov_b32 v{vPk}, s{sTmp}")
    e("    s_waitcnt lgkmcnt(0)")

    def combine(n, tree):
        if tree:
            e(f"    v_max_f32 v{vM}, v{vTt}, v{vML}")
        else:
            e(f"    v_mov_b32 v{vM}, v{vML}")
        for w in range(1, n):
            e(f"    v_max_f32 v{vM}, v{vM}, v{vML+2*w}")
        for w in range(n):
            e(f"    v_sub_f32 v{vML+2*w}, v{vML+2*w}, v{vM}")
        if tree:
            e(f"    v_sub_f32 v{vTt}, v{vTt}, v{vM}")
        for w in range(n):
            e(f"    v_exp_f32 v{vML+2*w}, v{vML+2*w}")
        if tree:
            e(f"    v_exp_f32 v{vMt}, v{vTt}")
            e(f"    v_lshlrev_b32 v{vA0}, 16, v{vVt}")
            e(f"    v_and_b32 v{vA0+1}, 0xffff0000, v{vVt}")
            e(f"    v_mul_f32 v{vA0}, v{vMt}, v{vA0}")
            e(f"    v_mul_f32 v{vA0+1}, v{vMt}, v{vA0+1}")
        else:
            e(f"    v_mov_b32 v{vMt}, 0")
            e(f"    v_mov_b32 v{vA0}, 0")
            e(f"    v_mov_b32 v{vA0+1}, 0")
        for w in range(n):
            e(f"    v_fmac_f32 v{vMt}, v{vML+2*w}, v{vML+2*w+1}")
            e(f"    v_fmac_f32 v{vA0}, v{vML+2*w}, v{vO+2*w}")
            e(f"    v_fmac_f32 v{vA0+1}, v{vML+2*w}, v{vO+2*w+1}")
    combine(NW, False)
    e(f"    global_store_dwordx2 v{vP}, v[{vA0}:{vA0+1}], s[{sWs}:{sWs+1}] sc1")
    e("    s_mov_b64 exec, 1")
    e(f"    global_store_dwordx2 v{vPk}, v[{vM}:{vMt}], s[{sWs}:{sWs+1}] offset:512 sc1")
    e("    s_mov_b64 exec, -1")
    for sh in (1, 2, 4, 8):
        e(f"    v_add_f32_dpp v{vTt}, v{vTt}, v{vTt} row_ror:{sh} {DPP}")
        e("    s_nop 1")
    xrow(vTt, vL, "v_add_f32")
    e(f"    s_lshr_b32 s{sTmp}, s{sHead}, 5")
    e(f"    s_lshl_b32 s{sTmp}, s{sTmp}, 4")
    e(f"    s_lshr_b32 s{sMaskv}, s{sMaskv}, s{sTmp}")
    e(f"    s_lshl_b32 s{sMaskv}, s{sMaskv}, 16")
    e(f"    v_sub_f32 v{vL}, s{sMaskv}, 1.0               ; mask - 1")
    e(f"    v_mul_f32 v{vL}, {hex(f2u(1e9*math.log2(math.e)))}, v{vL}")
    e(f"    v_fma_f32 v{vTt}, v{vTt}, s{sC}, v{vL}")
    e(f"    s_lshl_b32 s{sTmp}, s{sHead}, 2")
    e(f"    v_mov_b32 v{vP}, s{sTmp}")
    e(f"    v_mov_b32 v{vPk}, 1")
    e("    s_mov_b64 exec, 1")
    e("    s_waitcnt vmcnt(0)")
    e(f"    global_atomic_add v{vL}, v{vP}, v{vPk}, s[{sDbg}:{sDbg+1}] sc0")
    e("    s_waitcnt vmcnt(0)")
    e(f"    v_readfirstlane_b32 s{sTmp}, v{vL}")
    e("    s_mov_b64 exec, -1")

    def put_stamps():
        e(f"    s_memrealtime s[{sSt+4}:{sSt+5}]")
        e(f"    s_getreg_b32 s{sSt+6}, hwreg(HW_REG_XCC_ID)")
        e(f"    s_getreg_b32 s{sSt+7}, hwreg(HW_REG_HW_ID)")
        e("    s_waitcnt lgkmcnt(0)")
        e(f"    s_lshl_b32 s{sTmp+1}, s{sHead}, 12")
        e(f"    s_lshl_b32 s{sTmp+2}, s2, 5")
        e(f"    s_add_u32 s{sTmp+2}, s{sTmp+2}, 0x1000000")
        e(f"    s_sub_u32 s{sTmp+2}, s{sTmp+2}, s{sTmp+1}")
        e(f"    v_mov_b32 v{vP}, s{sTmp+2}")
        for i in range(8):
            e(f"    v_mov_b32 v{vQ+i}, s{sSt+i}")
        e("    s_mov_b64 exec, 1")
        e(f"    global_store_dwordx4 v{vP}, {r(vQ,4)}, s[{sWs}:{sWs+1}]")
        e(f"    global_store_dwordx4 v{vP}, {r(vQ+4,4)}, s[{sWs}:{sWs+1}] offset:16")
        e("    s_mov_b64 exec, -1")
        if stamp == 2:
            e(f"    s_lshl_b32 s{sTmp+2}, s2, 8")
            e(f"    s_add_u32 s{sTmp+2}, s{sTmp+2}, 0x2000000")
            e(f"    s_sub_u32 s{sTmp+2}, s{sTmp+2}, s{sTmp+1}")
            e(f"    v_lshlrev_b32 v{vP}, 2, v{vLane}")
            e(f"    v_add_u32 v{vP}, s{sTmp+2}, v{vP}")
            e(f"    global_store_dword v{vP}, v{vTr}, s[{sWs}:{sWs+1}]")
    e(f"    s_cmp_lg_u32 s{sTmp}, {NS-1}")
    e(f"    s_cbranch_scc1 {'L_st' if stamp else 'L_end'}")
    for w in range(NS):
        e(f"    global_load_dwordx2 v[{vML+2*w}:{vML+2*w+1}], v{vT2}, s[{sWs}:{sWs+1}] offset:{1024*w+512} sc1")
        e(f"    global_load_dwordx2 v[{vO+2*w}:{vO+2*w+1}], v{vT}, s[{sWs}:{sWs+1}] offset:{1024*w} sc1")
    e("    s_waitcnt vmcnt(0)")
    combine(NS, True)
    e(f"    v_rcp_f32 v{vMt}, v{vMt}")
    e(f"    v_lshlrev_b32 v{vP}, 2, v{vLane}")
    e(f"    v_mul_f32 v{vA0}, v{vA0}, v{vMt}")
    e(f"    v_mul_f32 v{vA0+1}, v{vA0+1}, v{vMt}")
    e(f"    v_cvt_pk_bf16_f32 v{vA0}, v{vA0}, v{vA0+1}")
    e(f"    global_store_dword v{vP}, v{vA0}, s[{sOutp}:{sOutp+1}]")
    if stamp:
        e("    s_waitcnt vmcnt(0)")
        e("L_st:")
        put_stamps()
    e("L_end:")
    e("    s_endpgm")
    if pf:
        e("    .fill 1024, 4, 0xbf810000            ; keeps the code prefetch inside .text")
    e('.section .rodata,"a"')
    e(".p2align 6")
    e(f".amdhsa_kernel {NAME}_kernel")
    e(f"  .amdhsa_next_free_vgpr {nv}")
    e("  .amdhsa_next_free_sgpr 64")
    e(f"  .amdhsa_accum_offset {(nv+3)//4*4}")
    e("  .amdhsa_group_segment_fixed_size 0")
    e("  .amdhsa_kernarg_size 72")
    e("  .amdhsa_user_sgpr_count 2")
    e("  .amdhsa_user_sgpr_kernarg_segment_ptr 1")
    e("  .amdhsa_system_sgpr_workgroup_id_x 1")
    e("  .amdhsa_float_denorm_mode_32 3")
    e(".end_amdhsa_kernel")
    if stamp == 2:
        e(f"; meta waves={NWG} iters={2*iters} every={every} bytes={1 << 29}")
    return "\n".join(o) + "\n"


if __name__ == "__main__":
    for spec in sys.argv[1:]:
        name, _, kv = spec.partition(":")
        kw = {}
        for p in kv.split(","):
            if p:
                k, v = p.split("=")
                kw[k] = v.replace("+", " ") if k in ("fl", "IF", "map") else int(v)
        path = f"cdna_kernels/{NAME}.s" if name == "main" else f"var/{name}.s"
        open(path, "w").write(gen(**kw))
```

```python
import math, struct, sys
from gen1 import NAME, HEADER, f2u


def gen(W="20.21.22.24", duty="g8g8g8g8", offs="0.20", inc="0.1.9", mp=5, mstr=4, mfl="glc",
        fl="nt", stamp=0, nk0=4, NI=28, pfs=1, ck1=28, kvb=2, NP=40, dpoll=0, vm=1, ramp="", refm=13,
        map="w3n5n4r0n1n2n3n0w4r1w0w2w1w5w6w7", xr="14w5", cmt=0):
    Ws = [int(x) for x in W.split(".")]
    NC = len(Ws)
    offs = [int(x) for x in offs.split(".")]
    inc = [int(x) for x in inc.split(".")]
    assert len(inc) == len(offs) + 1 and len(offs) <= 3 and offs == sorted(offs)
    NR, NWG, iters, gpi, ngrp = 32, 256, 32, 8, 256
    lds = (ngrp + 3) * 64
    toks = [map[i:i+2] for i in range(0, len(map), 2)]
    if len(toks) in (10, 16):
        toks = toks[:9] + ["n6", "n7", "n8", "n9"] + toks[9:]
    if len(toks) == 14:
        toks += [f"w{i}" for i in range(8) if f"w{i}" not in toks]
    pos = {t: 8 + i for i, t in enumerate(toks)}
    assert sorted(pos) == sorted(["r0", "r1"] + [f"w{i}" for i in range(8)] + [f"n{i}" for i in range(10)])
    assert all(t[0] == "w" for t in toks[14:])
    spl = [t for t in toks[:14] if t[0] == "w"]
    hi = [pos[f"n{i}"] for i in range(5, 10)]
    himask = sum(1 << b for b in hi)
    xrs = [(int(t.split("w")[0]), int(t.split("w")[1])) for t in xr.split(".") if t]
    xrmask = sum(1 << p for p, _ in xrs)
    assert all(toks[p - 8][0] == "n" for p, _ in xrs)
    scatter = hi != sorted(hi)
    contiguous = hi == list(range(hi[0], hi[0] + 5)) and not xrs
    immm = 0xfff & ~xrmask

    def lowoff(n):
        return sum(((n >> i) & 1) << pos[f"n{i}"] for i in range(5))
    o = []
    e = o.append

    vOff, vVoff, vM1 = 1, 2, 3
    vTt, vT, vT2, vP, vPk, vL, vM, vMt = 4, 5, 6, 7, 8, 9, 10, 11
    vMask = 12
    vS = 16
    vB1, vB2 = 16, 20
    vA0, vA1 = 24, 28
    vQ = 32
    vSc = 48
    vM2, vM3 = 50, 51
    vSl, vOo = 52, 53
    vX = 54
    vSn = 56
    vLd, vMad, vMs, vMn = 72, 73, 74, 75
    vR = 76
    nv = vR + 4 * NR
    vTr = nv
    if stamp in (2, 3, 5):
        nv += 1
    sR = 8
    sT2, sNx, sXr, sSp = 12, 13, 14, 15
    sOff, sHi, sC, sHead, sSplit, sJ, sIx, sMk = 16, 17, 18, 19, 20, 21, 22, 23
    sQp, sKp, sVp, sKtp, sVtp, sMp, sOutp, sDbg, sWs = 24, 26, 28, 30, 32, 34, 36, 38, 40
    sTmp = 42
    sMaskv, sAcc, sDuty, sMo = 48, 49, 50, 51
    sSt = 52
    sEx = 4
    sCell = [3, 6, 7]
    sMb = 64
    sEv = 66
    nsg = 100 if stamp in (3, 5) else 68
    pst = [0]

    def pstamp():
        if stamp == 3:
            e(f"    s_memrealtime s[{68+2*pst[0]}:{69+2*pst[0]}]")
            pst[0] += 1

    def r(b, n):
        return f"v[{b}:{b+n-1}]"
    DPP = "row_mask:0xf bank_mask:0xf"

    def gather(dst, items, tmp):
        runs = []
        for wb, db in sorted(items):
            if runs and runs[-1][0] + runs[-1][2] == wb and runs[-1][1] + runs[-1][2] == db:
                runs[-1][2] += 1
            else:
                runs.append([wb, db, 1])
        for k, (wb, db, n) in enumerate(runs):
            t = dst if k == 0 else tmp
            e(f"    s_bfe_u32 s{t}, s2, {hex((n << 16) | wb)}")
            if db:
                e(f"    s_lshl_b32 s{t}, s{t}, {db}")
            if k:
                e(f"    s_xor_b32 s{dst}, s{dst}, s{t}")

    e(HEADER.rstrip())
    e(f"; @launch grid=({NWG},1,1) block=(64,1,1) lds={lds}")
    if cmt:
        e(open("notes.txt").read().rstrip())
    e('.amdgcn_target "amdgcn-amd-amdhsa--gfx950"')
    e(".text")
    e(f".globl {NAME}_kernel")
    e(".p2align 8")
    e(f".type {NAME}_kernel,@function")
    e(f"{NAME}_kernel:")
    if stamp:
        e(f"    s_memrealtime s[{sSt}:{sSt+1}]")
    e(f"    s_load_dwordx16 s[{sQp}:{sQp+15}], s[0:1], 0")
    e(f"    s_load_dwordx2 s[{sWs}:{sWs+1}], s[0:1], 64")
    e(f"    s_cmp_ge_u32 s2, {NWG}")
    e("    s_cbranch_scc1 L_end")
    e("    ; head index, byte offset of this split inside a head, order mask")
    gather(sHead, [(int(t[1]), i) for i, t in enumerate(toks[14:])], sTmp)
    gather(sSp, [(int(t[1]), pos[t]) for t in spl], sTmp)
    if xrs:
        gather(sXr, [(w, p) for p, w in xrs], sTmp)
    e(f"    v_lshrrev_b32 v{vT}, 4, v0")
    e(f"    v_lshlrev_b32 v{vT}, 6, v{vT}")
    e(f"    v_and_b32 v{vT2}, 3, v0")
    e(f"    v_lshl_add_u32 v{vT}, v{vT2}, 4, v{vT}")
    if pos["r1"] == pos["r0"] + 1:
        e(f"    v_bfe_u32 v{vT2}, v0, 2, 2")
        e(f"    v_lshl_add_u32 v{vOff}, v{vT2}, {pos['r0']}, v{vT}")
    else:
        e(f"    v_bfe_u32 v{vT2}, v0, 2, 1")
        e(f"    v_lshl_add_u32 v{vOff}, v{vT2}, {pos['r0']}, v{vT}")
        e(f"    v_bfe_u32 v{vT2}, v0, 3, 1")
        e(f"    v_lshl_add_u32 v{vOff}, v{vT2}, {pos['r1']}, v{vOff}")
    e(f"    v_add_u32 v{vOff}, s{sSp}, v{vOff}")
    e(f"    s_lshl_b32 s{sTmp}, s{sHead}, 22")

    def reset_off():
        e(f"    s_mov_b32 s{sOff}, {'s%d' % sXr if xrs else 0}")
        if not contiguous:
            e(f"    s_mov_b32 s{sHi}, 0")
    reset_off()
    e(f"    s_mov_b32 s{sR+2}, 0x400000")
    e(f"    s_mov_b32 s{sR+3}, 0x20000")
    gather(sSplit, [(int(t[1]), i) for i, t in enumerate(spl)], sTmp + 1)
    e(f"    s_lshl_b32 s{sTmp+1}, s{sSplit}, 10")
    e(f"    s_lshl_b32 s{sTmp+2}, s{sHead}, 8")
    e(f"    s_lshl_b32 s{sTmp+3}, s{sHead}, 12")
    e(f"    v_lshlrev_b32 v{vPk}, 2, v0")
    e(f"    v_lshlrev_b32 v{vSl}, 4, v0")
    e(f"    v_and_b32 v{vVoff}, 0xf0, v{vSl}")
    e(f"    v_bfe_u32 v{vP}, v0, 4, 1")
    e(f"    v_lshl_add_u32 v{vP}, v{vP}, 3, v{vVoff}       ; v_tree offset: (l&15)*16 + ((l>>4)&1)*8")
    e(f"    v_add_u32 v{vSl}, s{sTmp+1}, v{vSl}")
    e("    s_waitcnt lgkmcnt(0)")
    pstamp()
    e(f"    s_add_u32 s{sR}, s{sKp}, s{sTmp}")
    e(f"    s_addc_u32 s{sR+1}, s{sKp+1}, 0")

    def load(i):
        lo = lowoff(i)
        e(f"    buffer_load_dwordx4 {r(vR+4*i,4)}, v{vOff}, s[{sR}:{sR+3}], s{sOff} offen offset:{lo & immm} {fl}")
        cur = lo & ~immm
        if i < NR - 1:
            d = cur ^ (lowoff(i + 1) & ~immm)
            if d:
                e(f"    s_xor_b32 s{sOff}, s{sOff}, {hex(d)}")
            elif i % 4 == 3:
                e("    s_nop 0")
            if scatter and 8 <= i < 14:
                k = i - 8
                if k == 0:
                    e(f"    s_add_u32 s{sHi}, s{sHi}, 1")
                    e(f"    s_mov_b32 s{sNx}, {'s%d' % sXr if xrs else 0}")
                else:
                    e(f"    s_bfe_u32 s{sT2}, s{sHi}, {hex((1 << 16) | (k - 1))}")
                    e(f"    s_lshl_b32 s{sT2}, s{sT2}, {hi[k-1]}")
                    e(f"    s_xor_b32 s{sNx}, s{sNx}, s{sT2}")
            if not scatter and not contiguous and i == 11:
                e(f"    s_or_b32 s{sHi}, s{sHi}, {hex(~himask & 0xffffffff)}")
                e(f"    s_add_u32 s{sHi}, s{sHi}, 1")
                e(f"    s_and_b32 s{sHi}, s{sHi}, {hex(himask)}")
        elif contiguous:
            e(f"    s_add_u32 s{sOff}, s{sOff}, {hex(((1 << hi[0]) - cur) & 0xffffffff)}")
        elif scatter:
            e(f"    s_mov_b32 s{sOff}, s{sNx}")
        elif xrs:
            e(f"    s_xor_b32 s{sOff}, s{sHi}, s{sXr}")
        else:
            e(f"    s_mov_b32 s{sOff}, s{sHi}")

    for i in range(nk0):
        load(i)
    for p in (sQp, sKtp, sVtp):
        e(f"    s_add_u32 s{p}, s{p}, s{sTmp+2}")
        e(f"    s_addc_u32 s{p+1}, s{p+1}, 0")
    e(f"    s_load_dword s{sMaskv}, s[{sMp}:{sMp+1}], 0")
    e(f"    global_load_dwordx4 {r(vS,4)}, v{vT}, s[{sQp}:{sQp+1}]")
    e(f"    global_load_dword v{vA0}, v{vPk}, s[{sQp}:{sQp+1}]")
    e(f"    global_load_dword v{vA0+1}, v{vPk}, s[{sKtp}:{sKtp+1}]")
    e(f"    global_load_dwordx2 {r(vX,2)}, v{vP}, s[{sVtp}:{sVtp+1}]")
    e(f"    s_getreg_b32 s{sIx}, hwreg(HW_REG_XCC_ID, 0, 3)")
    e(f"    s_mul_i32 s{sT2}, s{sIx}, {max(4096, 64*mstr)+256}")
    e(f"    s_add_u32 s{sT2}, s{sT2}, 0x40000")
    e(f"    s_add_u32 s{sMb}, s{sWs}, s{sT2}")
    e(f"    s_addc_u32 s{sMb+1}, s{sWs+1}, 0")
    e(f"    v_lshlrev_b32 v{vMad}, {int(math.log2(mstr))}, v0")
    e(f"    s_add_u32 s{sWs}, s{sWs}, s{sTmp+3}")
    e(f"    s_addc_u32 s{sWs+1}, s{sWs+1}, 0")
    e(f"    global_load_dword v{vMs}, v{vMad}, s[{sMb}:{sMb+1}] sc1")
    e(f"    v_xor_b32 v{vM1}, 0x400, v{vSl}")
    e(f"    v_xor_b32 v{vM2}, 0x800, v{vSl}")
    e(f"    v_xor_b32 v{vM3}, 0xc00, v{vSl}")
    for k, a in enumerate((vM1, vM2, vM3, vSl)):
        e(f"    global_load_dwordx4 {r(vSn+4*k,4)}, v{a}, s[{sWs}:{sWs+1}] sc1")
    nsmall = 9
    e(f"    s_lshr_b32 s{sAcc}, s2, 3")
    if pfs:
        e(f"    s_getpc_b64 s[{sTmp+4}:{sTmp+5}]")
        e(f"    s_lshl_b32 s{sT2}, s{sAcc}, {8+pfs}")
        e(f"    v_lshl_add_u32 v{vMn}, v0, {2+pfs}, s{sT2}")
        e(f"    global_load_dword v{vSc}, v{vMn}, s[{sTmp+4}:{sTmp+5}]")
        nsmall += 1
    for i in range(nk0, NI):
        load(i)
    pstamp()
    e(f"    s_add_u32 s{sVp}, s{sVp}, s{sTmp}")
    e(f"    s_addc_u32 s{sVp+1}, s{sVp+1}, 0")
    e(f"    s_add_u32 s{sOutp}, s{sOutp}, s{sTmp+2}")
    e(f"    s_addc_u32 s{sOutp+1}, s{sOutp+1}, 0")
    e(f"    v_lshrrev_b32 v{vOo}, 5, v0")
    e(f"    v_lshl_add_u32 v{vOo}, v{vOo}, 2, v{vP}        ; output offset")
    e(f"    v_bfe_u32 v{vT}, v0, 4, 1")
    e(f"    v_lshl_add_u32 v{vVoff}, v{vT}, {pos['r0']}, v{vVoff}")
    e(f"    v_lshrrev_b32 v{vT}, 5, v0")
    e(f"    v_lshl_add_u32 v{vVoff}, v{vT}, {pos['r1']}, v{vVoff}")
    e(f"    v_add_u32 v{vVoff}, s{sSp}, v{vVoff}")
    c = (128 ** -0.5) * math.log2(math.e)
    e(f"    s_mov_b32 s{sC}, {hex(f2u(c))}")
    e(f"    v_mov_b32 v{vM}, 0xff800000")
    e(f"    v_and_b32 v{vLd}, 60, v0")
    e(f"    v_and_b32 v{vT}, 1, v0")
    e(f"    v_lshlrev_b32 v{vT}, 4, v{vT}")
    e(f"    v_mov_b32 v{vPk}, 0xffff")
    e(f"    v_lshlrev_b32 v{vPk}, v{vT}, v{vPk}")
    e(f"    v_bfe_u32 v{vT}, v0, 1, 2")
    for i in range(4):
        e(f"    v_cmp_eq_u32 vcc, {i}, v{vT}")
        e(f"    v_mov_b32 v{vS+4+i}, 0xff800000")
        e(f"    v_mov_b32 v{vA1+i}, 0")
        e(f"    v_cndmask_b32 v{vMask+i}, 0, v{vPk}, vcc")
    e(f"    s_lshr_b32 s{sTmp}, s{sHead}, 5")
    e(f"    s_lshl_b32 s{sTmp}, s{sTmp}, 4")
    e("    s_waitcnt lgkmcnt(0)")
    e(f"    s_lshr_b32 s{sMaskv}, s{sMaskv}, s{sTmp}")
    e(f"    s_lshl_b32 s{sMaskv}, s{sMaskv}, 16")
    e(f"    v_sub_f32 v{vL}, s{sMaskv}, 1.0               ; mask - 1")
    e(f"    v_mul_f32 v{vL}, {hex(f2u(1e9*math.log2(math.e)))}, v{vL}   ; (1-mask)*-1e9*log2(e)")
    e(f"    s_cmp_eq_u32 s{sSplit}, 0")
    e(f"    s_cselect_b32 s{sTmp}, 0, 0xff800000")
    e(f"    v_add_f32 v{vL}, s{sTmp}, v{vL}")
    dv = [int(ch, 32) for ch in duty]
    if dv == dv[:2] * 4:
        e(f"    s_bitcmp1_b32 s{sIx}, 0")
        e(f"    s_cselect_b32 s{sDuty}, {dv[1]}, {dv[0]}")
    else:
        tab = sum(d << (5 * i) for i, d in enumerate(dv))
        e(f"    s_mov_b32 s{sTmp+2}, {hex(tab & 0xffffffff)}")
        e(f"    s_mov_b32 s{sTmp+3}, {hex(tab >> 32)}")
        e(f"    s_mul_i32 s{sTmp}, s{sIx}, 5")
        e(f"    s_lshr_b64 s[{sTmp+2}:{sTmp+3}], s[{sTmp+2}:{sTmp+3}], s{sTmp}")
        e(f"    s_and_b32 s{sDuty}, s{sTmp+2}, 31")
    e(f"    s_mul_i32 s{sTmp}, s{sAcc}, {refm}")
    e(f"    s_add_u32 s{sTmp}, s{sTmp}, 5")
    e(f"    s_and_b32 s{sTmp}, s{sTmp}, 31")
    e(f"    s_lshl_b64 s[{sEx}:{sEx+1}], 1, s{sTmp}")
    sites = []
    for k, of in enumerate(offs):
        d, st = divmod(mp + of, NR)
        e(f"    s_add_u32 s{sCell[k]}, s{sTmp}, {d}")
        sites.append((st, k))
    e(f"    s_and_b32 s{sAcc}, s{sAcc}, 15")
    e(f"    s_mov_b32 s{sJ}, 0")
    e(f"    s_mov_b32 s{sMo}, 0")
    e(f"    s_mov_b32 s{sEv}, {iters-1}")
    if stamp:
        e("    s_mov_b32 s63, 0")
    lvl = [0, 1, 2, 4][:len(inc)]
    inctab = sum(min(v, 15) << (8 * l) for v, l in zip(inc, lvl) if l < 4)
    stubs = []

    def control(i, tag):
        for st, k in sites:
            if st == i:
                e(f"    s_cmp_eq_u32 s{sJ}, s{sCell[k]}")
                e(f"    s_cbranch_scc1 L_pub_{tag}_{k}")
                e(f"L_pubx_{tag}_{k}:")
                stubs.append((tag, k))
        if i == mp and not vm:
            e(f"    s_load_dword s{sMk}, s[{sMb}:{sMb+1}], s{sMo} {mfl}")
        if i == mp and vm:
            e(f"    global_load_dword v{vX}, v{vMad}, s[{sMb}:{sMb+1}] sc1")
        if i == 29 and vm:
            e(f"    v_readlane_b32 s{sMk}, v{vX}, s{sJ}")
        if i == 27:
            e(f"    v_readlane_b32 s{sTmp}, v{vMs}, s{sJ}")
            e(f"    s_add_u32 s{sAcc}, s{sAcc}, s{sDuty}")
            e(f"    s_lshr_b32 s{sIx}, s{sAcc}, 4")
            e(f"    s_and_b32 s{sAcc}, s{sAcc}, 15")
        if i == 28 and not vm:
            e(f"    s_add_u32 s{sMo}, s{sMo}, {mstr}")
        if i == (30 if vm else 29):
            e(f"    s_xor_b32 s{sTmp}, s{sTmp}, s{sMk}")
            e(f"    s_bcnt1_i32_b32 s{sTmp}, s{sTmp}")
            if len(offs) == 3:
                e(f"    s_cmp_gt_u32 s{sTmp}, 16")
                e(f"    s_cselect_b32 s{sIx}, {NC-1}, s{sIx}")
        if i == 30:
            e(f"    s_lshr_b32 s{sTmp}, {hex(inctab)}, s{sTmp}")
            e(f"    s_and_b32 s{sTmp}, s{sTmp}, 15")
            e(f"    s_add_u32 s{sIx}, s{sIx}, s{sTmp}")
            if stamp:
                e(f"    s_min_u32 s{sIx}, s{sIx}, {NC-1}")
                e(f"    s_add_u32 s63, s63, s{sIx}")

    def dispatch(ph, order):
        for c in order[:-1]:
            e(f"    s_cmp_{'ge' if c == NC-1 else 'eq'}_u32 s{sIx}, {c}")
            e(f"    s_cbranch_scc1 L_{ph}{c}")
        e(f"    s_branch L_{ph}{order[-1]}")

    def endit(ph):
        e(f"    v_add_u32 v{vLd}, {64*gpi}, v{vLd}")
        e(f"    s_add_u32 s{sJ}, s{sJ}, 1")
        e(f"    s_cmp_eq_u32 s{sJ}, s{sEv}")
        e(f"    s_cbranch_scc1 L_{ph}ev")
        dispatch(ph, [1, 2, 0] + list(range(3, NC)) if NC > 3 else list(range(NC)))

    def xrow(reg, tmp, op):
        L = []
        for sw in ("v_permlane16_swap_b32", "v_permlane32_swap_b32"):
            L += [f"    v_mov_b32 v{tmp}, v{reg}", "    s_nop 1", f"    {sw} v{reg}, v{tmp}", "    s_nop 1",
                  f"    {op} v{reg}, v{reg}, v{tmp}"]
        return L

    def tr():
        if stamp == 2:
            e("    s_waitcnt lgkmcnt(0)")
            e(f"    v_writelane_b32 v{vTr}, s60, m0")
            e("    s_add_u32 m0, m0, 1")
            e("    s_memrealtime s[60:61]")

    def fin_a(S):
        e(f"    v_mov_b32_dpp v{vT}, v{S} quad_perm:[0,0,0,0] {DPP}")
        e(f"    v_mov_b32_dpp v{vT2}, v{S+2} quad_perm:[2,2,2,2] {DPP}")

    def fin_b(S, off):
        e(f"    v_add_f32_dpp v{vT}, v{S+1}, v{vT} quad_perm:[1,1,1,1] {DPP}")
        e(f"    v_add_f32_dpp v{vT2}, v{S+3}, v{vT2} quad_perm:[3,3,3,3] {DPP}")
        e(f"    v_add_f32 v{vT}, v{vT}, v{vT2}")
        e(f"    v_max_f32 v{vM}, v{vM}, v{vT}")
        e(f"    ds_write_b32 v{vLd}, v{vT} offset:{off}")

    def pk_b1():
        e(f"    v_cvt_pk_bf16_f32 v{vPk}, v{vP}, v{vP}")
        e(f"    v_add_f32 v{vL}, v{vL}, v{vP}")
        e(f"    v_and_b32 v{vB1}, v{vPk}, v{vMask}")
        e(f"    v_and_b32 v{vB1+1}, v{vPk}, v{vMask+1}")
        e(f"    v_and_b32_dpp v{vB1+2}, v{vPk}, v{vMask+2} row_ror:4 {DPP}")
        e(f"    v_and_b32_dpp v{vB1+3}, v{vPk}, v{vMask+3} row_ror:4 {DPP}")

    def b2():
        e(f"    v_and_b32_dpp v{vB2}, v{vPk}, v{vMask} row_ror:12 {DPP}")
        e(f"    v_and_b32_dpp v{vB2+1}, v{vPk}, v{vMask+1} row_ror:12 {DPP}")
        e(f"    v_and_b32 v{vB2+2}, v{vPk}, v{vMask+2}")
        e(f"    v_and_b32 v{vB2+3}, v{vPk}, v{vMask+3}")

    def pv(i):
        u = i % 4
        A = vA0 if u % 2 == 0 else vA1
        Pm = vB1 if u < 2 else vB2
        e(f"    v_mfma_f32_16x16x32_bf16 {r(A,4)}, {r(Pm,4)}, {r(vR+4*i,4)}, {r(A,4)}")

    def vwork(i, drain):
        g, u = divmod(i, 4)
        last = drain and g == gpi - 1
        if u == 0:
            b2()
        if u == 1 and not last:
            e(f"    v_fma_f32 v{vP}, v{vSc+((g+1)&1)}, s{sC}, -v{vMt}")
            e(f"    v_exp_f32 v{vP}, v{vP}")
            if g % 2 == 0 and not (drain and g == gpi - 2):
                e(f"    ds_read2_b32 {r(vSc,2)}, v{vLd} offset0:{16*(g+2)} offset1:{16*(g+3)}")
        if u == 2 and not last:
            pk_b1()

    quad = [0, 2, 1, 3]
    pstamp()
    for j in range(NI, NR):
        need = j - NI
        e(f"    s_waitcnt vmcnt({NI-1+(nsmall if need < nk0 else 0)})")
        load(j)
    e(f"    v_bfe_u32 v{vT2}, v0, 2, 2")
    e(f"    s_waitcnt vmcnt({NR-nk0+nsmall-4})")
    pstamp()
    for u in range(4):
        e(f"    v_cmp_eq_u32 vcc, {quad[u]}, v{vT2}")
        if u == 0:
            e(f"    v_lshlrev_b32 v{vP}, 16, v{vA0}")
            e(f"    v_lshlrev_b32 v{vPk}, 16, v{vA0+1}")
        elif u == 1:
            e(f"    v_mul_f32 v{vTt}, v{vP}, v{vPk}")
            e(f"    v_and_b32 v{vP}, 0xffff0000, v{vA0}")
        elif u == 2:
            e(f"    v_and_b32 v{vPk}, 0xffff0000, v{vA0+1}")
            e(f"    v_fmac_f32 v{vTt}, v{vP}, v{vPk}")
        else:
            e(f"    v_add_f32_dpp v{vTt}, v{vTt}, v{vTt} row_ror:1 {DPP}")
            e(f"    v_lshlrev_b32 v{vA0}, 16, v{vX}")
        for i in range(4):
            e(f"    v_cndmask_b32 v{vQ+4*u+i}, 0, v{vS+i}, vcc")
    e(f"    v_add_f32_dpp v{vTt}, v{vTt}, v{vTt} row_ror:2 {DPP}")
    e(f"    v_and_b32 v{vA0+1}, 0xffff0000, v{vX}")
    e(f"    v_lshlrev_b32 v{vA0+2}, 16, v{vX+1}")
    e(f"    v_add_f32_dpp v{vTt}, v{vTt}, v{vTt} row_ror:4 {DPP}")
    e(f"    v_and_b32 v{vA0+3}, 0xffff0000, v{vX+1}")
    e("    s_nop 0")
    e(f"    v_add_f32_dpp v{vTt}, v{vTt}, v{vTt} row_ror:8 {DPP}")
    for x in xrow(vTt, vT, "v_add_f32"):
        e(x)
    e(f"    v_fma_f32 v{vTt}, v{vTt}, s{sC}, v{vL}")
    e(f"    s_waitcnt vmcnt({min(NR-1, NR-nk0+nsmall-5) if nk0 == 0 else NR-nk0+nsmall-5})")
    e(f"    v_not_b32 v{vMn}, v{vMs}")
    pstamp()
    if stamp == 2:
        e(f"    v_mov_b32 v{vTr}, 0")
        e("    s_mov_b32 m0, 0")
        e("    s_memrealtime s[60:61]")
    if stamp == 3:
        e(f"    v_mov_b32 v{vTr}, 0")
        e("    s_waitcnt lgkmcnt(0)")
        for k in range(pst[0]):
            e(f"    v_writelane_b32 v{vTr}, s{68+2*k}, {k}")

    def wcount(i, Wn):
        if not vm:
            return Wn - 1
        n = Wn - 1 + (1 if mp < i < mp + Wn else 0)
        if i == 29:
            n = min(n, 29 - mp - 1)
        return n

    def kbody(c):
        e(f"L_k{c}:                                          ; K iteration, {Ws[c]} loads in flight")
        tr()
        for i in range(NR):
            g, u = divmod(i, 4)
            S = vS + 4 * (g & 1)
            Sp = vS + 4 * ((g + 1) & 1)
            cc = "0" if u == 0 else r(S, 4)
            e(f"    v_mfma_f32_16x16x32_bf16 {r(S,4)}, {r(vR+4*i,4)}, {r(vQ+4*u,4)}, {cc}")
            e(f"    s_waitcnt vmcnt({wcount(i, Ws[c])})" + (" lgkmcnt(0)" if i == 29 and not vm else ""))
            load(i)
            control(i, f"k{c}")
            if u == 1:
                fin_a(Sp)
            if u == 2:
                fin_b(Sp, 64 * g)
        endit("k")

    def vbody(c):
        e(f"L_v{c}:                                          ; V iteration, {Ws[c]} loads in flight")
        tr()
        for i in range(NR):
            pv(i)
            e(f"    s_waitcnt vmcnt({wcount(i, Ws[c])})" + (" lgkmcnt(0)" if i % 8 == 5 else ""))
            load(i)
            control(i, f"v{c}")
            vwork(i, False)
        endit("v")

    def put_stubs():
        for tag, k in stubs:
            e(f"L_pub_{tag}_{k}:")
            e(f"    s_mov_b64 exec, s[{sEx}:{sEx+1}]")
            op = ("global_store_byte", "global_store_short", "global_store_dword")[k]
            e(f"    {op} v{vMad}, v{vMn}, s[{sMb}:{sMb+1}]")
            e("    s_mov_b64 exec, -1")
            e(f"    s_add_u32 s{sCell[k]}, s{sCell[k]}, 32")
            if k == len(offs) - 1:
                e(f"    s_lshl_b64 s[{sEx}:{sEx+1}], s[{sEx}:{sEx+1}], 32")
            e(f"    s_branch L_pubx_{tag}_{k}")
        stubs.clear()

    korder = [1, 0] + list(range(2, NC))
    for c in korder:
        kbody(c)
        put_stubs()
    e("L_kev:")
    e(f"    s_cmp_eq_u32 s{sJ}, {iters}")
    e("    s_cbranch_scc1 L_kdone")
    e(f"    s_mov_b32 s{sR}, s{sVp}")
    e(f"    s_mov_b32 s{sR+1}, s{sVp+1}")
    reset_off()
    e(f"    v_mov_b32 v{vOff}, v{vVoff}")
    e(f"    s_mov_b32 s{sEv}, {iters}")
    if kvb > 0:
        e(f"    s_max_u32 s{sIx}, s{sIx}, {kvb}")
    dispatch("k", list(range(NC)))
    e("L_kdone:")
    Sl = vS + 4 * ((gpi - 1) & 1)
    e(f"    v_and_b32 v{vPk}, 60, v0")
    e(f"    ds_read2_b32 {r(vSc,2)}, v{vPk} offset0:16 offset1:32")
    fin_a(Sl)
    e(f"    s_mov_b32 s{sEv}, {2*iters-1-(1 if ramp else 0)}")
    fin_b(Sl, 0)
    e(f"    v_add_u32 v{vLd}, 64, v{vPk}                 ; group 0")
    e(f"    v_max_f32_dpp v{vM}, v{vM}, v{vM} row_ror:4 {DPP}")
    e("    s_nop 1")
    e(f"    v_max_f32_dpp v{vM}, v{vM}, v{vM} row_ror:8 {DPP}")
    for x in xrow(vM, vT, "v_max_f32"):
        e(x)
    e(f"    v_mul_f32 v{vMt}, s{sC}, v{vM}")
    e(f"    v_max_f32 v{vMt}, v{vMt}, v{vTt}")
    e(f"    v_and_b32 v{vMt}, -2, v{vMt}")
    e("    s_waitcnt lgkmcnt(0)")
    e(f"    v_fma_f32 v{vP}, v{vSc}, s{sC}, -v{vMt}")
    e(f"    v_sub_f32 v{vTt}, v{vTt}, v{vMt}")
    e(f"    v_exp_f32 v{vTt}, v{vTt}")
    e(f"    v_exp_f32 v{vP}, v{vP}")
    e(f"    v_mul_f32 v{vL}, 0x3d800000, v{vTt}")
    pk_b1()
    for i in range(4):
        e(f"    v_mul_f32 v{vA0+i}, v{vA0+i}, v{vTt}")
    dispatch("v", list(range(NC)))
    for c in range(NC):
        vbody(c)
        put_stubs()

    vMa = vQ
    vMb = vR + 32
    vOwn = vQ + 12

    def check(d):
        for k, a in enumerate((vM1, vM2, vM3)):
            e(f"    global_load_dwordx4 {r(d+4*k,4)}, v{a}, s[{sWs}:{sWs+1}] sc1")

    def valid(d, target):
        e(f"    v_bitop3_b32 v{vT}, 1, v{d+1}, v{vSn+1} bitop3:0x60")
        for k in range(1, 6):
            e(f"    v_bitop3_b32 v{vT}, v{vT}, v{d+1+2*k}, v{vSn+1+2*k} bitop3:0x60")
        e(f"    v_cmp_eq_u32 vcc, 0, v{vT}")
        e(f"    s_cbranch_vccz {target}")

    def finish(d):
        P = [vOwn, d, d + 4, d + 8]
        Wt = vA0
        T = vR
        if stamp == 5:
            e("    s_memrealtime s[70:71]")
        for k in range(3):
            e(f"    v_and_b32 v{d+1+4*k}, -2, v{d+1+4*k}")
        e(f"    v_max3_f32 v{vM}, v{vMt}, v{d+1}, v{d+5}")
        e(f"    v_max_f32 v{vM}, v{vM}, v{d+9}")
        for k in range(4):
            e(f"    v_sub_f32 v{Wt+k}, v{vMt if k == 0 else P[k]+1}, v{vM}")
        for k in range(4):
            e(f"    v_exp_f32 v{Wt+k}, v{Wt+k}")
        for k in range(4):
            e(f"    v_and_b32 v{P[k]+3}, -2, v{P[k]+3}")
        for k in range(4):
            sel = "op_sel_hi:[1,0]" if k % 2 == 0 else "op_sel:[0,1] op_sel_hi:[1,1]"
            e(f"    v_pk_mul_f32 {r(T+2*k,2)}, {r(P[k]+2,2)}, {r(Wt+(k&2),2)} {sel}")
        e(f"    v_pk_add_f32 {r(T,2)}, {r(T,2)}, {r(T+2,2)}")
        e(f"    v_pk_add_f32 {r(T+4,2)}, {r(T+4,2)}, {r(T+6,2)}")
        e(f"    v_pk_add_f32 {r(T,2)}, {r(T,2)}, {r(T+4,2)}")
        e(f"    v_rcp_f32 v{vL}, v{T+1}")
        for k in range(4):
            e(f"    v_mul_f32 v{T+8+k}, v{Wt+k}, v{P[k]}")
        e(f"    v_add_f32 v{T+8}, v{T+8}, v{T+9}")
        e(f"    v_add_f32 v{T+10}, v{T+10}, v{T+11}")
        e(f"    v_mul_f32 v{T}, v{T}, v{vL}")
        e(f"    v_add_f32 v{T+8}, v{T+8}, v{T+10}")
        e(f"    v_mul_f32 v{T+8}, v{T+8}, v{vL}")
        e(f"    v_cvt_pk_bf16_f32 v{T}, v{T+8}, v{T}")
        e(f"    global_store_dword v{vOo}, v{T}, s[{sOutp}:{sOutp+1}]")
        if stamp == 5:
            e("    s_memrealtime s[72:73]")
        if stamp:
            e("    s_waitcnt vmcnt(0)")
            e("    s_branch L_st")
        else:
            e("    s_endpgm")

    e("L_vev:")
    if ramp:
        w0, w1, st0 = [int(x) for x in ramp.split(".")]
        tr()
        for i in range(NR):
            pv(i)
            wn = w0 if i < st0 else min(w1, int(round(w0 + (w1 - w0) * (i - st0 + 1) / (NR - st0))))
            e(f"    s_waitcnt vmcnt({wn-1})" + (" lgkmcnt(0)" if i % 8 == 5 else ""))
            load(i)
            vwork(i, False)
        e(f"    v_add_u32 v{vLd}, {64*gpi}, v{vLd}")
    e(f"    v_not_b32 v{vSn+13}, v{vSn+13}")
    e(f"    v_not_b32 v{vSn+15}, v{vSn+15}")
    e(f"    v_and_or_b32 v{vOwn+1}, v{vSn+13}, 1, v{vMt}")
    tr()
    if ck1 == 0:
        check(vMa)
    for i in range(NR):
        g, u = divmod(i, 4)
        last = g == gpi - 1
        e(f"    s_waitcnt vmcnt({NR-1-i+(3 if i >= ck1 else 0)})" + (" lgkmcnt(0)" if i % 8 == 5 and not last else ""))
        pv(i)
        if i == ck1 - 1:
            check(vMa)
        vwork(i, True)
        if g == gpi - 2 and u == 3:
            e(f"    v_add_f32_dpp v{vL}, v{vL}, v{vL} row_ror:4 {DPP}")
            e("    s_nop 1")
            e(f"    v_add_f32_dpp v{vL}, v{vL}, v{vL} row_ror:8 {DPP}")
        if last and u == 0:
            for x in xrow(vL, vT, "v_add_f32")[:5]:
                e(x)
        if last and u == 1:
            for x in xrow(vL, vT, "v_add_f32")[5:]:
                e(x)
            e(f"    v_and_b32 v{vL}, -2, v{vL}")
            e(f"    v_and_or_b32 v{vOwn+3}, v{vSn+15}, 1, v{vL}")
    if stamp:
        e(f"    s_memrealtime s[{sSt+2}:{sSt+3}]")
    if dpoll:
        check(vMb)
        e(f"    s_mov_b32 s{sJ}, {NP}")
        e("    s_nop 1")
    else:
        e(f"    s_mov_b32 s{sJ}, {NP}")
        e("    s_nop 4")
    e(f"    v_permlane32_swap_b32 v{vA0}, v{vA0+2}")
    e(f"    v_permlane32_swap_b32 v{vA0+1}, v{vA0+3}")
    e(f"    v_permlane32_swap_b32 v{vA1}, v{vA1+2}")
    e(f"    v_permlane32_swap_b32 v{vA1+1}, v{vA1+3}")
    e("    s_nop 0")
    e(f"    v_add_f32 v{vOwn}, v{vA0}, v{vA1+2}")
    e(f"    v_add_f32 v{vOwn+2}, v{vA0+1}, v{vA1+3}")
    e(f"    global_store_dwordx4 v{vSl}, {r(vOwn,4)}, s[{sWs}:{sWs+1}]")
    if stamp == 5:
        e("    s_memrealtime s[68:69]")
    if dpoll:
        e("    s_waitcnt vmcnt(4)")
        valid(vMa, "L_fin")
        check(vMa)
        e("    s_waitcnt vmcnt(4)")
        e("L_poll:")
        valid(vMb, "L_finb")
        check(vMb)
        e("    s_waitcnt vmcnt(3)")
        valid(vMa, "L_fin")
        check(vMa)
        e(f"    s_sub_u32 s{sJ}, s{sJ}, 1")
        e("    s_waitcnt vmcnt(3)")
        e("    s_cbranch_scc0 L_poll")
    else:
        e("    s_waitcnt vmcnt(1)")
        e("L_poll:")
        valid(vMa, "L_fin")
        check(vMa)
        e(f"    s_sub_u32 s{sJ}, s{sJ}, 1")
        e("    s_waitcnt vmcnt(0)")
        e("    s_cbranch_scc0 L_poll")
    e(f"    s_add_u32 s{sWs}, s{sWs}, 0x80000")
    e(f"    s_addc_u32 s{sWs+1}, s{sWs+1}, 0")
    e(f"    global_store_dwordx4 v{vSl}, {r(vOwn,4)}, s[{sWs}:{sWs+1}] sc1")
    e(f"    s_lshl_b32 s{sTmp}, s{sHead}, 2")
    e(f"    v_mov_b32 v{vX}, s{sTmp}")
    e(f"    v_mov_b32 v{vX+1}, 1")
    e("    s_mov_b64 exec, 1")
    e("    s_waitcnt vmcnt(0)")
    e(f"    global_atomic_add v{vT}, v{vX}, v{vX+1}, s[{sDbg}:{sDbg+1}] sc0")
    e("    s_waitcnt vmcnt(0)")
    e(f"    v_readfirstlane_b32 s{sTmp}, v{vT}")
    e("    s_mov_b64 exec, -1")
    e(f"    s_cmp_lg_u32 s{sTmp}, 3")
    e(f"    s_cbranch_scc1 {'L_st' if stamp else 'L_end'}")
    check(vMa)
    e("    s_waitcnt vmcnt(0)")
    e("L_fin:")
    finish(vMa)
    if dpoll:
        e("L_finb:")
        finish(vMb)
    if stamp:
        e("L_st:")
        e(f"    s_memrealtime s[{sSt+4}:{sSt+5}]")
        e(f"    s_load_dwordx2 s[{sWs}:{sWs+1}], s[0:1], 64")
        e(f"    s_mov_b32 s{sSt+7}, s63")
        e(f"    s_getreg_b32 s{sSt+6}, hwreg(HW_REG_XCC_ID, 0, 4)")
        e(f"    s_getreg_b32 s{sTmp+1}, hwreg(HW_REG_HW_ID, 0, 24)")
        e(f"    s_lshl_b32 s{sTmp+1}, s{sTmp+1}, 8")
        e(f"    s_or_b32 s{sSt+6}, s{sSt+6}, s{sTmp+1}")
        e("    s_waitcnt vmcnt(0) lgkmcnt(0)")
        e(f"    s_lshl_b32 s{sTmp+2}, s2, 5")
        e(f"    s_add_u32 s{sTmp+2}, s{sTmp+2}, 0x1000000")
        e(f"    v_mov_b32 v{vP}, s{sTmp+2}")
        for i in range(8):
            e(f"    v_mov_b32 v{vQ+i}, s{sSt+i}")
        e("    s_mov_b64 exec, 1")
        e(f"    global_store_dwordx4 v{vP}, {r(vQ,4)}, s[{sWs}:{sWs+1}]")
        e(f"    global_store_dwordx4 v{vP}, {r(vQ+4,4)}, s[{sWs}:{sWs+1}] offset:16")
        e("    s_mov_b64 exec, -1")
        if stamp == 5:
            for k in range(3):
                e(f"    v_writelane_b32 v{vTr}, s{68+2*k}, {k}")
        if stamp in (2, 3, 5):
            e(f"    s_lshl_b32 s{sTmp+2}, s2, 8")
            e(f"    s_add_u32 s{sTmp+2}, s{sTmp+2}, 0x2000000")
            e(f"    v_lshlrev_b32 v{vP}, 2, v0")
            e(f"    v_add_u32 v{vP}, s{sTmp+2}, v{vP}")
            e(f"    global_store_dword v{vP}, v{vTr}, s[{sWs}:{sWs+1}]")
    e("L_end:")
    e("    s_endpgm")
    if pfs:
        e(f"    .fill {2048 << pfs}, 4, 0xbf810000          ; keeps the code prefetch inside .text")
    e('.section .rodata,"a"')
    e(".p2align 6")
    e(f".amdhsa_kernel {NAME}_kernel")
    e(f"  .amdhsa_next_free_vgpr {nv}")
    e(f"  .amdhsa_next_free_sgpr {nsg}")
    e(f"  .amdhsa_accum_offset {(nv+3)//4*4}")
    e("  .amdhsa_group_segment_fixed_size 0")
    e("  .amdhsa_kernarg_size 72")
    e("  .amdhsa_user_sgpr_count 2")
    e("  .amdhsa_user_sgpr_kernarg_segment_ptr 1")
    e("  .amdhsa_system_sgpr_workgroup_id_x 1")
    e("  .amdhsa_float_denorm_mode_32 3")
    e(".end_amdhsa_kernel")
    if stamp == 2:
        e(f"; meta waves={NWG} iters={2*iters} every=1 bytes={1 << 29}")
    return "\n".join(o) + "\n"


if __name__ == "__main__":
    for spec in sys.argv[1:]:
        name, _, kv = spec.partition(":")
        kw = {}
        for p in kv.split(","):
            if p:
                k, v = p.split("=")
                kw[k] = v.replace("+", " ") if k in ("fl", "map", "W", "duty", "xr", "offs", "inc", "mfl", "ramp") else int(v, 0)
        path = f"cdna_kernels/{NAME}.s" if name == "main" else f"var/{name}.s"
        open(path, "w").write(gen(**kw))
```

```python
import math, struct, sys
from gen1 import NAME, HEADER, f2u


def gen(W="20.21.22.24", duty="80808080", offs="0.20", inc="0.1.9", mp=5, mstr=4, mfl="glc",
        fl="nt", stamp=0, nk0=4, NI=28, pfs=1, ck1=28, kvb=2, NP=16, dpoll=0, vm=1, ramp="", gx=0, gth=8, ginc=1, glen=0, gd=2, g0=0, free=0, diag=0, pre=1, pfo=1024, otl=0, gneg=0, k0=1, refm=13,
        map="w3n9n4r0n1n2n3n0w4n5n6n7n8r1w1w2w7w5w6w0", xr="14w5", cmt=0):
    Ws = [int(x) for x in W.split(".")]
    NC = len(Ws)
    offs = [int(x) for x in offs.split(".")]
    inc = [int(x) for x in inc.split(".")]
    assert len(inc) == len(offs) + 1 and len(offs) <= 3 and offs == sorted(offs)
    NR, NWG, iters, gpi, ngrp = 32, 256, 32, 8, 256
    lds = (ngrp + 3) * 64
    toks = [map[i:i+2] for i in range(0, len(map), 2)]
    if len(toks) in (10, 16):
        toks = toks[:9] + ["n6", "n7", "n8", "n9"] + toks[9:]
    if len(toks) == 14:
        toks += [f"w{i}" for i in range(8) if f"w{i}" not in toks]
    pos = {t: 8 + i for i, t in enumerate(toks)}
    assert sorted(pos) == sorted(["r0", "r1"] + [f"w{i}" for i in range(8)] + [f"n{i}" for i in range(10)])
    assert free or all(t[0] == "w" for t in toks[14:])
    spl = [t for t in toks[:14] if t[0] == "w"]
    hdt = toks[14:]
    adr = spl
    if free:
        adr = [t for t in toks if t[0] == "w"]
        spl = ["w3", "w4"]
        hdt = ["w0", "w1", "w2", "w5", "w6", "w7"]
    hi = [pos[f"n{i}"] for i in range(5, 10)]
    himask = sum(1 << b for b in hi)
    xrs = [(int(t.split("w")[0]), int(t.split("w")[1])) for t in xr.split(".") if t]
    xrmask = sum(1 << p for p, _ in xrs)
    assert all(toks[p - 8][0] == "n" for p, _ in xrs)
    scatter = hi != sorted(hi)
    contiguous = hi == list(range(hi[0], hi[0] + 5)) and not xrs
    immm = 0xfff & ~xrmask

    def lowoff(n):
        return sum(((n >> i) & 1) << pos[f"n{i}"] for i in range(5))
    o = []
    e = o.append

    vOff, vVoff, vM1 = 1, 2, 3
    vTt, vT, vT2, vP, vPk, vL, vM, vMt = 4, 5, 6, 7, 8, 9, 10, 11
    vMask = 12
    vS = 16
    vB1, vB2 = 16, 20
    vA0, vA1 = 24, 28
    vQ = 32
    vSc = 48
    vM2, vM3 = 50, 51
    vSl, vOo = 52, 53
    vX = 54
    vSn = 56
    vLd, vMad, vMs, vMn = 72, 73, 74, 75
    vGad, vGs, vGn, vG = 76, 77, 78, 79
    vK = [[80, 81, 82], [83, 84, 85]]
    vR = 88
    nv = vR + 4 * NR
    vTr = nv
    if stamp in (2, 3, 5):
        nv += 1
    sR = 8
    sT2, sNx, sXr, sSp = 12, 13, 14, 15
    sOff, sHi, sC, sHead, sSplit, sJ, sIx, sMk = 16, 17, 18, 19, 20, 21, 22, 23
    sQp, sKp, sVp, sKtp, sVtp, sMp, sOutp, sDbg, sWs = 24, 26, 28, 30, 32, 34, 36, 38, 40
    sTmp = 42
    sMaskv, sAcc, sDuty, sMo = 48, 49, 50, 51
    sSt = 52
    sEx = 4
    sCell = [3, 6, 7]
    sMb = 64
    sEv = 66
    sGb, sGr, sGw = 94, 96, 97
    nsg = 100 if (stamp in (3, 5) or gx) else 68
    glen = glen or gx
    pst = [0]

    def pstamp():
        if stamp == 3:
            e(f"    s_memrealtime s[{68+2*pst[0]}:{69+2*pst[0]}]")
            pst[0] += 1

    def r(b, n):
        return f"v[{b}:{b+n-1}]"
    DPP = "row_mask:0xf bank_mask:0xf"

    def gather(dst, items, tmp):
        runs = []
        for wb, db in sorted(items):
            if runs and runs[-1][0] + runs[-1][2] == wb and runs[-1][1] + runs[-1][2] == db:
                runs[-1][2] += 1
            else:
                runs.append([wb, db, 1])
        for k, (wb, db, n) in enumerate(runs):
            t = dst if k == 0 else tmp
            e(f"    s_bfe_u32 s{t}, s2, {hex((n << 16) | wb)}")
            if db:
                e(f"    s_lshl_b32 s{t}, s{t}, {db}")
            if k:
                e(f"    s_xor_b32 s{dst}, s{dst}, s{t}")

    e(HEADER.rstrip())
    e(f"; @launch grid=({NWG},1,1) block=(64,1,1) lds={lds}")
    if cmt:
        e(open("notes.txt").read().rstrip())
    e('.amdgcn_target "amdgcn-amd-amdhsa--gfx950"')
    e(".text")
    e(f".globl {NAME}_kernel")
    e(".p2align 8")
    e(f".type {NAME}_kernel,@function")
    e(f"{NAME}_kernel:")
    if stamp:
        e(f"    s_memrealtime s[{sSt}:{sSt+1}]")
    e(f"    s_load_dwordx16 s[{sQp}:{sQp+15}], s[0:1], 0")
    e(f"    s_load_dwordx2 s[{sWs}:{sWs+1}], s[0:1], 64")
    e(f"    s_cmp_ge_u32 s2, {NWG}")
    e("    s_cbranch_scc1 L_end")
    e("    ; head index, byte offset of this split inside a head, order mask")
    gather(sHead, [(int(t[1]), i) for i, t in enumerate(hdt)], sTmp)
    gather(sSp, [(int(t[1]), pos[t]) for t in adr], sTmp)
    if xrs:
        gather(sXr, [(w, p) for p, w in xrs], sTmp)
    e(f"    v_lshrrev_b32 v{vT}, 4, v0")
    e(f"    v_lshlrev_b32 v{vT}, 6, v{vT}")
    e(f"    v_and_b32 v{vT2}, 3, v0")
    e(f"    v_lshl_add_u32 v{vT}, v{vT2}, 4, v{vT}")
    if pos["r1"] == pos["r0"] + 1:
        e(f"    v_bfe_u32 v{vT2}, v0, 2, 2")
        e(f"    v_lshl_add_u32 v{vOff}, v{vT2}, {pos['r0']}, v{vT}")
    else:
        e(f"    v_bfe_u32 v{vT2}, v0, 2, 1")
        e(f"    v_lshl_add_u32 v{vOff}, v{vT2}, {pos['r0']}, v{vT}")
        e(f"    v_bfe_u32 v{vT2}, v0, 3, 1")
        e(f"    v_lshl_add_u32 v{vOff}, v{vT2}, {pos['r1']}, v{vOff}")
    e(f"    v_add_u32 v{vOff}, s{sSp}, v{vOff}")
    e(f"    s_lshl_b32 s{sTmp}, s{sHead}, 22" if not free else f"    s_mov_b32 s{sTmp}, 0")

    def reset_off():
        e(f"    s_mov_b32 s{sOff}, {'s%d' % sXr if xrs else 0}")
        if not contiguous:
            e(f"    s_mov_b32 s{sHi}, 0")
    reset_off()
    e(f"    s_mov_b32 s{sR+2}, {hex(1 << 28) if free else '0x400000'}")
    e(f"    s_mov_b32 s{sR+3}, 0x20000")
    gather(sSplit, [(int(t[1]), i) for i, t in enumerate(spl)], sTmp + 1)
    e(f"    s_lshl_b32 s{sTmp+1}, s{sSplit}, 10")
    e(f"    s_lshl_b32 s{sTmp+2}, s{sHead}, 8")
    e(f"    s_lshl_b32 s{sTmp+3}, s{sHead}, 12")
    e(f"    v_lshlrev_b32 v{vPk}, 2, v0")
    e(f"    v_lshlrev_b32 v{vSl}, 4, v0")
    e(f"    v_and_b32 v{vVoff}, 0xf0, v{vSl}")
    e(f"    v_bfe_u32 v{vP}, v0, 4, 1")
    e(f"    v_lshl_add_u32 v{vP}, v{vP}, 3, v{vVoff}       ; v_tree offset: (l&15)*16 + ((l>>4)&1)*8")
    e(f"    v_add_u32 v{vSl}, s{sTmp+1}, v{vSl}")
    e("    s_waitcnt lgkmcnt(0)")
    pstamp()
    e(f"    s_add_u32 s{sR}, s{sKp}, s{sTmp}")
    e(f"    s_addc_u32 s{sR+1}, s{sKp+1}, 0")

    def load(i):
        lo = lowoff(i)
        e(f"    buffer_load_dwordx4 {r(vR+4*i,4)}, v{vOff}, s[{sR}:{sR+3}], s{sOff} offen offset:{lo & immm} {fl}")
        cur = lo & ~immm
        if i < NR - 1:
            d = cur ^ (lowoff(i + 1) & ~immm)
            if d:
                e(f"    s_xor_b32 s{sOff}, s{sOff}, {hex(d)}")
            elif i % 4 == 3:
                e("    s_nop 0")
            if scatter and 8 <= i < 14:
                k = i - 8
                if k == 0:
                    e(f"    s_add_u32 s{sHi}, s{sHi}, 1")
                    e(f"    s_mov_b32 s{sNx}, {'s%d' % sXr if xrs else 0}")
                else:
                    e(f"    s_bfe_u32 s{sT2}, s{sHi}, {hex((1 << 16) | (k - 1))}")
                    e(f"    s_lshl_b32 s{sT2}, s{sT2}, {hi[k-1]}")
                    e(f"    s_xor_b32 s{sNx}, s{sNx}, s{sT2}")
            if not scatter and not contiguous and i == 11:
                e(f"    s_or_b32 s{sHi}, s{sHi}, {hex(~himask & 0xffffffff)}")
                e(f"    s_add_u32 s{sHi}, s{sHi}, 1")
                e(f"    s_and_b32 s{sHi}, s{sHi}, {hex(himask)}")
        elif contiguous:
            e(f"    s_add_u32 s{sOff}, s{sOff}, {hex(((1 << hi[0]) - cur) & 0xffffffff)}")
        elif scatter:
            e(f"    s_mov_b32 s{sOff}, s{sNx}")
        elif xrs:
            e(f"    s_xor_b32 s{sOff}, s{sHi}, s{sXr}")
        else:
            e(f"    s_mov_b32 s{sOff}, s{sHi}")

    for i in range(nk0):
        load(i)
    for p in (sQp, sKtp, sVtp):
        e(f"    s_add_u32 s{p}, s{p}, s{sTmp+2}")
        e(f"    s_addc_u32 s{p+1}, s{p+1}, 0")
    e(f"    s_load_dword s{sMaskv}, s[{sMp}:{sMp+1}], 0")
    e(f"    global_load_dwordx4 {r(vS,4)}, v{vT}, s[{sQp}:{sQp+1}]")
    e(f"    global_load_dword v{vA0}, v{vPk}, s[{sQp}:{sQp+1}]")
    e(f"    global_load_dword v{vA0+1}, v{vPk}, s[{sKtp}:{sKtp+1}]")
    e(f"    global_load_dwordx2 {r(vX,2)}, v{vP}, s[{sVtp}:{sVtp+1}]")
    e(f"    s_getreg_b32 s{sIx}, hwreg(HW_REG_XCC_ID, 0, 3)")
    e(f"    s_mul_i32 s{sT2}, s{sIx}, {max(4096, 64*mstr)+256}")
    e(f"    s_add_u32 s{sT2}, s{sT2}, 0x40000")
    e(f"    s_add_u32 s{sMb}, s{sWs}, s{sT2}")
    e(f"    s_addc_u32 s{sMb+1}, s{sWs+1}, 0")
    if gx:
        e(f"    s_add_u32 s{sGb}, s{sWs}, 0x100000")
        e(f"    s_addc_u32 s{sGb+1}, s{sWs+1}, 0")
    e(f"    v_lshlrev_b32 v{vMad}, {int(math.log2(mstr))}, v0")
    e(f"    s_add_u32 s{sWs}, s{sWs}, s{sTmp+3}")
    e(f"    s_addc_u32 s{sWs+1}, s{sWs+1}, 0")
    e(f"    global_load_dword v{vMs}, v{vMad}, s[{sMb}:{sMb+1}] sc1")
    e(f"    v_xor_b32 v{vM1}, 0x400, v{vSl}")
    e(f"    v_xor_b32 v{vM2}, 0x800, v{vSl}")
    e(f"    v_xor_b32 v{vM3}, 0xc00, v{vSl}")
    for k, a in enumerate((vM1, vM2, vM3, vSl)):
        e(f"    global_load_dwordx4 {r(vSn+4*k,4)}, v{a}, s[{sWs}:{sWs+1}] sc1")
    nsmall = 9
    e(f"    s_lshr_b32 s{sAcc}, s2, 3")
    if gx:
        e(f"    s_mul_i32 s{sGr}, s{sAcc}, {refm}")
        e(f"    s_add_u32 s{sGr}, s{sGr}, 5")
        e(f"    s_and_b32 s{sGr}, s{sGr}, 31")
        e(f"    s_lshl_b32 s{sT2}, 1, s{sGr}")
        e(f"    v_mul_u32_u24 v{vGad}, 4352, v0")
        e(f"    s_mov_b32 exec_lo, s{sT2}")
        e(f"    s_mov_b32 exec_hi, s{sT2}")
        e(f"    global_load_dword v{vGs}, v{vGad}, s[{sGb}:{sGb+1}] sc1")
        e("    s_mov_b64 exec, -1")
        nsmall += 1
    if pfs:
        e(f"    s_getpc_b64 s[{sTmp+4}:{sTmp+5}]")
        e("L_pc:")
        pfb = pfs if pfs >= 8 else 4 << pfs
        e(f"    s_mul_i32 s{sT2}, s{sAcc}, {64*pfb}")
        e(f"    v_mad_u32_u24 v{vMn}, v0, {pfb}, s{sT2}")
        e(f"    global_load_dword v{vSc}, v{vMn}, s[{sTmp+4}:{sTmp+5}] offset:{pfo}")
        nsmall += 1
    for i in range(nk0, NI):
        load(i)
    pstamp()
    e(f"    s_add_u32 s{sVp}, s{sVp}, s{sTmp}")
    e(f"    s_addc_u32 s{sVp+1}, s{sVp+1}, 0")
    e(f"    s_add_u32 s{sOutp}, s{sOutp}, s{sTmp+2}")
    e(f"    s_addc_u32 s{sOutp+1}, s{sOutp+1}, 0")
    e(f"    v_lshrrev_b32 v{vOo}, 5, v0")
    e(f"    v_lshl_add_u32 v{vOo}, v{vOo}, 2, v{vP}        ; output offset")
    e(f"    v_bfe_u32 v{vT}, v0, 4, 1")
    e(f"    v_lshl_add_u32 v{vVoff}, v{vT}, {pos['r0']}, v{vVoff}")
    e(f"    v_lshrrev_b32 v{vT}, 5, v0")
    e(f"    v_lshl_add_u32 v{vVoff}, v{vT}, {pos['r1']}, v{vVoff}")
    e(f"    v_add_u32 v{vVoff}, s{sSp}, v{vVoff}")
    c = (128 ** -0.5) * math.log2(math.e)
    e(f"    s_mov_b32 s{sC}, {hex(f2u(c))}")
    e(f"    v_mov_b32 v{vM}, 0xff800000")
    e(f"    v_and_b32 v{vLd}, 60, v0                      ; score slots: group*64 + (lane>>2)*4, slot 0 is a dummy")
    e(f"    v_and_b32 v{vT}, 1, v0")
    e(f"    v_lshlrev_b32 v{vT}, 4, v{vT}")
    e(f"    v_mov_b32 v{vPk}, 0xffff")
    e(f"    v_lshlrev_b32 v{vPk}, v{vT}, v{vPk}")
    e(f"    v_bfe_u32 v{vT}, v0, 1, 2")
    for i in range(4):
        e(f"    v_cmp_eq_u32 vcc, {i}, v{vT}")
        e(f"    v_mov_b32 v{vS+4+i}, 0xff800000          ; 'previous group' of group 0")
        e(f"    v_mov_b32 v{vA1+i}, 0")
        e(f"    v_cndmask_b32 v{vMask+i}, 0, v{vPk}, vcc")
    e(f"    s_lshr_b32 s{sTmp}, s{sHead}, 5")
    e(f"    s_lshl_b32 s{sTmp}, s{sTmp}, 4")
    e("    s_waitcnt lgkmcnt(0)")
    e(f"    s_lshr_b32 s{sMaskv}, s{sMaskv}, s{sTmp}")
    e(f"    s_lshl_b32 s{sMaskv}, s{sMaskv}, 16")
    e(f"    v_sub_f32 v{vL}, s{sMaskv}, 1.0               ; mask - 1")
    e(f"    v_mul_f32 v{vL}, {hex(f2u(1e9*math.log2(math.e)))}, v{vL}   ; (1-mask)*-1e9*log2(e)")
    e(f"    s_cmp_eq_u32 s{sSplit}, 0")
    e(f"    s_cselect_b32 s{sTmp}, 0, 0xff800000")
    e(f"    v_add_f32 v{vL}, s{sTmp}, v{vL}")
    dv = [int(ch, 32) for ch in duty]
    if dv == dv[:2] * 4:
        e(f"    s_bitcmp1_b32 s{sIx}, 0")
        e(f"    s_cselect_b32 s{sDuty}, {dv[1]}, {dv[0]}")
    else:
        tab = sum(d << (5 * i) for i, d in enumerate(dv))
        e(f"    s_mov_b32 s{sTmp+2}, {hex(tab & 0xffffffff)}")
        e(f"    s_mov_b32 s{sTmp+3}, {hex(tab >> 32)}")
        e(f"    s_mul_i32 s{sTmp}, s{sIx}, 5")
        e(f"    s_lshr_b64 s[{sTmp+2}:{sTmp+3}], s[{sTmp+2}:{sTmp+3}], s{sTmp}")
        e(f"    s_and_b32 s{sDuty}, s{sTmp+2}, 31")
    e(f"    ; workgroup row r = wg>>3 publishes the markers of iterations ({refm}r+5)&31 and that + 32")
    e(f"    s_mul_i32 s{sTmp}, s{sAcc}, {refm}")
    e(f"    s_add_u32 s{sTmp}, s{sTmp}, 5")
    e(f"    s_and_b32 s{sTmp}, s{sTmp}, 31")
    e(f"    s_lshl_b64 s[{sEx}:{sEx+1}], 1, s{sTmp}")
    sites = []
    for k, of in enumerate(offs):
        d, st = divmod(mp + of, NR)
        e(f"    s_add_u32 s{sCell[k]}, s{sTmp}, {d}")
        sites.append((st, k))
    if gx:
        e(f"    s_lshr_b32 s{sTmp+1}, s{sGr}, {int(math.log2(gx))}")
        e(f"    s_mul_i32 s{sTmp+1}, s{sTmp+1}, 3")
        e(f"    s_xor_b32 s{sTmp+1}, s{sTmp+1}, s2")
        e(f"    s_and_b32 s{sTmp+2}, s{sGr}, {gx-1}")
        e(f"    s_cselect_b32 s{sGr}, 0x100, s{sGr}")
        e(f"    s_and_b32 s{sTmp+1}, s{sTmp+1}, 7")
        e(f"    s_cselect_b32 s{sGw}, 0x100, s{sGr}")
        if gneg:
            e(f"    s_cmp_eq_u32 s{sGr}, 0")
            e(f"    s_cselect_b32 s{sGr}, 32, s{sGr}")
        gdw = (mp - 1 + gth) // NR
        assert gdw in (0, -1)
        if gdw:
            e(f"    s_sub_u32 s{sGw}, s{sGw}, 1")
            e(f"    s_cselect_b32 s{sGw}, 31, s{sGw}")
    e(f"    s_and_b32 s{sAcc}, s{sAcc}, 15")
    e(f"    s_mov_b32 s{sJ}, 0")
    e(f"    s_mov_b32 s{sMo}, 0")
    e(f"    s_mov_b32 s{sEv}, {iters-1}")
    if stamp:
        e("    s_mov_b32 s63, 0")
    lvl = [0, 1, 2, 4][:len(inc)]
    inctab = sum(min(v, 15) << (8 * l) for v, l in zip(inc, lvl) if l < 4)
    stubs = []

    def control(i, tag):
        for st, k in sites:
            if st == i:
                e(f"    s_cmp_eq_u32 s{sJ}, s{sCell[k]}")
                e(f"    s_cbranch_scc1 L_pub_{tag}_{k}")
                e(f"L_pubx_{tag}_{k}:")
                stubs.append((tag, k))
        if gx:
            for nm, st, reg in (("gr", mp - 1, sGr), ("gw", (mp - 1 + gth) % NR, sGw), ("ge", 30, sGr)):
                if st == i:
                    e(f"    s_cmp_eq_u32 s{sJ}, s{reg}")
                    e(f"    s_cbranch_scc1 L_pub_{tag}_{nm}")
                    e(f"L_pubx_{tag}_{nm}:")
                    stubs.append((tag, nm))
        if i == mp and not vm:
            e(f"    s_load_dword s{sMk}, s[{sMb}:{sMb+1}], s{sMo} {mfl}")
        if i == mp and vm:
            e(f"    global_load_dword v{vX}, v{vMad}, s[{sMb}:{sMb+1}] sc1")
        if i == 29 and vm:
            e(f"    v_readlane_b32 s{sMk}, v{vX}, s{sJ}")
        if i == 27:
            e(f"    v_readlane_b32 s{sTmp}, v{vMs}, s{sJ}")
            e(f"    s_add_u32 s{sAcc}, s{sAcc}, s{sDuty}")
            e(f"    s_lshr_b32 s{sIx}, s{sAcc}, 4")
            e(f"    s_and_b32 s{sAcc}, s{sAcc}, 15")
        if i == 28 and not vm:
            e(f"    s_add_u32 s{sMo}, s{sMo}, {mstr}")
        if i == (30 if vm else 29):
            e(f"    s_xor_b32 s{sTmp}, s{sTmp}, s{sMk}")
            if gx:
                e(f"    s_bitcmp1_b32 s{sTmp}, 16")
                e(f"    s_cselect_b32 s{sTmp+1}, {0 if gneg else ginc}, {ginc if gneg else 0}")
                e(f"    s_add_u32 s{sIx}, s{sIx}, s{sTmp+1}")
                if stamp:
                    e(f"    s_bfe_u32 s{sTmp+1}, s{sTmp}, 0x10010")
                    e(f"    s_add_u32 s63, s63, s{sTmp+1}")
                e(f"    s_and_b32 s{sTmp}, s{sTmp}, 0xffff")
            e(f"    s_bcnt1_i32_b32 s{sTmp}, s{sTmp}")
            if len(offs) == 3:
                e(f"    s_cmp_gt_u32 s{sTmp}, 16")
                e(f"    s_cselect_b32 s{sIx}, {NC-1}, s{sIx}")
        if i == 30:
            e(f"    s_lshr_b32 s{sTmp}, {hex(inctab)}, s{sTmp}")
            e(f"    s_and_b32 s{sTmp}, s{sTmp}, 15")
            e(f"    s_add_u32 s{sIx}, s{sIx}, s{sTmp}")
            if stamp and not gx:
                e(f"    s_min_u32 s{sIx}, s{sIx}, {NC-1}")
                e(f"    s_add_u32 s63, s63, s{sIx}")

    def dispatch(ph, order):
        for c in order[:-1]:
            e(f"    s_cmp_{'ge' if c == NC-1 else 'eq'}_u32 s{sIx}, {c}")
            e(f"    s_cbranch_scc1 L_{ph}{c}")
        e(f"    s_branch L_{ph}{order[-1]}")

    def endit(ph):
        e(f"    v_add_u32 v{vLd}, {64*gpi}, v{vLd}")
        e(f"    s_add_u32 s{sJ}, s{sJ}, 1")
        e(f"    s_cmp_eq_u32 s{sJ}, s{sEv}")
        e(f"    s_cbranch_scc1 L_{ph}ev")
        dispatch(ph, [1, 2, 0] + list(range(3, NC)) if NC > 3 else list(range(NC)))

    def xrow(reg, tmp, op):
        L = []
        for sw in ("v_permlane16_swap_b32", "v_permlane32_swap_b32"):
            L += [f"    v_mov_b32 v{tmp}, v{reg}", "    s_nop 1", f"    {sw} v{reg}, v{tmp}", "    s_nop 1",
                  f"    {op} v{reg}, v{reg}, v{tmp}"]
        return L

    def tr():
        if stamp == 2:
            e("    s_waitcnt lgkmcnt(0)")
            e(f"    v_writelane_b32 v{vTr}, s60, m0")
            e("    s_add_u32 m0, m0, 1")
            e("    s_memrealtime s[60:61]")

    def fin_a(S):
        e(f"    v_mov_b32_dpp v{vT}, v{S} quad_perm:[0,0,0,0] {DPP}")
        e(f"    v_mov_b32_dpp v{vT2}, v{S+2} quad_perm:[2,2,2,2] {DPP}")

    def fin_b(S, off):
        e(f"    v_add_f32_dpp v{vT}, v{S+1}, v{vT} quad_perm:[1,1,1,1] {DPP}")
        e(f"    v_add_f32_dpp v{vT2}, v{S+3}, v{vT2} quad_perm:[3,3,3,3] {DPP}")
        e(f"    v_add_f32 v{vT}, v{vT}, v{vT2}")
        e(f"    v_max_f32 v{vM}, v{vM}, v{vT}")
        e(f"    ds_write_b32 v{vLd}, v{vT} offset:{off}")

    def qp(c):
        return f"quad_perm:[{c},{c},{c},{c}] {DPP}"

    def b1(g, vB1=vB1):
        k, c = vK[(g >> 2) & 1], g & 3
        e(f"    v_and_b32_dpp v{vB1}, v{k[0]}, v{vMask} {qp(c)}")
        e(f"    v_and_b32_dpp v{vB1+1}, v{k[0]}, v{vMask+1} {qp(c)}")
        e(f"    v_and_b32_dpp v{vB1+2}, v{k[1]}, v{vMask+2} {qp(c)}")
        e(f"    v_and_b32_dpp v{vB1+3}, v{k[1]}, v{vMask+3} {qp(c)}")

    def b2(g, vB2=vB2):
        k, c = vK[(g >> 2) & 1], g & 3
        e(f"    v_and_b32_dpp v{vB2}, v{k[2]}, v{vMask} {qp(c)}")
        e(f"    v_and_b32_dpp v{vB2+1}, v{k[2]}, v{vMask+1} {qp(c)}")
        e(f"    v_and_b32_dpp v{vB2+2}, v{k[0]}, v{vMask+2} {qp(c)}")
        e(f"    v_and_b32_dpp v{vB2+3}, v{k[0]}, v{vMask+3} {qp(c)}")

    def p_a():
        e(f"    v_fma_f32 v{vP}, v{vSc}, s{sC}, -v{vMt}")
        e(f"    v_exp_f32 v{vP}, v{vP}")

    def p_b(bt):
        e(f"    v_cvt_pk_bf16_f32 v{vK[bt][0]}, v{vP}, v{vP}")
        e(f"    v_add_f32 v{vL}, v{vL}, v{vP}")

    def p_c(bt):
        e(f"    v_mov_b32_dpp v{vK[bt][1]}, v{vK[bt][0]} row_ror:4 {DPP}")
        e(f"    v_mov_b32_dpp v{vK[bt][2]}, v{vK[bt][0]} row_ror:12 {DPP}")

    def pv(i, drain=False):
        u = i % 4
        A = vA0 if u % 2 == 0 else vA1
        Pm = vB1 if u < 2 else vB2
        if drain and pre and i >= 24:
            Pm = vR + 48 + 4 * ((i - 24) // 2)
        e(f"    v_mfma_f32_16x16x32_bf16 {r(A,4)}, {r(Pm,4)}, {r(vR+4*i,4)}, {r(A,4)}")

    def vwork(i, drain):
        g, u = divmod(i, 4)
        bt, j = divmod(i, 16)
        if drain and pre and i in (17, 19, 21, 23):
            k = (i - 17) // 2
            (b1, b2)[k & 1](6 + (k >> 1), vR + 48 + 4 * k)
        if u == 0 and not (drain and pre and g >= 6):
            b2(g)
        if u == 2 and not (drain and g >= (5 if pre else 7)):
            b1(g + 1)
        if drain and bt == 1:
            return
        if j == 1:
            p_a()
            if not drain:
                e(f"    ds_read_b32 v{vSc}, v{vLd} offset:{256*(bt+2)}")
        if j == 3:
            p_b(bt ^ 1)
        if j == 5:
            p_c(bt ^ 1)

    quad = [0, 2, 1, 3]
    pstamp()
    for j in range(NI, NR):
        need = j - NI
        e(f"    s_waitcnt vmcnt({NI-1+(nsmall if need < nk0 else 0)})")
        load(j)
    e(f"    v_bfe_u32 v{vT2}, v0, 2, 2")
    e(f"    s_waitcnt vmcnt({NR-nk0+nsmall-4})")
    pstamp()
    for u in range(4):
        e(f"    v_cmp_eq_u32 vcc, {quad[u]}, v{vT2}")
        if u == 0:
            e(f"    v_lshlrev_b32 v{vP}, 16, v{vA0}")
            e(f"    v_lshlrev_b32 v{vPk}, 16, v{vA0+1}")
        elif u == 1:
            e(f"    v_mul_f32 v{vTt}, v{vP}, v{vPk}")
            e(f"    v_and_b32 v{vP}, 0xffff0000, v{vA0}")
        elif u == 2:
            e(f"    v_and_b32 v{vPk}, 0xffff0000, v{vA0+1}")
            e(f"    v_fmac_f32 v{vTt}, v{vP}, v{vPk}")
        else:
            e(f"    v_add_f32_dpp v{vTt}, v{vTt}, v{vTt} row_ror:1 {DPP}")
            e(f"    v_lshlrev_b32 v{vA0}, 16, v{vX}")
        for i in range(4):
            e(f"    v_cndmask_b32 v{vQ+4*u+i}, 0, v{vS+i}, vcc")
    e(f"    v_add_f32_dpp v{vTt}, v{vTt}, v{vTt} row_ror:2 {DPP}")
    e(f"    v_and_b32 v{vA0+1}, 0xffff0000, v{vX}")
    e(f"    v_lshlrev_b32 v{vA0+2}, 16, v{vX+1}")
    e(f"    v_add_f32_dpp v{vTt}, v{vTt}, v{vTt} row_ror:4 {DPP}")
    e(f"    v_and_b32 v{vA0+3}, 0xffff0000, v{vX+1}")
    e("    s_nop 0")
    e(f"    v_add_f32_dpp v{vTt}, v{vTt}, v{vTt} row_ror:8 {DPP}")
    for x in xrow(vTt, vT, "v_add_f32"):
        e(x)
    e(f"    v_fma_f32 v{vTt}, v{vTt}, s{sC}, v{vL}")
    e(f"    s_waitcnt vmcnt({min(NR-1, NR-nk0+nsmall-5) if nk0 == 0 else NR-nk0+nsmall-5})")
    e(f"    v_not_b32 v{vMn}, v{vMs}")
    pstamp()
    if stamp == 2:
        e(f"    v_mov_b32 v{vTr}, 0")
        e("    s_mov_b32 m0, 0")
        e("    s_memrealtime s[60:61]")
    if stamp == 3:
        e(f"    v_mov_b32 v{vTr}, 0")
        e("    s_waitcnt lgkmcnt(0)")
        for k in range(pst[0]):
            e(f"    v_writelane_b32 v{vTr}, s{68+2*k}, {k}")

    def wcount(i, Wn):
        if not vm:
            return Wn - 1
        n = Wn - 1 + (1 if mp < i < mp + Wn else 0)
        if i == 29:
            n = min(n, 29 - mp - 1)
        return n

    def kbody(c):
        e(f"L_k{c}:                                          ; K iteration, {Ws[c]} loads in flight")
        tr()
        for i in range(NR):
            g, u = divmod(i, 4)
            S = vS + 4 * (g & 1)
            Sp = vS + 4 * ((g + 1) & 1)
            cc = "0" if u == 0 else r(S, 4)
            e(f"    v_mfma_f32_16x16x32_bf16 {r(S,4)}, {r(vR+4*i,4)}, {r(vQ+4*u,4)}, {cc}")
            e(f"    s_waitcnt vmcnt({wcount(i, Ws[c])})" + (" lgkmcnt(0)" if i == 29 and not vm else ""))
            load(i)
            control(i, f"k{c}")
            if u == 1:
                fin_a(Sp)
            if u == 2:
                fin_b(Sp, 64 * g)
        endit("k")

    def vbody(c):
        e(f"L_v{c}:                                          ; V iteration, {Ws[c]} loads in flight")
        tr()
        for i in range(NR):
            pv(i)
            e(f"    s_waitcnt vmcnt({wcount(i, Ws[c])})" + (" lgkmcnt(0)" if i % 16 == 1 else ""))
            load(i)
            control(i, f"v{c}")
            vwork(i, False)
        endit("v")

    def put_stubs():
        for tag, k in stubs:
            e(f"L_pub_{tag}_{k}:")
            if k == "gr":
                e(f"    s_lshl_b64 exec, 1, s{sJ}")
                e(f"    global_load_dword v{vG}, v{vGad}, s[{sGb}:{sGb+1}] sc1")
                e("    s_mov_b64 exec, -1")
                e(f"    s_branch L_pubx_{tag}_{k}")
                continue
            if k == "gw":
                e(f"    v_not_b32 v{vGn}, v{vGs}")
                e(f"    s_lshl_b64 exec, {2 if gdw else 1}, s{sJ}")
                e(f"    global_store_dword v{vGad}, v{vGn}, s[{sGb}:{sGb+1}] sc1")
                e("    s_mov_b64 exec, -1")
                e(f"    s_add_u32 s{sGw}, s{sGw}, 32")
                e(f"    s_branch L_pubx_{tag}_{k}")
                continue
            if k == "ge":
                e(f"    v_cmp_ne_u32 vcc, v{vG}, v{vGs}")
                e(f"    s_add_u32 s{sGr}, s{sGr}, 32")
                e(f"    s_bitcmp1_b64 vcc, s{sJ}")
                e(f"    s_cbranch_scc{1 if gneg else 0} L_pubx_{tag}_{k}")
                e(f"    s_mov_b64 vcc, {((1 << glen) - 1) << gd}")
                e(f"    s_lshl_b64 exec, vcc, s{sJ}")
                e(f"    s_cbranch_scc0 L_pube_{tag}")
                e(f"    global_store_byte_d16_hi v{vMad}, v{vMn}, s[{sMb}:{sMb+1}] offset:2")
                e(f"L_pube_{tag}:")
                e("    s_mov_b64 exec, -1")
                e(f"    s_branch L_pubx_{tag}_{k}")
                continue
            e(f"    s_mov_b64 exec, s[{sEx}:{sEx+1}]")
            op = ("global_store_byte", "global_store_short", "global_store_dword")[k]
            e(f"    {op} v{vMad}, v{vMn}, s[{sMb}:{sMb+1}]")
            e("    s_mov_b64 exec, -1")
            e(f"    s_add_u32 s{sCell[k]}, s{sCell[k]}, 32")
            if k == len(offs) - 1:
                e(f"    s_lshl_b64 s[{sEx}:{sEx+1}], s[{sEx}:{sEx+1}], 32")
            e(f"    s_branch L_pubx_{tag}_{k}")
        stubs.clear()

    korder = [k0] + [c for c in range(NC) if c != k0]
    for c in korder:
        kbody(c)
        put_stubs()
    e("L_kev:")
    e(f"    s_cmp_eq_u32 s{sJ}, {iters}")
    e("    s_cbranch_scc1 L_kdone")
    e(f"    s_mov_b32 s{sR}, s{sVp}")
    e(f"    s_mov_b32 s{sR+1}, s{sVp+1}")
    reset_off()
    e(f"    v_mov_b32 v{vOff}, v{vVoff}")
    e(f"    s_mov_b32 s{sEv}, {iters}")
    if otl == 1:
        e(f"    global_load_dword v{vX+1}, v{vOo}, s[{sOutp}:{sOutp+1}]      ; warms the translation of the output page; value unused")
    e(f"    v_and_b32 v{vPk}, 3, v0")
    e(f"    v_and_b32 v{vP}, 60, v0")
    e(f"    v_lshl_add_u32 v{vPk}, v{vPk}, 6, v{vP}")
    e(f"    v_add_u32 v{vPk}, 64, v{vPk}")
    if kvb > 0:
        e(f"    s_max_u32 s{sIx}, s{sIx}, {kvb}")
    dispatch("k", list(range(NC)))
    e("L_kdone:")
    Sl = vS + 4 * ((gpi - 1) & 1)
    e("    ; V phase reads the scores one key per lane: group 4*batch + (l&3), slot l>>2")
    e(f"    ds_read_b32 v{vSc}, v{vPk}")
    e(f"    ds_read_b32 v{vSc+1}, v{vPk} offset:256")
    fin_a(Sl)
    e(f"    s_mov_b32 s{sEv}, {2*iters-1-(1 if ramp else 0)}")
    fin_b(Sl, 0)
    e(f"    v_mov_b32 v{vLd}, v{vPk}")
    e(f"    v_max_f32_dpp v{vM}, v{vM}, v{vM} row_ror:4 {DPP}")
    e("    s_nop 1")
    e(f"    v_max_f32_dpp v{vM}, v{vM}, v{vM} row_ror:8 {DPP}")
    for x in xrow(vM, vT, "v_max_f32"):
        e(x)
    e(f"    v_mul_f32 v{vMt}, s{sC}, v{vM}")
    e(f"    v_max_f32 v{vMt}, v{vMt}, v{vTt}")
    e(f"    v_and_b32 v{vMt}, -2, v{vMt}")
    e("    s_waitcnt lgkmcnt(0)")
    e(f"    v_sub_f32 v{vTt}, v{vTt}, v{vMt}")
    e(f"    v_exp_f32 v{vTt}, v{vTt}")
    p_a()
    e(f"    v_mul_f32 v{vL}, 0x3c800000, v{vTt}")
    p_b(0)
    e(f"    v_mov_b32 v{vSc}, v{vSc+1}")
    p_c(0)
    for i in range(4):
        e(f"    v_mul_f32 v{vA0+i}, v{vA0+i}, v{vTt}")
    b1(0)
    dispatch("v", list(range(NC)))
    for c in range(NC):
        vbody(c)
        put_stubs()

    vMa = vQ
    vMb = vR + 32
    vOwn = vQ + 12

    def check(d):
        for k, a in enumerate((vM1, vM2, vM3)):
            e(f"    global_load_dwordx4 {r(d+4*k,4)}, v{a}, s[{sWs}:{sWs+1}] sc1")

    def valid(d, target):
        e(f"    v_bitop3_b32 v{vT}, 1, v{d+1}, v{vSn+1} bitop3:0x60")
        for k in range(1, 6):
            e(f"    v_bitop3_b32 v{vT}, v{vT}, v{d+1+2*k}, v{vSn+1+2*k} bitop3:0x60")
        e(f"    v_cmp_eq_u32 vcc, 0, v{vT}")
        e(f"    s_cbranch_vccz {target}")

    def finish(d):
        P = [vOwn, d, d + 4, d + 8]
        Wt = vA0
        T = vR
        if diag & 2:
            e(f"    v_add_f32 v{T}, v{P[0]}, v{P[1]}")
            e(f"    v_add_f32 v{T+1}, v{P[2]}, v{P[3]}")
            e(f"    v_add_f32 v{T+2}, v{P[0]+2}, v{P[1]+2}")
            e(f"    v_add_f32 v{T+3}, v{P[2]+2}, v{P[3]+2}")
            e(f"    v_add_f32 v{T}, v{T}, v{T+1}")
            e(f"    v_add_f32 v{T+2}, v{T+2}, v{T+3}")
            e(f"    v_cvt_pk_bf16_f32 v{T}, v{T}, v{T+2}")
            e(f"    global_store_dword v{vOo}, v{T}, s[{sOutp}:{sOutp+1}]")
            e("    s_endpgm")
            return
        if stamp == 5:
            e("    s_memrealtime s[70:71]")
        for k in range(3):
            e(f"    v_and_b32 v{d+1+4*k}, -2, v{d+1+4*k}")
        e(f"    v_max3_f32 v{vM}, v{vMt}, v{d+1}, v{d+5}")
        e(f"    v_max_f32 v{vM}, v{vM}, v{d+9}")
        for k in range(4):
            e(f"    v_sub_f32 v{Wt+k}, v{vMt if k == 0 else P[k]+1}, v{vM}")
        for k in range(4):
            e(f"    v_exp_f32 v{Wt+k}, v{Wt+k}")
        for k in range(4):
            e(f"    v_and_b32 v{P[k]+3}, -2, v{P[k]+3}")
        for k in range(4):
            sel = "op_sel_hi:[1,0]" if k % 2 == 0 else "op_sel:[0,1] op_sel_hi:[1,1]"
            e(f"    v_pk_mul_f32 {r(T+2*k,2)}, {r(P[k]+2,2)}, {r(Wt+(k&2),2)} {sel}")
        e(f"    v_pk_add_f32 {r(T,2)}, {r(T,2)}, {r(T+2,2)}")
        e(f"    v_pk_add_f32 {r(T+4,2)}, {r(T+4,2)}, {r(T+6,2)}")
        e(f"    v_pk_add_f32 {r(T,2)}, {r(T,2)}, {r(T+4,2)}")
        e(f"    v_rcp_f32 v{vL}, v{T+1}")
        for k in range(4):
            e(f"    v_mul_f32 v{T+8+k}, v{Wt+k}, v{P[k]}")
        e(f"    v_add_f32 v{T+8}, v{T+8}, v{T+9}")
        e(f"    v_add_f32 v{T+10}, v{T+10}, v{T+11}")
        e(f"    v_mul_f32 v{T}, v{T}, v{vL}")
        e(f"    v_add_f32 v{T+8}, v{T+8}, v{T+10}")
        e(f"    v_mul_f32 v{T+8}, v{T+8}, v{vL}")
        e(f"    v_cvt_pk_bf16_f32 v{T}, v{T+8}, v{T}")
        e(f"    global_store_dword v{vOo}, v{T}, s[{sOutp}:{sOutp+1}]")
        if stamp == 5:
            e("    s_memrealtime s[72:73]")
        if stamp:
            e("    s_waitcnt vmcnt(0)")
            e("    s_branch L_st")
        else:
            e("    s_endpgm")

    e("L_vev:")
    if ramp:
        w0, w1, st0 = [int(x) for x in ramp.split(".")]
        tr()
        for i in range(NR):
            pv(i)
            wn = w0 if i < st0 else min(w1, int(round(w0 + (w1 - w0) * (i - st0 + 1) / (NR - st0))))
            e(f"    s_waitcnt vmcnt({wn-1})" + (" lgkmcnt(0)" if i % 16 == 1 else ""))
            load(i)
            vwork(i, False)
        e(f"    v_add_u32 v{vLd}, {64*gpi}, v{vLd}")
    if otl == 2:
        e(f"    global_load_dword v{vX+1}, v{vOo}, s[{sOutp}:{sOutp+1}]      ; warms the translation of the output page; value unused")
    e(f"    v_not_b32 v{vSn+13}, v{vSn+13}")
    e(f"    v_not_b32 v{vSn+15}, v{vSn+15}")
    e(f"    v_and_or_b32 v{vOwn+1}, v{vSn+13}, 1, v{vMt}")
    tr()
    if ck1 == 0:
        check(vMa)
    red = [[f"    v_add_f32_dpp v{vL}, v{vL}, v{vL} row_ror:{sh} {DPP}"] for sh in (1, 2, 4, 8)]
    for sw in ("v_permlane16_swap_b32", "v_permlane32_swap_b32"):
        red += [[f"    v_mov_b32 v{vT}, v{vL}"], [f"    {sw} v{vL}, v{vT}"], [f"    v_add_f32 v{vL}, v{vL}, v{vT}"]]
    red += [[f"    v_and_b32 v{vL}, -2, v{vL}", f"    v_and_or_b32 v{vOwn+3}, v{vSn+15}, 1, v{vL}"]]
    Wmax = max(Ws) if not ramp else NR
    for i in range(NR):
        n = NR - 1 - i + (3 if i >= ck1 else 0) + (1 if otl == 2 else 0)
        if i == 1 or NR - 1 - i < Wmax or i >= 6:
            e(f"    s_waitcnt vmcnt({n})" + (" lgkmcnt(0)" if i == 1 else ""))
        pv(i, True)
        if i == ck1 - 1:
            check(vMa)
        if i >= 6 and red:
            for x in red.pop(0):
                e(x)
        vwork(i, True)
    assert not red
    if stamp:
        e(f"    s_memrealtime s[{sSt+2}:{sSt+3}]")
    if dpoll:
        check(vMb)
        e(f"    s_mov_b32 s{sJ}, {NP}")
        e("    s_nop 1")
    else:
        e(f"    s_mov_b32 s{sJ}, {NP}")
        e("    s_nop 4")
    e(f"    v_permlane32_swap_b32 v{vA0}, v{vA0+2}")
    e(f"    v_permlane32_swap_b32 v{vA0+1}, v{vA0+3}")
    e(f"    v_permlane32_swap_b32 v{vA1}, v{vA1+2}")
    e(f"    v_permlane32_swap_b32 v{vA1+1}, v{vA1+3}")
    e("    s_nop 0")
    e(f"    v_add_f32 v{vOwn}, v{vA0}, v{vA1+2}")
    e(f"    v_add_f32 v{vOwn+2}, v{vA0+1}, v{vA1+3}")
    e("    ; fast path: plain store, seen at once by workgroups that share this L2; bounded number of looks")
    e(f"    global_store_dwordx4 v{vSl}, {r(vOwn,4)}, s[{sWs}:{sWs+1}]")
    if diag & 8:
        e("    s_endpgm")
    if stamp == 5:
        e("    s_memrealtime s[68:69]")
    if dpoll:
        e("    s_waitcnt vmcnt(4)")
        valid(vMa, "L_fin")
        check(vMa)
        e("    s_waitcnt vmcnt(4)")
        e("L_poll:")
        valid(vMb, "L_finb")
        if diag & 4:
            e("    s_waitcnt vmcnt(0)")
            valid(vMa, "L_fin")
            check(vMa)
            e("    s_waitcnt vmcnt(0)")
            valid(vMa, "L_fin")
            e("    s_endpgm")
        check(vMb)
        e("    s_waitcnt vmcnt(3)")
        valid(vMa, "L_fin")
        check(vMa)
        e(f"    s_sub_u32 s{sJ}, s{sJ}, 1")
        e("    s_waitcnt vmcnt(3)")
        e("    s_cbranch_scc0 L_poll")
    else:
        e("    s_waitcnt vmcnt(1)")
        e("L_poll:")
        valid(vMa, "L_fin")
        check(vMa)
        e(f"    s_sub_u32 s{sJ}, s{sJ}, 1")
        e("    s_waitcnt vmcnt(0)")
        e("    s_cbranch_scc0 L_poll")
    e(f"    s_add_u32 s{sWs}, s{sWs}, 0x80000")
    e(f"    s_addc_u32 s{sWs+1}, s{sWs+1}, 0")
    e(f"    global_store_dwordx4 v{vSl}, {r(vOwn,4)}, s[{sWs}:{sWs+1}] sc1")
    e(f"    s_lshl_b32 s{sTmp}, s{sHead}, 2")
    e(f"    v_mov_b32 v{vX}, s{sTmp}")
    e(f"    v_mov_b32 v{vX+1}, 1")
    e("    s_mov_b64 exec, 1")
    e("    s_waitcnt vmcnt(0)")
    e(f"    global_atomic_add v{vT}, v{vX}, v{vX+1}, s[{sDbg}:{sDbg+1}] sc0")
    e("    s_waitcnt vmcnt(0)")
    e(f"    v_readfirstlane_b32 s{sTmp}, v{vT}")
    e("    s_mov_b64 exec, -1")
    e(f"    s_cmp_lg_u32 s{sTmp}, 3")
    e(f"    s_cbranch_scc1 {'L_st' if stamp else 'L_end'}")
    check(vMa)
    e("    s_waitcnt vmcnt(0)")
    e("L_fin:")
    finish(vMa)
    if dpoll:
        e("L_finb:")
        finish(vMb)
    if stamp:
        e("L_st:")
        e(f"    s_memrealtime s[{sSt+4}:{sSt+5}]")
        e(f"    s_load_dwordx2 s[{sWs}:{sWs+1}], s[0:1], 64")
        e(f"    s_mov_b32 s{sSt+7}, s63")
        e(f"    s_getreg_b32 s{sSt+6}, hwreg(HW_REG_XCC_ID, 0, 4)")
        e(f"    s_getreg_b32 s{sTmp+1}, hwreg(HW_REG_HW_ID, 0, 24)")
        e(f"    s_lshl_b32 s{sTmp+1}, s{sTmp+1}, 8")
        e(f"    s_or_b32 s{sSt+6}, s{sSt+6}, s{sTmp+1}")
        e("    s_waitcnt vmcnt(0) lgkmcnt(0)")
        e(f"    s_lshl_b32 s{sTmp+2}, s2, 5")
        e(f"    s_add_u32 s{sTmp+2}, s{sTmp+2}, 0x1000000")
        e(f"    v_mov_b32 v{vP}, s{sTmp+2}")
        for i in range(8):
            e(f"    v_mov_b32 v{vQ+i}, s{sSt+i}")
        e("    s_mov_b64 exec, 1")
        e(f"    global_store_dwordx4 v{vP}, {r(vQ,4)}, s[{sWs}:{sWs+1}]")
        e(f"    global_store_dwordx4 v{vP}, {r(vQ+4,4)}, s[{sWs}:{sWs+1}] offset:16")
        e("    s_mov_b64 exec, -1")
        if stamp == 5:
            for k in range(3):
                e(f"    v_writelane_b32 v{vTr}, s{68+2*k}, {k}")
        if stamp in (2, 3, 5):
            e(f"    s_lshl_b32 s{sTmp+2}, s2, 8")
            e(f"    s_add_u32 s{sTmp+2}, s{sTmp+2}, 0x2000000")
            e(f"    v_lshlrev_b32 v{vP}, 2, v0")
            e(f"    v_add_u32 v{vP}, s{sTmp+2}, v{vP}")
            e(f"    global_store_dword v{vP}, v{vTr}, s[{sWs}:{sWs+1}]")
    e("L_end:")
    e("    s_endpgm")
    if pfs:
        e("L_tail:")
        e(f"    .fill ({2048 * pfb + pfo} - (L_tail - L_pc)) / 4, 4, 0xbf810000   ; keeps the code prefetch inside .text")
    e('.section .rodata,"a"')
    e(".p2align 6")
    e(f".amdhsa_kernel {NAME}_kernel")
    e(f"  .amdhsa_next_free_vgpr {nv}")
    e(f"  .amdhsa_next_free_sgpr {nsg}")
    e(f"  .amdhsa_accum_offset {(nv+3)//4*4}")
    e("  .amdhsa_group_segment_fixed_size 0")
    e("  .amdhsa_kernarg_size 72")
    e("  .amdhsa_user_sgpr_count 2")
    e("  .amdhsa_user_sgpr_kernarg_segment_ptr 1")
    e("  .amdhsa_system_sgpr_workgroup_id_x 1")
    e("  .amdhsa_float_denorm_mode_32 3")
    e(".end_amdhsa_kernel")
    if stamp == 2:
        e(f"; meta waves={NWG} iters={2*iters} every=1 bytes={1 << 29}")
    return "\n".join(o) + "\n"


if __name__ == "__main__":
    for spec in sys.argv[1:]:
        name, _, kv = spec.partition(":")
        kw = {}
        for p in kv.split(","):
            if p:
                k, v = p.split("=")
                kw[k] = v.replace("+", " ") if k in ("fl", "map", "W", "duty", "xr", "offs", "inc", "mfl", "ramp") else int(v, 0)
        path = f"cdna_kernels/{NAME}.s" if name == "main" else f"var/{name}.s"
        open(path, "w").write(gen(**kw))
```

```python
import math, struct, sys
from gen1 import NAME, HEADER, f2u


def gen(W="20.21.22.24", duty="80808080", offs="0.20", inc="0.1.9", mp=5, mstr=4, mfl="glc",
        fl="nt", stamp=0, nk0=4, NI=28, pfs=1, ck1=28, kvb=2, NP=16, dpoll=0, vm=1, ramp="", gx=0, gth=8, ginc=1, glen=0, gd=2, g0=0, free=0, diag=0, pre=1, pfo=1024, otl=0, gneg=0, k0=1, ms=-1, msb=0, mwg=0, refm=13,
        map="w3n9n4r0n1n2n3n0w4n5n6n7n8r1w1w2w7w5w6w0", xr="14w5", cmt=0):
    Ws = [int(x) for x in W.split(".")]
    NC = len(Ws)
    offs = [int(x) for x in offs.split(".")]
    inc = [int(x) for x in inc.split(".")]
    assert len(inc) == len(offs) + 1 and len(offs) <= 3 and offs == sorted(offs)
    NR, NWG, iters, gpi, ngrp = 32, 256, 32, 8, 256
    lds = (ngrp + 3) * 64
    toks = [map[i:i+2] for i in range(0, len(map), 2)]
    if len(toks) in (10, 16):
        toks = toks[:9] + ["n6", "n7", "n8", "n9"] + toks[9:]
    if len(toks) == 14:
        toks += [f"w{i}" for i in range(8) if f"w{i}" not in toks]
    pos = {t: 8 + i for i, t in enumerate(toks)}
    assert sorted(pos) == sorted(["r0", "r1"] + [f"w{i}" for i in range(8)] + [f"n{i}" for i in range(10)])
    assert free or all(t[0] == "w" for t in toks[14:])
    spl = [t for t in toks[:14] if t[0] == "w"]
    hdt = toks[14:]
    adr = spl
    if free:
        adr = [t for t in toks if t[0] == "w"]
        spl = ["w3", "w4"]
        hdt = ["w0", "w1", "w2", "w5", "w6", "w7"]
    hi = [pos[f"n{i}"] for i in range(5, 10)]
    himask = sum(1 << b for b in hi)
    xrs = [(int(t.split("w")[0]), int(t.split("w")[1])) for t in xr.split(".") if t]
    xrmask = sum(1 << p for p, _ in xrs)
    assert all(toks[p - 8][0] == "n" for p, _ in xrs)
    scatter = hi != sorted(hi)
    contiguous = hi == list(range(hi[0], hi[0] + 5)) and not xrs
    immm = 0xfff & ~xrmask

    def lowoff(n):
        return sum(((n >> i) & 1) << pos[f"n{i}"] for i in range(5))
    o = []
    e = o.append

    vOff, vVoff, vM1 = 1, 2, 3
    vTt, vT, vT2, vP, vPk, vL, vM, vMt = 4, 5, 6, 7, 8, 9, 10, 11
    vMask = 12
    vS = 16
    vB1, vB2 = 16, 20
    vA0, vA1 = 24, 28
    vQ = 32
    vSc = 48
    vM2, vM3 = 50, 51
    vSl, vOo = 52, 53
    vX = 54
    vSn = 56
    vLd, vMad, vMs, vMn = 72, 73, 74, 75
    vGad, vGs, vGn, vG = 76, 77, 78, 79
    vK = [[80, 81, 82], [83, 84, 85]]
    vR = 88
    nv = vR + 4 * NR
    vTr = nv
    if stamp in (2, 3, 5):
        nv += 1
    sR = 8
    sT2, sNx, sXr, sSp = 12, 13, 14, 15
    sOff, sHi, sC, sHead, sSplit, sJ, sIx, sMk = 16, 17, 18, 19, 20, 21, 22, 23
    sQp, sKp, sVp, sKtp, sVtp, sMp, sOutp, sDbg, sWs = 24, 26, 28, 30, 32, 34, 36, 38, 40
    sTmp = 42
    sMaskv, sAcc, sDuty, sMo = 48, 49, 50, 51
    sSt = 52
    sEx = 4
    sCell = [3, 6, 7]
    sMb = 64
    sEv = 66
    sGb, sGr, sGw = 94, 96, 97
    nsg = 100 if (stamp in (3, 5) or gx) else 68
    glen = glen or gx
    pst = [0]

    msn = [0]

    def mile():
        if msn[0] == ms:
            e("    s_memrealtime s[56:57]")
        msn[0] += 1

    def pstamp():
        mile()
        if stamp == 3:
            e(f"    s_memrealtime s[{68+2*pst[0]}:{69+2*pst[0]}]")
            pst[0] += 1

    def r(b, n):
        return f"v[{b}:{b+n-1}]"
    DPP = "row_mask:0xf bank_mask:0xf"

    def gather(dst, items, tmp):
        runs = []
        for wb, db in sorted(items):
            if runs and runs[-1][0] + runs[-1][2] == wb and runs[-1][1] + runs[-1][2] == db:
                runs[-1][2] += 1
            else:
                runs.append([wb, db, 1])
        for k, (wb, db, n) in enumerate(runs):
            t = dst if k == 0 else tmp
            e(f"    s_bfe_u32 s{t}, s2, {hex((n << 16) | wb)}")
            if db:
                e(f"    s_lshl_b32 s{t}, s{t}, {db}")
            if k:
                e(f"    s_xor_b32 s{dst}, s{dst}, s{t}")

    e(HEADER.rstrip())
    e(f"; @launch grid=({NWG},1,1) block=(64,1,1) lds={lds}")
    if cmt:
        e(open("notes.txt").read().rstrip())
    e('.amdgcn_target "amdgcn-amd-amdhsa--gfx950"')
    e(".text")
    e(f".globl {NAME}_kernel")
    e(".p2align 8")
    e(f".type {NAME}_kernel,@function")
    e(f"{NAME}_kernel:")
    if stamp or ms >= 0:
        e(f"    s_memrealtime s[{sSt}:{sSt+1}]")
    e(f"    s_load_dwordx16 s[{sQp}:{sQp+15}], s[0:1], 0")
    e(f"    s_load_dwordx2 s[{sWs}:{sWs+1}], s[0:1], 64")
    e(f"    s_cmp_ge_u32 s2, {NWG}")
    e("    s_cbranch_scc1 L_end")
    e("    ; head index, byte offset of this split inside a head, order mask")
    gather(sHead, [(int(t[1]), i) for i, t in enumerate(hdt)], sTmp)
    gather(sSp, [(int(t[1]), pos[t]) for t in adr], sTmp)
    if xrs:
        gather(sXr, [(w, p) for p, w in xrs], sTmp)
    e(f"    v_lshrrev_b32 v{vT}, 4, v0")
    e(f"    v_lshlrev_b32 v{vT}, 6, v{vT}")
    e(f"    v_and_b32 v{vT2}, 3, v0")
    e(f"    v_lshl_add_u32 v{vT}, v{vT2}, 4, v{vT}")
    if pos["r1"] == pos["r0"] + 1:
        e(f"    v_bfe_u32 v{vT2}, v0, 2, 2")
        e(f"    v_lshl_add_u32 v{vOff}, v{vT2}, {pos['r0']}, v{vT}")
    else:
        e(f"    v_bfe_u32 v{vT2}, v0, 2, 1")
        e(f"    v_lshl_add_u32 v{vOff}, v{vT2}, {pos['r0']}, v{vT}")
        e(f"    v_bfe_u32 v{vT2}, v0, 3, 1")
        e(f"    v_lshl_add_u32 v{vOff}, v{vT2}, {pos['r1']}, v{vOff}")
    e(f"    v_add_u32 v{vOff}, s{sSp}, v{vOff}")
    e(f"    s_lshl_b32 s{sTmp}, s{sHead}, 22" if not free else f"    s_mov_b32 s{sTmp}, 0")

    def reset_off():
        e(f"    s_mov_b32 s{sOff}, {'s%d' % sXr if xrs else 0}")
        if not contiguous:
            e(f"    s_mov_b32 s{sHi}, 0")
    reset_off()
    e(f"    s_mov_b32 s{sR+2}, {hex(1 << 28) if free else '0x400000'}")
    e(f"    s_mov_b32 s{sR+3}, 0x20000")
    gather(sSplit, [(int(t[1]), i) for i, t in enumerate(spl)], sTmp + 1)
    e(f"    s_lshl_b32 s{sTmp+1}, s{sSplit}, 10")
    e(f"    s_lshl_b32 s{sTmp+2}, s{sHead}, 8")
    e(f"    s_lshl_b32 s{sTmp+3}, s{sHead}, 12")
    e(f"    v_lshlrev_b32 v{vPk}, 2, v0")
    e(f"    v_lshlrev_b32 v{vSl}, 4, v0")
    e(f"    v_and_b32 v{vVoff}, 0xf0, v{vSl}")
    e(f"    v_bfe_u32 v{vP}, v0, 4, 1")
    e(f"    v_lshl_add_u32 v{vP}, v{vP}, 3, v{vVoff}       ; v_tree offset: (l&15)*16 + ((l>>4)&1)*8")
    e(f"    v_add_u32 v{vSl}, s{sTmp+1}, v{vSl}")
    e("    s_waitcnt lgkmcnt(0)")
    pstamp()
    e(f"    s_add_u32 s{sR}, s{sKp}, s{sTmp}")
    e(f"    s_addc_u32 s{sR+1}, s{sKp+1}, 0")

    def load(i):
        lo = lowoff(i)
        e(f"    buffer_load_dwordx4 {r(vR+4*i,4)}, v{vOff}, s[{sR}:{sR+3}], s{sOff} offen offset:{lo & immm} {fl}")
        cur = lo & ~immm
        if i < NR - 1:
            d = cur ^ (lowoff(i + 1) & ~immm)
            if d:
                e(f"    s_xor_b32 s{sOff}, s{sOff}, {hex(d)}")
            elif i % 4 == 3:
                e("    s_nop 0")
            if scatter and 8 <= i < 14:
                k = i - 8
                if k == 0:
                    e(f"    s_add_u32 s{sHi}, s{sHi}, 1")
                    e(f"    s_mov_b32 s{sNx}, {'s%d' % sXr if xrs else 0}")
                else:
                    e(f"    s_bfe_u32 s{sT2}, s{sHi}, {hex((1 << 16) | (k - 1))}")
                    e(f"    s_lshl_b32 s{sT2}, s{sT2}, {hi[k-1]}")
                    e(f"    s_xor_b32 s{sNx}, s{sNx}, s{sT2}")
            if not scatter and not contiguous and i == 11:
                e(f"    s_or_b32 s{sHi}, s{sHi}, {hex(~himask & 0xffffffff)}")
                e(f"    s_add_u32 s{sHi}, s{sHi}, 1")
                e(f"    s_and_b32 s{sHi}, s{sHi}, {hex(himask)}")
        elif contiguous:
            e(f"    s_add_u32 s{sOff}, s{sOff}, {hex(((1 << hi[0]) - cur) & 0xffffffff)}")
        elif scatter:
            e(f"    s_mov_b32 s{sOff}, s{sNx}")
        elif xrs:
            e(f"    s_xor_b32 s{sOff}, s{sHi}, s{sXr}")
        else:
            e(f"    s_mov_b32 s{sOff}, s{sHi}")

    for i in range(nk0):
        load(i)
    for p in (sQp, sKtp, sVtp):
        e(f"    s_add_u32 s{p}, s{p}, s{sTmp+2}")
        e(f"    s_addc_u32 s{p+1}, s{p+1}, 0")
    e(f"    s_load_dword s{sMaskv}, s[{sMp}:{sMp+1}], 0")
    e(f"    global_load_dwordx4 {r(vS,4)}, v{vT}, s[{sQp}:{sQp+1}]")
    e(f"    global_load_dword v{vA0}, v{vPk}, s[{sQp}:{sQp+1}]")
    e(f"    global_load_dword v{vA0+1}, v{vPk}, s[{sKtp}:{sKtp+1}]")
    e(f"    global_load_dwordx2 {r(vX,2)}, v{vP}, s[{sVtp}:{sVtp+1}]")
    e(f"    s_getreg_b32 s{sIx}, hwreg(HW_REG_XCC_ID, 0, 3)")
    e(f"    s_mul_i32 s{sT2}, s{sIx}, {max(4096, 64*mstr)+256}")
    e(f"    s_add_u32 s{sT2}, s{sT2}, 0x40000")
    e(f"    s_add_u32 s{sMb}, s{sWs}, s{sT2}")
    e(f"    s_addc_u32 s{sMb+1}, s{sWs+1}, 0")
    if gx:
        e(f"    s_add_u32 s{sGb}, s{sWs}, 0x100000")
        e(f"    s_addc_u32 s{sGb+1}, s{sWs+1}, 0")
    e(f"    v_lshlrev_b32 v{vMad}, {int(math.log2(mstr))}, v0")
    e(f"    s_add_u32 s{sWs}, s{sWs}, s{sTmp+3}")
    e(f"    s_addc_u32 s{sWs+1}, s{sWs+1}, 0")
    e(f"    global_load_dword v{vMs}, v{vMad}, s[{sMb}:{sMb+1}] sc1")
    e(f"    v_xor_b32 v{vM1}, 0x400, v{vSl}")
    e(f"    v_xor_b32 v{vM2}, 0x800, v{vSl}")
    e(f"    v_xor_b32 v{vM3}, 0xc00, v{vSl}")
    for k, a in enumerate((vM1, vM2, vM3, vSl)):
        e(f"    global_load_dwordx4 {r(vSn+4*k,4)}, v{a}, s[{sWs}:{sWs+1}] sc1")
    nsmall = 9
    e(f"    s_lshr_b32 s{sAcc}, s2, 3")
    if gx:
        e(f"    s_mul_i32 s{sGr}, s{sAcc}, {refm}")
        e(f"    s_add_u32 s{sGr}, s{sGr}, 5")
        e(f"    s_and_b32 s{sGr}, s{sGr}, 31")
        e(f"    s_lshl_b32 s{sT2}, 1, s{sGr}")
        e(f"    v_mul_u32_u24 v{vGad}, 4352, v0")
        e(f"    s_mov_b32 exec_lo, s{sT2}")
        e(f"    s_mov_b32 exec_hi, s{sT2}")
        e(f"    global_load_dword v{vGs}, v{vGad}, s[{sGb}:{sGb+1}] sc1")
        e("    s_mov_b64 exec, -1")
        nsmall += 1
    if pfs:
        e(f"    s_getpc_b64 s[{sTmp+4}:{sTmp+5}]")
        e("L_pc:")
        pfb = pfs if pfs >= 8 else 4 << pfs
        e(f"    s_mul_i32 s{sT2}, s{sAcc}, {64*pfb}")
        e(f"    v_mad_u32_u24 v{vMn}, v0, {pfb}, s{sT2}")
        e(f"    global_load_dword v{vSc}, v{vMn}, s[{sTmp+4}:{sTmp+5}] offset:{pfo}")
        nsmall += 1
    for i in range(nk0, NI):
        load(i)
    pstamp()
    e(f"    s_add_u32 s{sVp}, s{sVp}, s{sTmp}")
    e(f"    s_addc_u32 s{sVp+1}, s{sVp+1}, 0")
    e(f"    s_add_u32 s{sOutp}, s{sOutp}, s{sTmp+2}")
    e(f"    s_addc_u32 s{sOutp+1}, s{sOutp+1}, 0")
    e(f"    v_lshrrev_b32 v{vOo}, 5, v0")
    e(f"    v_lshl_add_u32 v{vOo}, v{vOo}, 2, v{vP}        ; output offset")
    e(f"    v_bfe_u32 v{vT}, v0, 4, 1")
    e(f"    v_lshl_add_u32 v{vVoff}, v{vT}, {pos['r0']}, v{vVoff}")
    e(f"    v_lshrrev_b32 v{vT}, 5, v0")
    e(f"    v_lshl_add_u32 v{vVoff}, v{vT}, {pos['r1']}, v{vVoff}")
    e(f"    v_add_u32 v{vVoff}, s{sSp}, v{vVoff}")
    c = (128 ** -0.5) * math.log2(math.e)
    e(f"    s_mov_b32 s{sC}, {hex(f2u(c))}")
    e(f"    v_mov_b32 v{vM}, 0xff800000")
    e(f"    v_and_b32 v{vLd}, 60, v0                      ; score slots: group*64 + (lane>>2)*4, slot 0 is a dummy")
    e(f"    v_and_b32 v{vT}, 1, v0")
    e(f"    v_lshlrev_b32 v{vT}, 4, v{vT}")
    e(f"    v_mov_b32 v{vPk}, 0xffff")
    e(f"    v_lshlrev_b32 v{vPk}, v{vT}, v{vPk}")
    e(f"    v_bfe_u32 v{vT}, v0, 1, 2")
    for i in range(4):
        e(f"    v_cmp_eq_u32 vcc, {i}, v{vT}")
        e(f"    v_mov_b32 v{vS+4+i}, 0xff800000          ; 'previous group' of group 0")
        e(f"    v_mov_b32 v{vA1+i}, 0")
        e(f"    v_cndmask_b32 v{vMask+i}, 0, v{vPk}, vcc")
    e(f"    s_lshr_b32 s{sTmp}, s{sHead}, 5")
    e(f"    s_lshl_b32 s{sTmp}, s{sTmp}, 4")
    e("    s_waitcnt lgkmcnt(0)")
    e(f"    s_lshr_b32 s{sMaskv}, s{sMaskv}, s{sTmp}")
    e(f"    s_lshl_b32 s{sMaskv}, s{sMaskv}, 16")
    e(f"    v_sub_f32 v{vL}, s{sMaskv}, 1.0               ; mask - 1")
    e(f"    v_mul_f32 v{vL}, {hex(f2u(1e9*math.log2(math.e)))}, v{vL}   ; (1-mask)*-1e9*log2(e)")
    e(f"    s_cmp_eq_u32 s{sSplit}, 0")
    e(f"    s_cselect_b32 s{sTmp}, 0, 0xff800000")
    e(f"    v_add_f32 v{vL}, s{sTmp}, v{vL}")
    dv = [int(ch, 32) for ch in duty]
    if dv == dv[:2] * 4:
        e(f"    s_bitcmp1_b32 s{sIx}, 0")
        e(f"    s_cselect_b32 s{sDuty}, {dv[1]}, {dv[0]}")
    else:
        tab = sum(d << (5 * i) for i, d in enumerate(dv))
        e(f"    s_mov_b32 s{sTmp+2}, {hex(tab & 0xffffffff)}")
        e(f"    s_mov_b32 s{sTmp+3}, {hex(tab >> 32)}")
        e(f"    s_mul_i32 s{sTmp}, s{sIx}, 5")
        e(f"    s_lshr_b64 s[{sTmp+2}:{sTmp+3}], s[{sTmp+2}:{sTmp+3}], s{sTmp}")
        e(f"    s_and_b32 s{sDuty}, s{sTmp+2}, 31")
    e(f"    ; workgroup row r = wg>>3 publishes the markers of iterations ({refm}r+5)&31 and that + 32")
    e(f"    s_mul_i32 s{sTmp}, s{sAcc}, {refm}")
    e(f"    s_add_u32 s{sTmp}, s{sTmp}, 5")
    e(f"    s_and_b32 s{sTmp}, s{sTmp}, 31")
    e(f"    s_lshl_b64 s[{sEx}:{sEx+1}], 1, s{sTmp}")
    sites = []
    for k, of in enumerate(offs):
        d, st = divmod(mp + of, NR)
        e(f"    s_add_u32 s{sCell[k]}, s{sTmp}, {d}")
        sites.append((st, k))
    if gx:
        e(f"    s_lshr_b32 s{sTmp+1}, s{sGr}, {int(math.log2(gx))}")
        e(f"    s_mul_i32 s{sTmp+1}, s{sTmp+1}, 3")
        e(f"    s_xor_b32 s{sTmp+1}, s{sTmp+1}, s2")
        e(f"    s_and_b32 s{sTmp+2}, s{sGr}, {gx-1}")
        e(f"    s_cselect_b32 s{sGr}, 0x100, s{sGr}")
        e(f"    s_and_b32 s{sTmp+1}, s{sTmp+1}, 7")
        e(f"    s_cselect_b32 s{sGw}, 0x100, s{sGr}")
        if gneg:
            e(f"    s_cmp_eq_u32 s{sGr}, 0")
            e(f"    s_cselect_b32 s{sGr}, 32, s{sGr}")
        gdw = (mp - 1 + gth) // NR
        assert gdw in (0, -1)
        if gdw:
            e(f"    s_sub_u32 s{sGw}, s{sGw}, 1")
            e(f"    s_cselect_b32 s{sGw}, 31, s{sGw}")
    e(f"    s_and_b32 s{sAcc}, s{sAcc}, 15")
    e(f"    s_mov_b32 s{sJ}, 0")
    e(f"    s_mov_b32 s{sMo}, 0")
    e(f"    s_mov_b32 s{sEv}, {iters-1}")
    if stamp:
        e("    s_mov_b32 s63, 0")
    lvl = [0, 1, 2, 4][:len(inc)]
    inctab = sum(min(v, 15) << (8 * l) for v, l in zip(inc, lvl) if l < 4)
    stubs = []

    def control(i, tag):
        for st, k in sites:
            if st == i:
                e(f"    s_cmp_eq_u32 s{sJ}, s{sCell[k]}")
                e(f"    s_cbranch_scc1 L_pub_{tag}_{k}")
                e(f"L_pubx_{tag}_{k}:")
                stubs.append((tag, k))
        if gx:
            for nm, st, reg in (("gr", mp - 1, sGr), ("gw", (mp - 1 + gth) % NR, sGw), ("ge", 30, sGr)):
                if st == i:
                    e(f"    s_cmp_eq_u32 s{sJ}, s{reg}")
                    e(f"    s_cbranch_scc1 L_pub_{tag}_{nm}")
                    e(f"L_pubx_{tag}_{nm}:")
                    stubs.append((tag, nm))
        if i == mp and not vm:
            e(f"    s_load_dword s{sMk}, s[{sMb}:{sMb+1}], s{sMo} {mfl}")
        if i == mp and vm:
            e(f"    global_load_dword v{vX}, v{vMad}, s[{sMb}:{sMb+1}] sc1")
        if i == 29 and vm:
            e(f"    v_readlane_b32 s{sMk}, v{vX}, s{sJ}")
        if i == 27:
            e(f"    v_readlane_b32 s{sTmp}, v{vMs}, s{sJ}")
            e(f"    s_add_u32 s{sAcc}, s{sAcc}, s{sDuty}")
            e(f"    s_lshr_b32 s{sIx}, s{sAcc}, 4")
            e(f"    s_and_b32 s{sAcc}, s{sAcc}, 15")
        if i == 28 and not vm:
            e(f"    s_add_u32 s{sMo}, s{sMo}, {mstr}")
        if i == (30 if vm else 29):
            e(f"    s_xor_b32 s{sTmp}, s{sTmp}, s{sMk}")
            if gx:
                e(f"    s_bitcmp1_b32 s{sTmp}, 16")
                e(f"    s_cselect_b32 s{sTmp+1}, {0 if gneg else ginc}, {ginc if gneg else 0}")
                e(f"    s_add_u32 s{sIx}, s{sIx}, s{sTmp+1}")
                if stamp:
                    e(f"    s_bfe_u32 s{sTmp+1}, s{sTmp}, 0x10010")
                    e(f"    s_add_u32 s63, s63, s{sTmp+1}")
                e(f"    s_and_b32 s{sTmp}, s{sTmp}, 0xffff")
            e(f"    s_bcnt1_i32_b32 s{sTmp}, s{sTmp}")
            if len(offs) == 3:
                e(f"    s_cmp_gt_u32 s{sTmp}, 16")
                e(f"    s_cselect_b32 s{sIx}, {NC-1}, s{sIx}")
        if i == 30:
            e(f"    s_lshr_b32 s{sTmp}, {hex(inctab)}, s{sTmp}")
            e(f"    s_and_b32 s{sTmp}, s{sTmp}, 15")
            e(f"    s_add_u32 s{sIx}, s{sIx}, s{sTmp}")
            if stamp and not gx:
                e(f"    s_min_u32 s{sIx}, s{sIx}, {NC-1}")
                e(f"    s_add_u32 s63, s63, s{sIx}")

    def dispatch(ph, order):
        for c in order[:-1]:
            e(f"    s_cmp_{'ge' if c == NC-1 else 'eq'}_u32 s{sIx}, {c}")
            e(f"    s_cbranch_scc1 L_{ph}{c}")
        e(f"    s_branch L_{ph}{order[-1]}")

    def endit(ph):
        e(f"    v_add_u32 v{vLd}, {64*gpi}, v{vLd}")
        e(f"    s_add_u32 s{sJ}, s{sJ}, 1")
        e(f"    s_cmp_eq_u32 s{sJ}, s{sEv}")
        e(f"    s_cbranch_scc1 L_{ph}ev")
        dispatch(ph, [1, 2, 0] + list(range(3, NC)) if NC > 3 else list(range(NC)))

    def xrow(reg, tmp, op):
        L = []
        for sw in ("v_permlane16_swap_b32", "v_permlane32_swap_b32"):
            L += [f"    v_mov_b32 v{tmp}, v{reg}", "    s_nop 1", f"    {sw} v{reg}, v{tmp}", "    s_nop 1",
                  f"    {op} v{reg}, v{reg}, v{tmp}"]
        return L

    def tr():
        if stamp == 2:
            e("    s_waitcnt lgkmcnt(0)")
            e(f"    v_writelane_b32 v{vTr}, s60, m0")
            e("    s_add_u32 m0, m0, 1")
            e("    s_memrealtime s[60:61]")

    def fin_a(S):
        e(f"    v_mov_b32_dpp v{vT}, v{S} quad_perm:[0,0,0,0] {DPP}")
        e(f"    v_mov_b32_dpp v{vT2}, v{S+2} quad_perm:[2,2,2,2] {DPP}")

    def fin_b(S, off):
        e(f"    v_add_f32_dpp v{vT}, v{S+1}, v{vT} quad_perm:[1,1,1,1] {DPP}")
        e(f"    v_add_f32_dpp v{vT2}, v{S+3}, v{vT2} quad_perm:[3,3,3,3] {DPP}")
        e(f"    v_add_f32 v{vT}, v{vT}, v{vT2}")
        e(f"    v_max_f32 v{vM}, v{vM}, v{vT}")
        e(f"    ds_write_b32 v{vLd}, v{vT} offset:{off}")

    def qp(c):
        return f"quad_perm:[{c},{c},{c},{c}] {DPP}"

    def b1(g, vB1=vB1):
        k, c = vK[(g >> 2) & 1], g & 3
        e(f"    v_and_b32_dpp v{vB1}, v{k[0]}, v{vMask} {qp(c)}")
        e(f"    v_and_b32_dpp v{vB1+1}, v{k[0]}, v{vMask+1} {qp(c)}")
        e(f"    v_and_b32_dpp v{vB1+2}, v{k[1]}, v{vMask+2} {qp(c)}")
        e(f"    v_and_b32_dpp v{vB1+3}, v{k[1]}, v{vMask+3} {qp(c)}")

    def b2(g, vB2=vB2):
        k, c = vK[(g >> 2) & 1], g & 3
        e(f"    v_and_b32_dpp v{vB2}, v{k[2]}, v{vMask} {qp(c)}")
        e(f"    v_and_b32_dpp v{vB2+1}, v{k[2]}, v{vMask+1} {qp(c)}")
        e(f"    v_and_b32_dpp v{vB2+2}, v{k[0]}, v{vMask+2} {qp(c)}")
        e(f"    v_and_b32_dpp v{vB2+3}, v{k[0]}, v{vMask+3} {qp(c)}")

    def p_a():
        e(f"    v_fma_f32 v{vP}, v{vSc}, s{sC}, -v{vMt}")
        e(f"    v_exp_f32 v{vP}, v{vP}")

    def p_b(bt):
        e(f"    v_cvt_pk_bf16_f32 v{vK[bt][0]}, v{vP}, v{vP}")
        e(f"    v_add_f32 v{vL}, v{vL}, v{vP}")

    def p_c(bt):
        e(f"    v_mov_b32_dpp v{vK[bt][1]}, v{vK[bt][0]} row_ror:4 {DPP}")
        e(f"    v_mov_b32_dpp v{vK[bt][2]}, v{vK[bt][0]} row_ror:12 {DPP}")

    def pv(i, drain=False):
        u = i % 4
        A = vA0 if u % 2 == 0 else vA1
        Pm = vB1 if u < 2 else vB2
        if drain and pre and i >= 24:
            Pm = vR + 48 + 4 * ((i - 24) // 2)
        e(f"    v_mfma_f32_16x16x32_bf16 {r(A,4)}, {r(Pm,4)}, {r(vR+4*i,4)}, {r(A,4)}")

    def vwork(i, drain):
        g, u = divmod(i, 4)
        bt, j = divmod(i, 16)
        if drain and pre and i in (17, 19, 21, 23):
            k = (i - 17) // 2
            (b1, b2)[k & 1](6 + (k >> 1), vR + 48 + 4 * k)
        if u == 0 and not (drain and pre and g >= 6):
            b2(g)
        if u == 2 and not (drain and g >= (5 if pre else 7)):
            b1(g + 1)
        if drain and bt == 1:
            return
        if j == 1:
            p_a()
            if not drain:
                e(f"    ds_read_b32 v{vSc}, v{vLd} offset:{256*(bt+2)}")
        if j == 3:
            p_b(bt ^ 1)
        if j == 5:
            p_c(bt ^ 1)

    quad = [0, 2, 1, 3]
    pstamp()
    for j in range(NI, NR):
        need = j - NI
        e(f"    s_waitcnt vmcnt({NI-1+(nsmall if need < nk0 else 0)})")
        load(j)
    e(f"    v_bfe_u32 v{vT2}, v0, 2, 2")
    e(f"    s_waitcnt vmcnt({NR-nk0+nsmall-4})")
    pstamp()
    for u in range(4):
        e(f"    v_cmp_eq_u32 vcc, {quad[u]}, v{vT2}")
        if u == 0:
            e(f"    v_lshlrev_b32 v{vP}, 16, v{vA0}")
            e(f"    v_lshlrev_b32 v{vPk}, 16, v{vA0+1}")
        elif u == 1:
            e(f"    v_mul_f32 v{vTt}, v{vP}, v{vPk}")
            e(f"    v_and_b32 v{vP}, 0xffff0000, v{vA0}")
        elif u == 2:
            e(f"    v_and_b32 v{vPk}, 0xffff0000, v{vA0+1}")
            e(f"    v_fmac_f32 v{vTt}, v{vP}, v{vPk}")
        else:
            e(f"    v_add_f32_dpp v{vTt}, v{vTt}, v{vTt} row_ror:1 {DPP}")
            e(f"    v_lshlrev_b32 v{vA0}, 16, v{vX}")
        for i in range(4):
            e(f"    v_cndmask_b32 v{vQ+4*u+i}, 0, v{vS+i}, vcc")
    e(f"    v_add_f32_dpp v{vTt}, v{vTt}, v{vTt} row_ror:2 {DPP}")
    e(f"    v_and_b32 v{vA0+1}, 0xffff0000, v{vX}")
    e(f"    v_lshlrev_b32 v{vA0+2}, 16, v{vX+1}")
    e(f"    v_add_f32_dpp v{vTt}, v{vTt}, v{vTt} row_ror:4 {DPP}")
    e(f"    v_and_b32 v{vA0+3}, 0xffff0000, v{vX+1}")
    e("    s_nop 0")
    e(f"    v_add_f32_dpp v{vTt}, v{vTt}, v{vTt} row_ror:8 {DPP}")
    for x in xrow(vTt, vT, "v_add_f32"):
        e(x)
    e(f"    v_fma_f32 v{vTt}, v{vTt}, s{sC}, v{vL}")
    e(f"    s_waitcnt vmcnt({min(NR-1, NR-nk0+nsmall-5) if nk0 == 0 else NR-nk0+nsmall-5})")
    e(f"    v_not_b32 v{vMn}, v{vMs}")
    pstamp()
    if stamp == 2:
        e(f"    v_mov_b32 v{vTr}, 0")
        e("    s_mov_b32 m0, 0")
        e("    s_memrealtime s[60:61]")
    if stamp == 3:
        e(f"    v_mov_b32 v{vTr}, 0")
        e("    s_waitcnt lgkmcnt(0)")
        for k in range(pst[0]):
            e(f"    v_writelane_b32 v{vTr}, s{68+2*k}, {k}")

    def wcount(i, Wn):
        if not vm:
            return Wn - 1
        n = Wn - 1 + (1 if mp < i < mp + Wn else 0)
        if i == 29:
            n = min(n, 29 - mp - 1)
        return n

    def kbody(c):
        e(f"L_k{c}:                                          ; K iteration, {Ws[c]} loads in flight")
        tr()
        for i in range(NR):
            g, u = divmod(i, 4)
            S = vS + 4 * (g & 1)
            Sp = vS + 4 * ((g + 1) & 1)
            cc = "0" if u == 0 else r(S, 4)
            e(f"    v_mfma_f32_16x16x32_bf16 {r(S,4)}, {r(vR+4*i,4)}, {r(vQ+4*u,4)}, {cc}")
            e(f"    s_waitcnt vmcnt({wcount(i, Ws[c])})" + (" lgkmcnt(0)" if i == 29 and not vm else ""))
            load(i)
            control(i, f"k{c}")
            if u == 1:
                fin_a(Sp)
            if u == 2:
                fin_b(Sp, 64 * g)
        endit("k")

    def vbody(c):
        e(f"L_v{c}:                                          ; V iteration, {Ws[c]} loads in flight")
        tr()
        for i in range(NR):
            pv(i)
            e(f"    s_waitcnt vmcnt({wcount(i, Ws[c])})" + (" lgkmcnt(0)" if i % 16 == 1 else ""))
            load(i)
            control(i, f"v{c}")
            vwork(i, False)
        endit("v")

    def put_stubs():
        for tag, k in stubs:
            e(f"L_pub_{tag}_{k}:")
            if k == "gr":
                e(f"    s_lshl_b64 exec, 1, s{sJ}")
                e(f"    global_load_dword v{vG}, v{vGad}, s[{sGb}:{sGb+1}] sc1")
                e("    s_mov_b64 exec, -1")
                e(f"    s_branch L_pubx_{tag}_{k}")
                continue
            if k == "gw":
                e(f"    v_not_b32 v{vGn}, v{vGs}")
                e(f"    s_lshl_b64 exec, {2 if gdw else 1}, s{sJ}")
                e(f"    global_store_dword v{vGad}, v{vGn}, s[{sGb}:{sGb+1}] sc1")
                e("    s_mov_b64 exec, -1")
                e(f"    s_add_u32 s{sGw}, s{sGw}, 32")
                e(f"    s_branch L_pubx_{tag}_{k}")
                continue
            if k == "ge":
                e(f"    v_cmp_ne_u32 vcc, v{vG}, v{vGs}")
                e(f"    s_add_u32 s{sGr}, s{sGr}, 32")
                e(f"    s_bitcmp1_b64 vcc, s{sJ}")
                e(f"    s_cbranch_scc{1 if gneg else 0} L_pubx_{tag}_{k}")
                e(f"    s_mov_b64 vcc, {((1 << glen) - 1) << gd}")
                e(f"    s_lshl_b64 exec, vcc, s{sJ}")
                e(f"    s_cbranch_scc0 L_pube_{tag}")
                e(f"    global_store_byte_d16_hi v{vMad}, v{vMn}, s[{sMb}:{sMb+1}] offset:2")
                e(f"L_pube_{tag}:")
                e("    s_mov_b64 exec, -1")
                e(f"    s_branch L_pubx_{tag}_{k}")
                continue
            e(f"    s_mov_b64 exec, s[{sEx}:{sEx+1}]")
            op = ("global_store_byte", "global_store_short", "global_store_dword")[k]
            e(f"    {op} v{vMad}, v{vMn}, s[{sMb}:{sMb+1}]")
            e("    s_mov_b64 exec, -1")
            e(f"    s_add_u32 s{sCell[k]}, s{sCell[k]}, 32")
            if k == len(offs) - 1:
                e(f"    s_lshl_b64 s[{sEx}:{sEx+1}], s[{sEx}:{sEx+1}], 32")
            e(f"    s_branch L_pubx_{tag}_{k}")
        stubs.clear()

    korder = [k0] + [c for c in range(NC) if c != k0]
    for c in korder:
        kbody(c)
        put_stubs()
    e("L_kev:")
    e(f"    s_cmp_eq_u32 s{sJ}, {iters}")
    e("    s_cbranch_scc1 L_kdone")
    e(f"    s_mov_b32 s{sR}, s{sVp}")
    e(f"    s_mov_b32 s{sR+1}, s{sVp+1}")
    reset_off()
    e(f"    v_mov_b32 v{vOff}, v{vVoff}")
    e(f"    s_mov_b32 s{sEv}, {iters}")
    if otl == 1:
        e(f"    global_load_dword v{vX+1}, v{vOo}, s[{sOutp}:{sOutp+1}]      ; warms the translation of the output page; value unused")
    e(f"    v_and_b32 v{vPk}, 3, v0")
    e(f"    v_and_b32 v{vP}, 60, v0")
    e(f"    v_lshl_add_u32 v{vPk}, v{vPk}, 6, v{vP}")
    e(f"    v_add_u32 v{vPk}, 64, v{vPk}")
    if kvb > 0:
        e(f"    s_max_u32 s{sIx}, s{sIx}, {kvb}")
    dispatch("k", list(range(NC)))
    e("L_kdone:")
    mile()
    Sl = vS + 4 * ((gpi - 1) & 1)
    e("    ; V phase reads the scores one key per lane: group 4*batch + (l&3), slot l>>2")
    e(f"    ds_read_b32 v{vSc}, v{vPk}")
    e(f"    ds_read_b32 v{vSc+1}, v{vPk} offset:256")
    fin_a(Sl)
    e(f"    s_mov_b32 s{sEv}, {2*iters-1-(1 if ramp else 0)}")
    fin_b(Sl, 0)
    e(f"    v_mov_b32 v{vLd}, v{vPk}")
    e(f"    v_max_f32_dpp v{vM}, v{vM}, v{vM} row_ror:4 {DPP}")
    e("    s_nop 1")
    e(f"    v_max_f32_dpp v{vM}, v{vM}, v{vM} row_ror:8 {DPP}")
    for x in xrow(vM, vT, "v_max_f32"):
        e(x)
    e(f"    v_mul_f32 v{vMt}, s{sC}, v{vM}")
    e(f"    v_max_f32 v{vMt}, v{vMt}, v{vTt}")
    e(f"    v_and_b32 v{vMt}, -2, v{vMt}")
    e("    s_waitcnt lgkmcnt(0)")
    e(f"    v_sub_f32 v{vTt}, v{vTt}, v{vMt}")
    e(f"    v_exp_f32 v{vTt}, v{vTt}")
    p_a()
    e(f"    v_mul_f32 v{vL}, 0x3c800000, v{vTt}")
    p_b(0)
    e(f"    v_mov_b32 v{vSc}, v{vSc+1}")
    p_c(0)
    for i in range(4):
        e(f"    v_mul_f32 v{vA0+i}, v{vA0+i}, v{vTt}")
    b1(0)
    dispatch("v", list(range(NC)))
    for c in range(NC):
        vbody(c)
        put_stubs()

    vMa = vQ
    vMb = vR + 32
    vOwn = vQ + 12

    def check(d):
        for k, a in enumerate((vM1, vM2, vM3)):
            e(f"    global_load_dwordx4 {r(d+4*k,4)}, v{a}, s[{sWs}:{sWs+1}] sc1")

    def valid(d, target):
        e(f"    v_bitop3_b32 v{vT}, 1, v{d+1}, v{vSn+1} bitop3:0x60")
        for k in range(1, 6):
            e(f"    v_bitop3_b32 v{vT}, v{vT}, v{d+1+2*k}, v{vSn+1+2*k} bitop3:0x60")
        e(f"    v_cmp_eq_u32 vcc, 0, v{vT}")
        e(f"    s_cbranch_vccz {target}")

    def finish(d):
        P = [vOwn, d, d + 4, d + 8]
        Wt = vA0
        T = vR
        if diag & 2:
            e(f"    v_add_f32 v{T}, v{P[0]}, v{P[1]}")
            e(f"    v_add_f32 v{T+1}, v{P[2]}, v{P[3]}")
            e(f"    v_add_f32 v{T+2}, v{P[0]+2}, v{P[1]+2}")
            e(f"    v_add_f32 v{T+3}, v{P[2]+2}, v{P[3]+2}")
            e(f"    v_add_f32 v{T}, v{T}, v{T+1}")
            e(f"    v_add_f32 v{T+2}, v{T+2}, v{T+3}")
            e(f"    v_cvt_pk_bf16_f32 v{T}, v{T}, v{T+2}")
            e(f"    global_store_dword v{vOo}, v{T}, s[{sOutp}:{sOutp+1}]")
            e("    s_endpgm")
            return
        if stamp == 5:
            e("    s_memrealtime s[70:71]")
        for k in range(3):
            e(f"    v_and_b32 v{d+1+4*k}, -2, v{d+1+4*k}")
        e(f"    v_max3_f32 v{vM}, v{vMt}, v{d+1}, v{d+5}")
        e(f"    v_max_f32 v{vM}, v{vM}, v{d+9}")
        for k in range(4):
            e(f"    v_sub_f32 v{Wt+k}, v{vMt if k == 0 else P[k]+1}, v{vM}")
        for k in range(4):
            e(f"    v_exp_f32 v{Wt+k}, v{Wt+k}")
        for k in range(4):
            e(f"    v_and_b32 v{P[k]+3}, -2, v{P[k]+3}")
        for k in range(4):
            sel = "op_sel_hi:[1,0]" if k % 2 == 0 else "op_sel:[0,1] op_sel_hi:[1,1]"
            e(f"    v_pk_mul_f32 {r(T+2*k,2)}, {r(P[k]+2,2)}, {r(Wt+(k&2),2)} {sel}")
        e(f"    v_pk_add_f32 {r(T,2)}, {r(T,2)}, {r(T+2,2)}")
        e(f"    v_pk_add_f32 {r(T+4,2)}, {r(T+4,2)}, {r(T+6,2)}")
        e(f"    v_pk_add_f32 {r(T,2)}, {r(T,2)}, {r(T+4,2)}")
        e(f"    v_rcp_f32 v{vL}, v{T+1}")
        for k in range(4):
            e(f"    v_mul_f32 v{T+8+k}, v{Wt+k}, v{P[k]}")
        e(f"    v_add_f32 v{T+8}, v{T+8}, v{T+9}")
        e(f"    v_add_f32 v{T+10}, v{T+10}, v{T+11}")
        e(f"    v_mul_f32 v{T}, v{T}, v{vL}")
        e(f"    v_add_f32 v{T+8}, v{T+8}, v{T+10}")
        e(f"    v_mul_f32 v{T+8}, v{T+8}, v{vL}")
        e(f"    v_cvt_pk_bf16_f32 v{T}, v{T+8}, v{T}")
        e(f"    global_store_dword v{vOo}, v{T}, s[{sOutp}:{sOutp+1}]")
        if stamp == 5:
            e("    s_memrealtime s[72:73]")
        if stamp:
            e("    s_waitcnt vmcnt(0)")
            e("    s_branch L_st")
        elif ms >= 0:
            e("    s_branch L_pd")
        else:
            e("    s_endpgm")

    e("L_vev:")
    mile()
    if ramp:
        w0, w1, st0 = [int(x) for x in ramp.split(".")]
        tr()
        for i in range(NR):
            pv(i)
            wn = w0 if i < st0 else min(w1, int(round(w0 + (w1 - w0) * (i - st0 + 1) / (NR - st0))))
            e(f"    s_waitcnt vmcnt({wn-1})" + (" lgkmcnt(0)" if i % 16 == 1 else ""))
            load(i)
            vwork(i, False)
        e(f"    v_add_u32 v{vLd}, {64*gpi}, v{vLd}")
    if otl == 2:
        e(f"    global_load_dword v{vX+1}, v{vOo}, s[{sOutp}:{sOutp+1}]      ; warms the translation of the output page; value unused")
    e(f"    v_not_b32 v{vSn+13}, v{vSn+13}")
    e(f"    v_not_b32 v{vSn+15}, v{vSn+15}")
    e(f"    v_and_or_b32 v{vOwn+1}, v{vSn+13}, 1, v{vMt}")
    tr()
    if ck1 == 0:
        check(vMa)
    red = [[f"    v_add_f32_dpp v{vL}, v{vL}, v{vL} row_ror:{sh} {DPP}"] for sh in (1, 2, 4, 8)]
    for sw in ("v_permlane16_swap_b32", "v_permlane32_swap_b32"):
        red += [[f"    v_mov_b32 v{vT}, v{vL}"], [f"    {sw} v{vL}, v{vT}"], [f"    v_add_f32 v{vL}, v{vL}, v{vT}"]]
    red += [[f"    v_and_b32 v{vL}, -2, v{vL}", f"    v_and_or_b32 v{vOwn+3}, v{vSn+15}, 1, v{vL}"]]
    Wmax = max(Ws) if not ramp else NR
    for i in range(NR):
        n = NR - 1 - i + (3 if i >= ck1 else 0) + (1 if otl == 2 else 0)
        if i == 1 or NR - 1 - i < Wmax or i >= 6:
            e(f"    s_waitcnt vmcnt({n})" + (" lgkmcnt(0)" if i == 1 else ""))
        pv(i, True)
        if i == ck1 - 1:
            check(vMa)
        if i >= 6 and red:
            for x in red.pop(0):
                e(x)
        vwork(i, True)
    assert not red
    mile()
    if stamp:
        e(f"    s_memrealtime s[{sSt+2}:{sSt+3}]")
    if dpoll:
        check(vMb)
        e(f"    s_mov_b32 s{sJ}, {NP}")
        e("    s_nop 1")
    else:
        e(f"    s_mov_b32 s{sJ}, {NP}")
        e("    s_nop 4")
    e(f"    v_permlane32_swap_b32 v{vA0}, v{vA0+2}")
    e(f"    v_permlane32_swap_b32 v{vA0+1}, v{vA0+3}")
    e(f"    v_permlane32_swap_b32 v{vA1}, v{vA1+2}")
    e(f"    v_permlane32_swap_b32 v{vA1+1}, v{vA1+3}")
    e("    s_nop 0")
    e(f"    v_add_f32 v{vOwn}, v{vA0}, v{vA1+2}")
    e(f"    v_add_f32 v{vOwn+2}, v{vA0+1}, v{vA1+3}")
    e("    ; fast path: plain store, seen at once by workgroups that share this L2; bounded number of looks")
    e(f"    global_store_dwordx4 v{vSl}, {r(vOwn,4)}, s[{sWs}:{sWs+1}]")
    if diag & 8:
        e("    s_endpgm")
    if stamp == 5:
        e("    s_memrealtime s[68:69]")
    if dpoll:
        e("    s_waitcnt vmcnt(4)")
        valid(vMa, "L_fin")
        check(vMa)
        e("    s_waitcnt vmcnt(4)")
        e("L_poll:")
        valid(vMb, "L_finb")
        if diag & 4:
            e("    s_waitcnt vmcnt(0)")
            valid(vMa, "L_fin")
            check(vMa)
            e("    s_waitcnt vmcnt(0)")
            valid(vMa, "L_fin")
            e("    s_endpgm")
        check(vMb)
        e("    s_waitcnt vmcnt(3)")
        valid(vMa, "L_fin")
        check(vMa)
        e(f"    s_sub_u32 s{sJ}, s{sJ}, 1")
        e("    s_waitcnt vmcnt(3)")
        e("    s_cbranch_scc0 L_poll")
    else:
        e("    s_waitcnt vmcnt(1)")
        e("L_poll:")
        valid(vMa, "L_fin")
        check(vMa)
        e(f"    s_sub_u32 s{sJ}, s{sJ}, 1")
        e("    s_waitcnt vmcnt(0)")
        e("    s_cbranch_scc0 L_poll")
    e(f"    s_add_u32 s{sWs}, s{sWs}, 0x80000")
    e(f"    s_addc_u32 s{sWs+1}, s{sWs+1}, 0")
    e(f"    global_store_dwordx4 v{vSl}, {r(vOwn,4)}, s[{sWs}:{sWs+1}] sc1")
    e(f"    s_lshl_b32 s{sTmp}, s{sHead}, 2")
    e(f"    v_mov_b32 v{vX}, s{sTmp}")
    e(f"    v_mov_b32 v{vX+1}, 1")
    e("    s_mov_b64 exec, 1")
    e("    s_waitcnt vmcnt(0)")
    e(f"    global_atomic_add v{vT}, v{vX}, v{vX+1}, s[{sDbg}:{sDbg+1}] sc0")
    e("    s_waitcnt vmcnt(0)")
    e(f"    v_readfirstlane_b32 s{sTmp}, v{vT}")
    e("    s_mov_b64 exec, -1")
    e(f"    s_cmp_lg_u32 s{sTmp}, 3")
    e(f"    s_cbranch_scc1 {'L_st' if stamp else 'L_end'}")
    check(vMa)
    e("    s_waitcnt vmcnt(0)")
    e("L_fin:")
    finish(vMa)
    if dpoll:
        e("L_finb:")
        finish(vMb)
    if stamp:
        e("L_st:")
        e(f"    s_memrealtime s[{sSt+4}:{sSt+5}]")
        e(f"    s_load_dwordx2 s[{sWs}:{sWs+1}], s[0:1], 64")
        e(f"    s_mov_b32 s{sSt+7}, s63")
        e(f"    s_getreg_b32 s{sSt+6}, hwreg(HW_REG_XCC_ID, 0, 4)")
        e(f"    s_getreg_b32 s{sTmp+1}, hwreg(HW_REG_HW_ID, 0, 24)")
        e(f"    s_lshl_b32 s{sTmp+1}, s{sTmp+1}, 8")
        e(f"    s_or_b32 s{sSt+6}, s{sSt+6}, s{sTmp+1}")
        e("    s_waitcnt vmcnt(0) lgkmcnt(0)")
        e(f"    s_lshl_b32 s{sTmp+2}, s2, 5")
        e(f"    s_add_u32 s{sTmp+2}, s{sTmp+2}, 0x1000000")
        e(f"    v_mov_b32 v{vP}, s{sTmp+2}")
        for i in range(8):
            e(f"    v_mov_b32 v{vQ+i}, s{sSt+i}")
        e("    s_mov_b64 exec, 1")
        e(f"    global_store_dwordx4 v{vP}, {r(vQ,4)}, s[{sWs}:{sWs+1}]")
        e(f"    global_store_dwordx4 v{vP}, {r(vQ+4,4)}, s[{sWs}:{sWs+1}] offset:16")
        e("    s_mov_b64 exec, -1")
        if stamp == 5:
            for k in range(3):
                e(f"    v_writelane_b32 v{vTr}, s{68+2*k}, {k}")
        if stamp in (2, 3, 5):
            e(f"    s_lshl_b32 s{sTmp+2}, s2, 8")
            e(f"    s_add_u32 s{sTmp+2}, s{sTmp+2}, 0x2000000")
            e(f"    v_lshlrev_b32 v{vP}, 2, v0")
            e(f"    v_add_u32 v{vP}, s{sTmp+2}, v{vP}")
            e(f"    global_store_dword v{vP}, v{vTr}, s[{sWs}:{sWs+1}]")
    if ms >= 0:
        e("L_pd:")
        e(f"    s_cmp_lg_u32 s2, {mwg}")
        e("    s_cbranch_scc1 L_end")
        e("    s_waitcnt lgkmcnt(0)")
        e(f"    s_sub_u32 s56, s56, s{sSt}")
        e(f"    s_sub_u32 s56, s56, {msb}")
        e("    s_max_i32 s56, s56, 0")
        e("    s_min_i32 s56, s56, 2000")
        e("    s_mul_i32 s56, s56, 10")
        e("    s_add_u32 s56, s56, 8000")
        e("L_pad:")
        e(f"    s_memrealtime s[{sSt+2}:{sSt+3}]")
        e("    s_waitcnt lgkmcnt(0)")
        e(f"    s_sub_u32 s{sSt+2}, s{sSt+2}, s{sSt}")
        e(f"    s_cmp_lt_u32 s{sSt+2}, s56")
        e("    s_cbranch_scc1 L_pad")
    e("L_end:")
    e("    s_endpgm")
    if pfs:
        e("L_tail:")
        e(f"    .fill ({2048 * pfb + pfo} - (L_tail - L_pc)) / 4, 4, 0xbf810000   ; keeps the code prefetch inside .text")
    e('.section .rodata,"a"')
    e(".p2align 6")
    e(f".amdhsa_kernel {NAME}_kernel")
    e(f"  .amdhsa_next_free_vgpr {nv}")
    e(f"  .amdhsa_next_free_sgpr {nsg}")
    e(f"  .amdhsa_accum_offset {(nv+3)//4*4}")
    e("  .amdhsa_group_segment_fixed_size 0")
    e("  .amdhsa_kernarg_size 72")
    e("  .amdhsa_user_sgpr_count 2")
    e("  .amdhsa_user_sgpr_kernarg_segment_ptr 1")
    e("  .amdhsa_system_sgpr_workgroup_id_x 1")
    e("  .amdhsa_float_denorm_mode_32 3")
    e(".end_amdhsa_kernel")
    if stamp == 2:
        e(f"; meta waves={NWG} iters={2*iters} every=1 bytes={1 << 29}")
    return "\n".join(o) + "\n"


if __name__ == "__main__":
    for spec in sys.argv[1:]:
        name, _, kv = spec.partition(":")
        kw = {}
        for p in kv.split(","):
            if p:
                k, v = p.split("=")
                kw[k] = v.replace("+", " ") if k in ("fl", "map", "W", "duty", "xr", "offs", "inc", "mfl", "ramp") else int(v, 0)
        path = f"cdna_kernels/{NAME}.s" if name == "main" else f"var/{name}.s"
        open(path, "w").write(gen(**kw))
```

```python
import math, struct, sys
from gen1 import NAME, HEADER, f2u


def gen(W="20.21.22.24", duty="80808080", offs="0.20", inc="0.1.9", mp=5, mstr=4, mfl="glc",
        fl="nt", stamp=0, nk0=4, NI=28, pfs=1, ck1=28, kvb=2, NP=16, dpoll=0, vm=1, ramp="", gx=0, gth=8, ginc=1, glen=0, gd=2, g0=0, free=0, diag=0, pre=1, pfo=1024, otl=0, gneg=0, k0=1, ms=-1, msb=0, mwg=0, refm=13,
        map="w3n9n4r0n1n2n3n0w4n5n6n7n8r1w1w2w7w5w6w0", xr="14w5", cmt=0):
    Ws = [int(x) for x in W.split(".")]
    NC = len(Ws)
    offs = [int(x) for x in offs.split(".")]
    inc = [int(x) for x in inc.split(".")]
    assert len(inc) == len(offs) + 1 and len(offs) <= 3 and offs == sorted(offs)
    NR, NWG, iters, gpi, ngrp = 32, 256, 32, 8, 256
    lds = (ngrp + 3) * 64
    toks = [map[i:i+2] for i in range(0, len(map), 2)]
    if len(toks) in (10, 16):
        toks = toks[:9] + ["n6", "n7", "n8", "n9"] + toks[9:]
    if len(toks) == 14:
        toks += [f"w{i}" for i in range(8) if f"w{i}" not in toks]
    pos = {t: 8 + i for i, t in enumerate(toks)}
    assert sorted(pos) == sorted(["r0", "r1"] + [f"w{i}" for i in range(8)] + [f"n{i}" for i in range(10)])
    assert free or all(t[0] == "w" for t in toks[14:])
    spl = [t for t in toks[:14] if t[0] == "w"]
    hdt = toks[14:]
    adr = spl
    if free:
        adr = [t for t in toks if t[0] == "w"]
        spl = ["w3", "w4"]
        hdt = ["w0", "w1", "w2", "w5", "w6", "w7"]
    hi = [pos[f"n{i}"] for i in range(5, 10)]
    himask = sum(1 << b for b in hi)
    xrs = [(int(t.split("w")[0]), int(t.split("w")[1])) for t in xr.split(".") if t]
    xrmask = sum(1 << p for p, _ in xrs)
    assert all(toks[p - 8][0] == "n" for p, _ in xrs)
    scatter = hi != sorted(hi)
    contiguous = hi == list(range(hi[0], hi[0] + 5)) and not xrs
    immm = 0xfff & ~xrmask

    def lowoff(n):
        return sum(((n >> i) & 1) << pos[f"n{i}"] for i in range(5))
    o = []
    e = o.append

    vOff, vVoff, vM1 = 1, 2, 3
    vTt, vT, vT2, vP, vPk, vL, vM, vMt = 4, 5, 6, 7, 8, 9, 10, 11
    vMask = 12
    vS = 16
    vB1, vB2 = 16, 20
    vA0, vA1 = 24, 28
    vQ = 32
    vSc = 48
    vM2, vM3 = 50, 51
    vSl, vOo = 52, 53
    vX = 54
    vSn = 56
    vLd, vMad, vMs, vMn = 72, 73, 74, 75
    vGad, vGs, vGn, vG = 76, 77, 78, 79
    vK = [[80, 81, 82], [83, 84, 85]]
    vR = 88
    nv = vR + 4 * NR
    vTr = nv
    if stamp in (2, 3, 5):
        nv += 1
    sR = 8
    sT2, sNx, sXr, sSp = 12, 13, 14, 15
    sOff, sHi, sC, sHead, sSplit, sJ, sIx, sMk = 16, 17, 18, 19, 20, 21, 22, 23
    sQp, sKp, sVp, sKtp, sVtp, sMp, sOutp, sDbg, sWs = 24, 26, 28, 30, 32, 34, 36, 38, 40
    sTmp = 42
    sMaskv, sAcc, sDuty, sMo = 48, 49, 50, 51
    sSt = 52
    sEx = 4
    sCell = [3, 6, 7]
    sMb = 64
    sEv = 66
    sGb, sGr, sGw = 94, 96, 97
    nsg = 100 if (stamp in (3, 5) or gx) else 68
    glen = glen or gx
    pst = [0]

    msn = [0]

    def mile():
        if msn[0] == ms:
            e("    s_memrealtime s[56:57]")
        msn[0] += 1

    def pstamp():
        mile()
        if stamp == 3:
            e(f"    s_memrealtime s[{68+2*pst[0]}:{69+2*pst[0]}]")
            pst[0] += 1

    def r(b, n):
        return f"v[{b}:{b+n-1}]"
    DPP = "row_mask:0xf bank_mask:0xf"

    def gather(dst, items, tmp):
        runs = []
        for wb, db in sorted(items):
            if runs and runs[-1][0] + runs[-1][2] == wb and runs[-1][1] + runs[-1][2] == db:
                runs[-1][2] += 1
            else:
                runs.append([wb, db, 1])
        for k, (wb, db, n) in enumerate(runs):
            t = dst if k == 0 else tmp
            e(f"    s_bfe_u32 s{t}, s2, {hex((n << 16) | wb)}")
            if db:
                e(f"    s_lshl_b32 s{t}, s{t}, {db}")
            if k:
                e(f"    s_xor_b32 s{dst}, s{dst}, s{t}")

    e(HEADER.rstrip())
    e(f"; @launch grid=({NWG},1,1) block=(64,1,1) lds={lds}")
    if cmt:
        e(open("notes.txt").read().rstrip())
    e('.amdgcn_target "amdgcn-amd-amdhsa--gfx950"')
    e(".text")
    e(f".globl {NAME}_kernel")
    e(".p2align 8")
    e(f".type {NAME}_kernel,@function")
    e(f"{NAME}_kernel:")
    if stamp or ms >= 0:
        e(f"    s_memrealtime s[{sSt}:{sSt+1}]")
    e(f"    s_load_dwordx16 s[{sQp}:{sQp+15}], s[0:1], 0")
    e(f"    s_load_dwordx2 s[{sWs}:{sWs+1}], s[0:1], 64")
    e(f"    s_cmp_ge_u32 s2, {NWG}")
    e("    s_cbranch_scc1 L_end")
    e("    ; head index, byte offset of this split inside a head, order mask")
    gather(sHead, [(int(t[1]), i) for i, t in enumerate(hdt)], sTmp)
    gather(sSp, [(int(t[1]), pos[t]) for t in adr], sTmp)
    if xrs:
        gather(sXr, [(w, p) for p, w in xrs], sTmp)
    e(f"    v_lshrrev_b32 v{vT}, 4, v0")
    e(f"    v_lshlrev_b32 v{vT}, 6, v{vT}")
    e(f"    v_and_b32 v{vT2}, 3, v0")
    e(f"    v_lshl_add_u32 v{vT}, v{vT2}, 4, v{vT}")
    if pos["r1"] == pos["r0"] + 1:
        e(f"    v_bfe_u32 v{vT2}, v0, 2, 2")
        e(f"    v_lshl_add_u32 v{vOff}, v{vT2}, {pos['r0']}, v{vT}")
    else:
        e(f"    v_bfe_u32 v{vT2}, v0, 2, 1")
        e(f"    v_lshl_add_u32 v{vOff}, v{vT2}, {pos['r0']}, v{vT}")
        e(f"    v_bfe_u32 v{vT2}, v0, 3, 1")
        e(f"    v_lshl_add_u32 v{vOff}, v{vT2}, {pos['r1']}, v{vOff}")
    e(f"    v_add_u32 v{vOff}, s{sSp}, v{vOff}")
    e(f"    s_lshl_b32 s{sTmp}, s{sHead}, 22" if not free else f"    s_mov_b32 s{sTmp}, 0")

    def reset_off():
        e(f"    s_mov_b32 s{sOff}, {'s%d' % sXr if xrs else 0}")
        if not contiguous:
            e(f"    s_mov_b32 s{sHi}, 0")
    reset_off()
    e(f"    s_mov_b32 s{sR+2}, {hex(1 << 28) if free else '0x400000'}")
    e(f"    s_mov_b32 s{sR+3}, 0x20000")
    gather(sSplit, [(int(t[1]), i) for i, t in enumerate(spl)], sTmp + 1)
    e(f"    s_lshl_b32 s{sTmp+1}, s{sSplit}, 10")
    e(f"    s_lshl_b32 s{sTmp+2}, s{sHead}, 8")
    e(f"    s_lshl_b32 s{sTmp+3}, s{sHead}, 12")
    e(f"    v_lshlrev_b32 v{vPk}, 2, v0")
    e(f"    v_lshlrev_b32 v{vSl}, 4, v0")
    e(f"    v_and_b32 v{vVoff}, 0xf0, v{vSl}")
    e(f"    v_bfe_u32 v{vP}, v0, 4, 1")
    e(f"    v_lshl_add_u32 v{vP}, v{vP}, 3, v{vVoff}       ; v_tree offset: (l&15)*16 + ((l>>4)&1)*8")
    e(f"    v_add_u32 v{vSl}, s{sTmp+1}, v{vSl}")
    e("    s_waitcnt lgkmcnt(0)")
    pstamp()
    e(f"    s_add_u32 s{sR}, s{sKp}, s{sTmp}")
    e(f"    s_addc_u32 s{sR+1}, s{sKp+1}, 0")

    def load(i):
        lo = lowoff(i)
        e(f"    buffer_load_dwordx4 {r(vR+4*i,4)}, v{vOff}, s[{sR}:{sR+3}], s{sOff} offen offset:{lo & immm} {fl}")
        cur = lo & ~immm
        if i < NR - 1:
            d = cur ^ (lowoff(i + 1) & ~immm)
            if d:
                e(f"    s_xor_b32 s{sOff}, s{sOff}, {hex(d)}")
            elif i % 4 == 3:
                e("    s_nop 0")
            if scatter and 8 <= i < 14:
                k = i - 8
                if k == 0:
                    e(f"    s_add_u32 s{sHi}, s{sHi}, 1")
                    e(f"    s_mov_b32 s{sNx}, {'s%d' % sXr if xrs else 0}")
                else:
                    e(f"    s_bfe_u32 s{sT2}, s{sHi}, {hex((1 << 16) | (k - 1))}")
                    e(f"    s_lshl_b32 s{sT2}, s{sT2}, {hi[k-1]}")
                    e(f"    s_xor_b32 s{sNx}, s{sNx}, s{sT2}")
            if not scatter and not contiguous and i == 11:
                e(f"    s_or_b32 s{sHi}, s{sHi}, {hex(~himask & 0xffffffff)}")
                e(f"    s_add_u32 s{sHi}, s{sHi}, 1")
                e(f"    s_and_b32 s{sHi}, s{sHi}, {hex(himask)}")
        elif contiguous:
            e(f"    s_add_u32 s{sOff}, s{sOff}, {hex(((1 << hi[0]) - cur) & 0xffffffff)}")
        elif scatter:
            e(f"    s_mov_b32 s{sOff}, s{sNx}")
        elif xrs:
            e(f"    s_xor_b32 s{sOff}, s{sHi}, s{sXr}")
        else:
            e(f"    s_mov_b32 s{sOff}, s{sHi}")

    for i in range(nk0):
        load(i)
    if ms == 10:
        e("    s_memrealtime s[56:57]")
    for p in (sQp, sKtp, sVtp):
        e(f"    s_add_u32 s{p}, s{p}, s{sTmp+2}")
        e(f"    s_addc_u32 s{p+1}, s{p+1}, 0")
    e(f"    s_load_dword s{sMaskv}, s[{sMp}:{sMp+1}], 0")
    e(f"    global_load_dwordx4 {r(vS,4)}, v{vT}, s[{sQp}:{sQp+1}]")
    e(f"    global_load_dword v{vA0}, v{vPk}, s[{sQp}:{sQp+1}]")
    e(f"    global_load_dword v{vA0+1}, v{vPk}, s[{sKtp}:{sKtp+1}]")
    e(f"    global_load_dwordx2 {r(vX,2)}, v{vP}, s[{sVtp}:{sVtp+1}]")
    e(f"    s_getreg_b32 s{sIx}, hwreg(HW_REG_XCC_ID, 0, 3)")
    e(f"    s_mul_i32 s{sT2}, s{sIx}, {max(4096, 64*mstr)+256}")
    e(f"    s_add_u32 s{sT2}, s{sT2}, 0x40000")
    e(f"    s_add_u32 s{sMb}, s{sWs}, s{sT2}")
    e(f"    s_addc_u32 s{sMb+1}, s{sWs+1}, 0")
    if gx:
        e(f"    s_add_u32 s{sGb}, s{sWs}, 0x100000")
        e(f"    s_addc_u32 s{sGb+1}, s{sWs+1}, 0")
    e(f"    v_lshlrev_b32 v{vMad}, {int(math.log2(mstr))}, v0")
    e(f"    s_add_u32 s{sWs}, s{sWs}, s{sTmp+3}")
    e(f"    s_addc_u32 s{sWs+1}, s{sWs+1}, 0")
    e(f"    global_load_dword v{vMs}, v{vMad}, s[{sMb}:{sMb+1}] sc1")
    e(f"    v_xor_b32 v{vM1}, 0x400, v{vSl}")
    e(f"    v_xor_b32 v{vM2}, 0x800, v{vSl}")
    e(f"    v_xor_b32 v{vM3}, 0xc00, v{vSl}")
    for k, a in enumerate((vM1, vM2, vM3, vSl)):
        e(f"    global_load_dwordx4 {r(vSn+4*k,4)}, v{a}, s[{sWs}:{sWs+1}] sc1")
    nsmall = 9
    e(f"    s_lshr_b32 s{sAcc}, s2, 3")
    if gx:
        e(f"    s_mul_i32 s{sGr}, s{sAcc}, {refm}")
        e(f"    s_add_u32 s{sGr}, s{sGr}, 5")
        e(f"    s_and_b32 s{sGr}, s{sGr}, 31")
        e(f"    s_lshl_b32 s{sT2}, 1, s{sGr}")
        e(f"    v_mul_u32_u24 v{vGad}, 4352, v0")
        e(f"    s_mov_b32 exec_lo, s{sT2}")
        e(f"    s_mov_b32 exec_hi, s{sT2}")
        e(f"    global_load_dword v{vGs}, v{vGad}, s[{sGb}:{sGb+1}] sc1")
        e("    s_mov_b64 exec, -1")
        nsmall += 1
    if pfs:
        e(f"    s_getpc_b64 s[{sTmp+4}:{sTmp+5}]")
        e("L_pc:")
        pfb = pfs if pfs >= 8 else 4 << pfs
        e(f"    s_mul_i32 s{sT2}, s{sAcc}, {64*pfb}")
        e(f"    v_mad_u32_u24 v{vMn}, v0, {pfb}, s{sT2}")
        e(f"    global_load_dword v{vSc}, v{vMn}, s[{sTmp+4}:{sTmp+5}] offset:{pfo}")
        nsmall += 1
    if ms == 11:
        e("    s_memrealtime s[56:57]")
    for i in range(nk0, NI):
        load(i)
    pstamp()
    e(f"    s_add_u32 s{sVp}, s{sVp}, s{sTmp}")
    e(f"    s_addc_u32 s{sVp+1}, s{sVp+1}, 0")
    e(f"    s_add_u32 s{sOutp}, s{sOutp}, s{sTmp+2}")
    e(f"    s_addc_u32 s{sOutp+1}, s{sOutp+1}, 0")
    e(f"    v_lshrrev_b32 v{vOo}, 5, v0")
    e(f"    v_lshl_add_u32 v{vOo}, v{vOo}, 2, v{vP}        ; output offset")
    e(f"    v_bfe_u32 v{vT}, v0, 4, 1")
    e(f"    v_lshl_add_u32 v{vVoff}, v{vT}, {pos['r0']}, v{vVoff}")
    e(f"    v_lshrrev_b32 v{vT}, 5, v0")
    e(f"    v_lshl_add_u32 v{vVoff}, v{vT}, {pos['r1']}, v{vVoff}")
    e(f"    v_add_u32 v{vVoff}, s{sSp}, v{vVoff}")
    c = (128 ** -0.5) * math.log2(math.e)
    e(f"    s_mov_b32 s{sC}, {hex(f2u(c))}")
    e(f"    v_mov_b32 v{vM}, 0xff800000")
    e(f"    v_and_b32 v{vLd}, 60, v0                      ; score slots: group*64 + (lane>>2)*4, slot 0 is a dummy")
    e(f"    v_and_b32 v{vT}, 1, v0")
    e(f"    v_lshlrev_b32 v{vT}, 4, v{vT}")
    e(f"    v_mov_b32 v{vPk}, 0xffff")
    e(f"    v_lshlrev_b32 v{vPk}, v{vT}, v{vPk}")
    e(f"    v_bfe_u32 v{vT}, v0, 1, 2")
    for i in range(4):
        e(f"    v_cmp_eq_u32 vcc, {i}, v{vT}")
        e(f"    v_mov_b32 v{vS+4+i}, 0xff800000          ; 'previous group' of group 0")
        e(f"    v_mov_b32 v{vA1+i}, 0")
        e(f"    v_cndmask_b32 v{vMask+i}, 0, v{vPk}, vcc")
    e(f"    s_lshr_b32 s{sTmp}, s{sHead}, 5")
    e(f"    s_lshl_b32 s{sTmp}, s{sTmp}, 4")
    e("    s_waitcnt lgkmcnt(0)")
    e(f"    s_lshr_b32 s{sMaskv}, s{sMaskv}, s{sTmp}")
    e(f"    s_lshl_b32 s{sMaskv}, s{sMaskv}, 16")
    e(f"    v_sub_f32 v{vL}, s{sMaskv}, 1.0               ; mask - 1")
    e(f"    v_mul_f32 v{vL}, {hex(f2u(1e9*math.log2(math.e)))}, v{vL}   ; (1-mask)*-1e9*log2(e)")
    e(f"    s_cmp_eq_u32 s{sSplit}, 0")
    e(f"    s_cselect_b32 s{sTmp}, 0, 0xff800000")
    e(f"    v_add_f32 v{vL}, s{sTmp}, v{vL}")
    dv = [int(ch, 32) for ch in duty]
    if dv == dv[:2] * 4:
        e(f"    s_bitcmp1_b32 s{sIx}, 0")
        e(f"    s_cselect_b32 s{sDuty}, {dv[1]}, {dv[0]}")
    else:
        tab = sum(d << (5 * i) for i, d in enumerate(dv))
        e(f"    s_mov_b32 s{sTmp+2}, {hex(tab & 0xffffffff)}")
        e(f"    s_mov_b32 s{sTmp+3}, {hex(tab >> 32)}")
        e(f"    s_mul_i32 s{sTmp}, s{sIx}, 5")
        e(f"    s_lshr_b64 s[{sTmp+2}:{sTmp+3}], s[{sTmp+2}:{sTmp+3}], s{sTmp}")
        e(f"    s_and_b32 s{sDuty}, s{sTmp+2}, 31")
    e(f"    ; workgroup row r = wg>>3 publishes the markers of iterations ({refm}r+5)&31 and that + 32")
    e(f"    s_mul_i32 s{sTmp}, s{sAcc}, {refm}")
    e(f"    s_add_u32 s{sTmp}, s{sTmp}, 5")
    e(f"    s_and_b32 s{sTmp}, s{sTmp}, 31")
    e(f"    s_lshl_b64 s[{sEx}:{sEx+1}], 1, s{sTmp}")
    sites = []
    for k, of in enumerate(offs):
        d, st = divmod(mp + of, NR)
        e(f"    s_add_u32 s{sCell[k]}, s{sTmp}, {d}")
        sites.append((st, k))
    if gx:
        e(f"    s_lshr_b32 s{sTmp+1}, s{sGr}, {int(math.log2(gx))}")
        e(f"    s_mul_i32 s{sTmp+1}, s{sTmp+1}, 3")
        e(f"    s_xor_b32 s{sTmp+1}, s{sTmp+1}, s2")
        e(f"    s_and_b32 s{sTmp+2}, s{sGr}, {gx-1}")
        e(f"    s_cselect_b32 s{sGr}, 0x100, s{sGr}")
        e(f"    s_and_b32 s{sTmp+1}, s{sTmp+1}, 7")
        e(f"    s_cselect_b32 s{sGw}, 0x100, s{sGr}")
        if gneg:
            e(f"    s_cmp_eq_u32 s{sGr}, 0")
            e(f"    s_cselect_b32 s{sGr}, 32, s{sGr}")
        gdw = (mp - 1 + gth) // NR
        assert gdw in (0, -1)
        if gdw:
            e(f"    s_sub_u32 s{sGw}, s{sGw}, 1")
            e(f"    s_cselect_b32 s{sGw}, 31, s{sGw}")
    e(f"    s_and_b32 s{sAcc}, s{sAcc}, 15")
    e(f"    s_mov_b32 s{sJ}, 0")
    e(f"    s_mov_b32 s{sMo}, 0")
    e(f"    s_mov_b32 s{sEv}, {iters-1}")
    if stamp:
        e("    s_mov_b32 s63, 0")
    lvl = [0, 1, 2, 4][:len(inc)]
    inctab = sum(min(v, 15) << (8 * l) for v, l in zip(inc, lvl) if l < 4)
    stubs = []

    def control(i, tag):
        for st, k in sites:
            if st == i:
                e(f"    s_cmp_eq_u32 s{sJ}, s{sCell[k]}")
                e(f"    s_cbranch_scc1 L_pub_{tag}_{k}")
                e(f"L_pubx_{tag}_{k}:")
                stubs.append((tag, k))
        if gx:
            for nm, st, reg in (("gr", mp - 1, sGr), ("gw", (mp - 1 + gth) % NR, sGw), ("ge", 30, sGr)):
                if st == i:
                    e(f"    s_cmp_eq_u32 s{sJ}, s{reg}")
                    e(f"    s_cbranch_scc1 L_pub_{tag}_{nm}")
                    e(f"L_pubx_{tag}_{nm}:")
                    stubs.append((tag, nm))
        if i == mp and not vm:
            e(f"    s_load_dword s{sMk}, s[{sMb}:{sMb+1}], s{sMo} {mfl}")
        if i == mp and vm:
            e(f"    global_load_dword v{vX}, v{vMad}, s[{sMb}:{sMb+1}] sc1")
        if i == 29 and vm:
            e(f"    v_readlane_b32 s{sMk}, v{vX}, s{sJ}")
        if i == 27:
            e(f"    v_readlane_b32 s{sTmp}, v{vMs}, s{sJ}")
            e(f"    s_add_u32 s{sAcc}, s{sAcc}, s{sDuty}")
            e(f"    s_lshr_b32 s{sIx}, s{sAcc}, 4")
            e(f"    s_and_b32 s{sAcc}, s{sAcc}, 15")
        if i == 28 and not vm:
            e(f"    s_add_u32 s{sMo}, s{sMo}, {mstr}")
        if i == (30 if vm else 29):
            e(f"    s_xor_b32 s{sTmp}, s{sTmp}, s{sMk}")
            if gx:
                e(f"    s_bitcmp1_b32 s{sTmp}, 16")
                e(f"    s_cselect_b32 s{sTmp+1}, {0 if gneg else ginc}, {ginc if gneg else 0}")
                e(f"    s_add_u32 s{sIx}, s{sIx}, s{sTmp+1}")
                if stamp:
                    e(f"    s_bfe_u32 s{sTmp+1}, s{sTmp}, 0x10010")
                    e(f"    s_add_u32 s63, s63, s{sTmp+1}")
                e(f"    s_and_b32 s{sTmp}, s{sTmp}, 0xffff")
            e(f"    s_bcnt1_i32_b32 s{sTmp}, s{sTmp}")
            if len(offs) == 3:
                e(f"    s_cmp_gt_u32 s{sTmp}, 16")
                e(f"    s_cselect_b32 s{sIx}, {NC-1}, s{sIx}")
        if i == 30:
            e(f"    s_lshr_b32 s{sTmp}, {hex(inctab)}, s{sTmp}")
            e(f"    s_and_b32 s{sTmp}, s{sTmp}, 15")
            e(f"    s_add_u32 s{sIx}, s{sIx}, s{sTmp}")
            if stamp and not gx:
                e(f"    s_min_u32 s{sIx}, s{sIx}, {NC-1}")
                e(f"    s_add_u32 s63, s63, s{sIx}")

    def dispatch(ph, order):
        for c in order[:-1]:
            e(f"    s_cmp_{'ge' if c == NC-1 else 'eq'}_u32 s{sIx}, {c}")
            e(f"    s_cbranch_scc1 L_{ph}{c}")
        e(f"    s_branch L_{ph}{order[-1]}")

    def endit(ph):
        e(f"    v_add_u32 v{vLd}, {64*gpi}, v{vLd}")
        e(f"    s_add_u32 s{sJ}, s{sJ}, 1")
        e(f"    s_cmp_eq_u32 s{sJ}, s{sEv}")
        e(f"    s_cbranch_scc1 L_{ph}ev")
        dispatch(ph, [1, 2, 0] + list(range(3, NC)) if NC > 3 else list(range(NC)))

    def xrow(reg, tmp, op):
        L = []
        for sw in ("v_permlane16_swap_b32", "v_permlane32_swap_b32"):
            L += [f"    v_mov_b32 v{tmp}, v{reg}", "    s_nop 1", f"    {sw} v{reg}, v{tmp}", "    s_nop 1",
                  f"    {op} v{reg}, v{reg}, v{tmp}"]
        return L

    def tr():
        if stamp == 2:
            e("    s_waitcnt lgkmcnt(0)")
            e(f"    v_writelane_b32 v{vTr}, s60, m0")
            e("    s_add_u32 m0, m0, 1")
            e("    s_memrealtime s[60:61]")

    def fin_a(S):
        e(f"    v_mov_b32_dpp v{vT}, v{S} quad_perm:[0,0,0,0] {DPP}")
        e(f"    v_mov_b32_dpp v{vT2}, v{S+2} quad_perm:[2,2,2,2] {DPP}")

    def fin_b(S, off):
        e(f"    v_add_f32_dpp v{vT}, v{S+1}, v{vT} quad_perm:[1,1,1,1] {DPP}")
        e(f"    v_add_f32_dpp v{vT2}, v{S+3}, v{vT2} quad_perm:[3,3,3,3] {DPP}")
        e(f"    v_add_f32 v{vT}, v{vT}, v{vT2}")
        e(f"    v_max_f32 v{vM}, v{vM}, v{vT}")
        e(f"    ds_write_b32 v{vLd}, v{vT} offset:{off}")

    def qp(c):
        return f"quad_perm:[{c},{c},{c},{c}] {DPP}"

    def b1(g, vB1=vB1):
        k, c = vK[(g >> 2) & 1], g & 3
        e(f"    v_and_b32_dpp v{vB1}, v{k[0]}, v{vMask} {qp(c)}")
        e(f"    v_and_b32_dpp v{vB1+1}, v{k[0]}, v{vMask+1} {qp(c)}")
        e(f"    v_and_b32_dpp v{vB1+2}, v{k[1]}, v{vMask+2} {qp(c)}")
        e(f"    v_and_b32_dpp v{vB1+3}, v{k[1]}, v{vMask+3} {qp(c)}")

    def b2(g, vB2=vB2):
        k, c = vK[(g >> 2) & 1], g & 3
        e(f"    v_and_b32_dpp v{vB2}, v{k[2]}, v{vMask} {qp(c)}")
        e(f"    v_and_b32_dpp v{vB2+1}, v{k[2]}, v{vMask+1} {qp(c)}")
        e(f"    v_and_b32_dpp v{vB2+2}, v{k[0]}, v{vMask+2} {qp(c)}")
        e(f"    v_and_b32_dpp v{vB2+3}, v{k[0]}, v{vMask+3} {qp(c)}")

    def p_a():
        e(f"    v_fma_f32 v{vP}, v{vSc}, s{sC}, -v{vMt}")
        e(f"    v_exp_f32 v{vP}, v{vP}")

    def p_b(bt):
        e(f"    v_cvt_pk_bf16_f32 v{vK[bt][0]}, v{vP}, v{vP}")
        e(f"    v_add_f32 v{vL}, v{vL}, v{vP}")

    def p_c(bt):
        e(f"    v_mov_b32_dpp v{vK[bt][1]}, v{vK[bt][0]} row_ror:4 {DPP}")
        e(f"    v_mov_b32_dpp v{vK[bt][2]}, v{vK[bt][0]} row_ror:12 {DPP}")

    def pv(i, drain=False):
        u = i % 4
        A = vA0 if u % 2 == 0 else vA1
        Pm = vB1 if u < 2 else vB2
        if drain and pre and i >= 24:
            Pm = vR + 48 + 4 * ((i - 24) // 2)
        e(f"    v_mfma_f32_16x16x32_bf16 {r(A,4)}, {r(Pm,4)}, {r(vR+4*i,4)}, {r(A,4)}")

    def vwork(i, drain):
        g, u = divmod(i, 4)
        bt, j = divmod(i, 16)
        if drain and pre and i in (17, 19, 21, 23):
            k = (i - 17) // 2
            (b1, b2)[k & 1](6 + (k >> 1), vR + 48 + 4 * k)
        if u == 0 and not (drain and pre and g >= 6):
            b2(g)
        if u == 2 and not (drain and g >= (5 if pre else 7)):
            b1(g + 1)
        if drain and bt == 1:
            return
        if j == 1:
            p_a()
            if not drain:
                e(f"    ds_read_b32 v{vSc}, v{vLd} offset:{256*(bt+2)}")
        if j == 3:
            p_b(bt ^ 1)
        if j == 5:
            p_c(bt ^ 1)

    quad = [0, 2, 1, 3]
    pstamp()
    for j in range(NI, NR):
        need = j - NI
        e(f"    s_waitcnt vmcnt({NI-1+(nsmall if need < nk0 else 0)})")
        if ms == 12 and need == 0:
            e("    s_memrealtime s[56:57]")
        load(j)
    e(f"    v_bfe_u32 v{vT2}, v0, 2, 2")
    e(f"    s_waitcnt vmcnt({NR-nk0+nsmall-4})")
    pstamp()
    for u in range(4):
        e(f"    v_cmp_eq_u32 vcc, {quad[u]}, v{vT2}")
        if u == 0:
            e(f"    v_lshlrev_b32 v{vP}, 16, v{vA0}")
            e(f"    v_lshlrev_b32 v{vPk}, 16, v{vA0+1}")
        elif u == 1:
            e(f"    v_mul_f32 v{vTt}, v{vP}, v{vPk}")
            e(f"    v_and_b32 v{vP}, 0xffff0000, v{vA0}")
        elif u == 2:
            e(f"    v_and_b32 v{vPk}, 0xffff0000, v{vA0+1}")
            e(f"    v_fmac_f32 v{vTt}, v{vP}, v{vPk}")
        else:
            e(f"    v_add_f32_dpp v{vTt}, v{vTt}, v{vTt} row_ror:1 {DPP}")
            e(f"    v_lshlrev_b32 v{vA0}, 16, v{vX}")
        for i in range(4):
            e(f"    v_cndmask_b32 v{vQ+4*u+i}, 0, v{vS+i}, vcc")
    e(f"    v_add_f32_dpp v{vTt}, v{vTt}, v{vTt} row_ror:2 {DPP}")
    e(f"    v_and_b32 v{vA0+1}, 0xffff0000, v{vX}")
    e(f"    v_lshlrev_b32 v{vA0+2}, 16, v{vX+1}")
    e(f"    v_add_f32_dpp v{vTt}, v{vTt}, v{vTt} row_ror:4 {DPP}")
    e(f"    v_and_b32 v{vA0+3}, 0xffff0000, v{vX+1}")
    e("    s_nop 0")
    e(f"    v_add_f32_dpp v{vTt}, v{vTt}, v{vTt} row_ror:8 {DPP}")
    for x in xrow(vTt, vT, "v_add_f32"):
        e(x)
    e(f"    v_fma_f32 v{vTt}, v{vTt}, s{sC}, v{vL}")
    e(f"    s_waitcnt vmcnt({min(NR-1, NR-nk0+nsmall-5) if nk0 == 0 else NR-nk0+nsmall-5})")
    e(f"    v_not_b32 v{vMn}, v{vMs}")
    pstamp()
    if stamp == 2:
        e(f"    v_mov_b32 v{vTr}, 0")
        e("    s_mov_b32 m0, 0")
        e("    s_memrealtime s[60:61]")
    if stamp == 3:
        e(f"    v_mov_b32 v{vTr}, 0")
        e("    s_waitcnt lgkmcnt(0)")
        for k in range(pst[0]):
            e(f"    v_writelane_b32 v{vTr}, s{68+2*k}, {k}")

    def wcount(i, Wn):
        if not vm:
            return Wn - 1
        n = Wn - 1 + (1 if mp < i < mp + Wn else 0)
        if i == 29:
            n = min(n, 29 - mp - 1)
        return n

    def kbody(c):
        e(f"L_k{c}:                                          ; K iteration, {Ws[c]} loads in flight")
        tr()
        for i in range(NR):
            g, u = divmod(i, 4)
            S = vS + 4 * (g & 1)
            Sp = vS + 4 * ((g + 1) & 1)
            cc = "0" if u == 0 else r(S, 4)
            e(f"    v_mfma_f32_16x16x32_bf16 {r(S,4)}, {r(vR+4*i,4)}, {r(vQ+4*u,4)}, {cc}")
            e(f"    s_waitcnt vmcnt({wcount(i, Ws[c])})" + (" lgkmcnt(0)" if i == 29 and not vm else ""))
            load(i)
            control(i, f"k{c}")
            if u == 1:
                fin_a(Sp)
            if u == 2:
                fin_b(Sp, 64 * g)
        endit("k")

    def vbody(c):
        e(f"L_v{c}:                                          ; V iteration, {Ws[c]} loads in flight")
        tr()
        for i in range(NR):
            pv(i)
            e(f"    s_waitcnt vmcnt({wcount(i, Ws[c])})" + (" lgkmcnt(0)" if i % 16 == 1 else ""))
            load(i)
            control(i, f"v{c}")
            vwork(i, False)
        endit("v")

    def put_stubs():
        for tag, k in stubs:
            e(f"L_pub_{tag}_{k}:")
            if k == "gr":
                e(f"    s_lshl_b64 exec, 1, s{sJ}")
                e(f"    global_load_dword v{vG}, v{vGad}, s[{sGb}:{sGb+1}] sc1")
                e("    s_mov_b64 exec, -1")
                e(f"    s_branch L_pubx_{tag}_{k}")
                continue
            if k == "gw":
                e(f"    v_not_b32 v{vGn}, v{vGs}")
                e(f"    s_lshl_b64 exec, {2 if gdw else 1}, s{sJ}")
                e(f"    global_store_dword v{vGad}, v{vGn}, s[{sGb}:{sGb+1}] sc1")
                e("    s_mov_b64 exec, -1")
                e(f"    s_add_u32 s{sGw}, s{sGw}, 32")
                e(f"    s_branch L_pubx_{tag}_{k}")
                continue
            if k == "ge":
                e(f"    v_cmp_ne_u32 vcc, v{vG}, v{vGs}")
                e(f"    s_add_u32 s{sGr}, s{sGr}, 32")
                e(f"    s_bitcmp1_b64 vcc, s{sJ}")
                e(f"    s_cbranch_scc{1 if gneg else 0} L_pubx_{tag}_{k}")
                e(f"    s_mov_b64 vcc, {((1 << glen) - 1) << gd}")
                e(f"    s_lshl_b64 exec, vcc, s{sJ}")
                e(f"    s_cbranch_scc0 L_pube_{tag}")
                e(f"    global_store_byte_d16_hi v{vMad}, v{vMn}, s[{sMb}:{sMb+1}] offset:2")
                e(f"L_pube_{tag}:")
                e("    s_mov_b64 exec, -1")
                e(f"    s_branch L_pubx_{tag}_{k}")
                continue
            e(f"    s_mov_b64 exec, s[{sEx}:{sEx+1}]")
            op = ("global_store_byte", "global_store_short", "global_store_dword")[k]
            e(f"    {op} v{vMad}, v{vMn}, s[{sMb}:{sMb+1}]")
            e("    s_mov_b64 exec, -1")
            e(f"    s_add_u32 s{sCell[k]}, s{sCell[k]}, 32")
            if k == len(offs) - 1:
                e(f"    s_lshl_b64 s[{sEx}:{sEx+1}], s[{sEx}:{sEx+1}], 32")
            e(f"    s_branch L_pubx_{tag}_{k}")
        stubs.clear()

    korder = [k0] + [c for c in range(NC) if c != k0]
    for c in korder:
        kbody(c)
        put_stubs()
    e("L_kev:")
    e(f"    s_cmp_eq_u32 s{sJ}, {iters}")
    e("    s_cbranch_scc1 L_kdone")
    e(f"    s_mov_b32 s{sR}, s{sVp}")
    e(f"    s_mov_b32 s{sR+1}, s{sVp+1}")
    reset_off()
    e(f"    v_mov_b32 v{vOff}, v{vVoff}")
    e(f"    s_mov_b32 s{sEv}, {iters}")
    if otl == 1:
        e(f"    global_load_dword v{vX+1}, v{vOo}, s[{sOutp}:{sOutp+1}]      ; warms the translation of the output page; value unused")
    e(f"    v_and_b32 v{vPk}, 3, v0")
    e(f"    v_and_b32 v{vP}, 60, v0")
    e(f"    v_lshl_add_u32 v{vPk}, v{vPk}, 6, v{vP}")
    e(f"    v_add_u32 v{vPk}, 64, v{vPk}")
    if kvb > 0:
        e(f"    s_max_u32 s{sIx}, s{sIx}, {kvb}")
    dispatch("k", list(range(NC)))
    e("L_kdone:")
    mile()
    Sl = vS + 4 * ((gpi - 1) & 1)
    e("    ; V phase reads the scores one key per lane: group 4*batch + (l&3), slot l>>2")
    e(f"    ds_read_b32 v{vSc}, v{vPk}")
    e(f"    ds_read_b32 v{vSc+1}, v{vPk} offset:256")
    fin_a(Sl)
    e(f"    s_mov_b32 s{sEv}, {2*iters-1-(1 if ramp else 0)}")
    fin_b(Sl, 0)
    e(f"    v_mov_b32 v{vLd}, v{vPk}")
    e(f"    v_max_f32_dpp v{vM}, v{vM}, v{vM} row_ror:4 {DPP}")
    e("    s_nop 1")
    e(f"    v_max_f32_dpp v{vM}, v{vM}, v{vM} row_ror:8 {DPP}")
    for x in xrow(vM, vT, "v_max_f32"):
        e(x)
    e(f"    v_mul_f32 v{vMt}, s{sC}, v{vM}")
    e(f"    v_max_f32 v{vMt}, v{vMt}, v{vTt}")
    e(f"    v_and_b32 v{vMt}, -2, v{vMt}")
    e("    s_waitcnt lgkmcnt(0)")
    e(f"    v_sub_f32 v{vTt}, v{vTt}, v{vMt}")
    e(f"    v_exp_f32 v{vTt}, v{vTt}")
    p_a()
    e(f"    v_mul_f32 v{vL}, 0x3c800000, v{vTt}")
    p_b(0)
    e(f"    v_mov_b32 v{vSc}, v{vSc+1}")
    p_c(0)
    for i in range(4):
        e(f"    v_mul_f32 v{vA0+i}, v{vA0+i}, v{vTt}")
    b1(0)
    dispatch("v", list(range(NC)))
    for c in range(NC):
        vbody(c)
        put_stubs()

    vMa = vQ
    vMb = vR + 32
    vOwn = vQ + 12

    def check(d):
        for k, a in enumerate((vM1, vM2, vM3)):
            e(f"    global_load_dwordx4 {r(d+4*k,4)}, v{a}, s[{sWs}:{sWs+1}] sc1")

    def valid(d, target):
        e(f"    v_bitop3_b32 v{vT}, 1, v{d+1}, v{vSn+1} bitop3:0x60")
        for k in range(1, 6):
            e(f"    v_bitop3_b32 v{vT}, v{vT}, v{d+1+2*k}, v{vSn+1+2*k} bitop3:0x60")
        e(f"    v_cmp_eq_u32 vcc, 0, v{vT}")
        e(f"    s_cbranch_vccz {target}")

    def finish(d):
        P = [vOwn, d, d + 4, d + 8]
        Wt = vA0
        T = vR
        if diag & 2:
            e(f"    v_add_f32 v{T}, v{P[0]}, v{P[1]}")
            e(f"    v_add_f32 v{T+1}, v{P[2]}, v{P[3]}")
            e(f"    v_add_f32 v{T+2}, v{P[0]+2}, v{P[1]+2}")
            e(f"    v_add_f32 v{T+3}, v{P[2]+2}, v{P[3]+2}")
            e(f"    v_add_f32 v{T}, v{T}, v{T+1}")
            e(f"    v_add_f32 v{T+2}, v{T+2}, v{T+3}")
            e(f"    v_cvt_pk_bf16_f32 v{T}, v{T}, v{T+2}")
            e(f"    global_store_dword v{vOo}, v{T}, s[{sOutp}:{sOutp+1}]")
            e("    s_endpgm")
            return
        if stamp == 5:
            e("    s_memrealtime s[70:71]")
        for k in range(3):
            e(f"    v_and_b32 v{d+1+4*k}, -2, v{d+1+4*k}")
        e(f"    v_max3_f32 v{vM}, v{vMt}, v{d+1}, v{d+5}")
        e(f"    v_max_f32 v{vM}, v{vM}, v{d+9}")
        for k in range(4):
            e(f"    v_sub_f32 v{Wt+k}, v{vMt if k == 0 else P[k]+1}, v{vM}")
        for k in range(4):
            e(f"    v_exp_f32 v{Wt+k}, v{Wt+k}")
        for k in range(4):
            e(f"    v_and_b32 v{P[k]+3}, -2, v{P[k]+3}")
        for k in range(4):
            sel = "op_sel_hi:[1,0]" if k % 2 == 0 else "op_sel:[0,1] op_sel_hi:[1,1]"
            e(f"    v_pk_mul_f32 {r(T+2*k,2)}, {r(P[k]+2,2)}, {r(Wt+(k&2),2)} {sel}")
        e(f"    v_pk_add_f32 {r(T,2)}, {r(T,2)}, {r(T+2,2)}")
        e(f"    v_pk_add_f32 {r(T+4,2)}, {r(T+4,2)}, {r(T+6,2)}")
        e(f"    v_pk_add_f32 {r(T,2)}, {r(T,2)}, {r(T+4,2)}")
        e(f"    v_rcp_f32 v{vL}, v{T+1}")
        for k in range(4):
            e(f"    v_mul_f32 v{T+8+k}, v{Wt+k}, v{P[k]}")
        e(f"    v_add_f32 v{T+8}, v{T+8}, v{T+9}")
        e(f"    v_add_f32 v{T+10}, v{T+10}, v{T+11}")
        e(f"    v_mul_f32 v{T}, v{T}, v{vL}")
        e(f"    v_add_f32 v{T+8}, v{T+8}, v{T+10}")
        e(f"    v_mul_f32 v{T+8}, v{T+8}, v{vL}")
        e(f"    v_cvt_pk_bf16_f32 v{T}, v{T+8}, v{T}")
        e(f"    global_store_dword v{vOo}, v{T}, s[{sOutp}:{sOutp+1}]")
        if stamp == 5:
            e("    s_memrealtime s[72:73]")
        if stamp:
            e("    s_waitcnt vmcnt(0)")
            e("    s_branch L_st")
        elif ms >= 0:
            e("    s_branch L_pd")
        else:
            e("    s_endpgm")

    e("L_vev:")
    mile()
    if ramp:
        w0, w1, st0 = [int(x) for x in ramp.split(".")]
        tr()
        for i in range(NR):
            pv(i)
            wn = w0 if i < st0 else min(w1, int(round(w0 + (w1 - w0) * (i - st0 + 1) / (NR - st0))))
            e(f"    s_waitcnt vmcnt({wn-1})" + (" lgkmcnt(0)" if i % 16 == 1 else ""))
            load(i)
            vwork(i, False)
        e(f"    v_add_u32 v{vLd}, {64*gpi}, v{vLd}")
    if otl == 2:
        e(f"    global_load_dword v{vX+1}, v{vOo}, s[{sOutp}:{sOutp+1}]      ; warms the translation of the output page; value unused")
    e(f"    v_not_b32 v{vSn+13}, v{vSn+13}")
    e(f"    v_not_b32 v{vSn+15}, v{vSn+15}")
    e(f"    v_and_or_b32 v{vOwn+1}, v{vSn+13}, 1, v{vMt}")
    tr()
    if ck1 == 0:
        check(vMa)
    red = [[f"    v_add_f32_dpp v{vL}, v{vL}, v{vL} row_ror:{sh} {DPP}"] for sh in (1, 2, 4, 8)]
    for sw in ("v_permlane16_swap_b32", "v_permlane32_swap_b32"):
        red += [[f"    v_mov_b32 v{vT}, v{vL}"], [f"    {sw} v{vL}, v{vT}"], [f"    v_add_f32 v{vL}, v{vL}, v{vT}"]]
    red += [[f"    v_and_b32 v{vL}, -2, v{vL}", f"    v_and_or_b32 v{vOwn+3}, v{vSn+15}, 1, v{vL}"]]
    Wmax = max(Ws) if not ramp else NR
    for i in range(NR):
        n = NR - 1 - i + (3 if i >= ck1 else 0) + (1 if otl == 2 else 0)
        if i == 1 or NR - 1 - i < Wmax or i >= 6:
            e(f"    s_waitcnt vmcnt({n})" + (" lgkmcnt(0)" if i == 1 else ""))
        pv(i, True)
        if i == ck1 - 1:
            check(vMa)
        if i >= 6 and red:
            for x in red.pop(0):
                e(x)
        vwork(i, True)
    assert not red
    mile()
    if stamp:
        e(f"    s_memrealtime s[{sSt+2}:{sSt+3}]")
    if dpoll:
        check(vMb)
        e(f"    s_mov_b32 s{sJ}, {NP}")
        e("    s_nop 1")
    else:
        e(f"    s_mov_b32 s{sJ}, {NP}")
        e("    s_nop 4")
    e(f"    v_permlane32_swap_b32 v{vA0}, v{vA0+2}")
    e(f"    v_permlane32_swap_b32 v{vA0+1}, v{vA0+3}")
    e(f"    v_permlane32_swap_b32 v{vA1}, v{vA1+2}")
    e(f"    v_permlane32_swap_b32 v{vA1+1}, v{vA1+3}")
    e("    s_nop 0")
    e(f"    v_add_f32 v{vOwn}, v{vA0}, v{vA1+2}")
    e(f"    v_add_f32 v{vOwn+2}, v{vA0+1}, v{vA1+3}")
    e("    ; fast path: plain store, seen at once by workgroups that share this L2; bounded number of looks")
    e(f"    global_store_dwordx4 v{vSl}, {r(vOwn,4)}, s[{sWs}:{sWs+1}]")
    if diag & 8:
        e("    s_endpgm")
    if stamp == 5:
        e("    s_memrealtime s[68:69]")
    if dpoll:
        e("    s_waitcnt vmcnt(4)")
        valid(vMa, "L_fin")
        check(vMa)
        e("    s_waitcnt vmcnt(4)")
        e("L_poll:")
        valid(vMb, "L_finb")
        if diag & 4:
            e("    s_waitcnt vmcnt(0)")
            valid(vMa, "L_fin")
            check(vMa)
            e("    s_waitcnt vmcnt(0)")
            valid(vMa, "L_fin")
            e("    s_endpgm")
        check(vMb)
        e("    s_waitcnt vmcnt(3)")
        valid(vMa, "L_fin")
        check(vMa)
        e(f"    s_sub_u32 s{sJ}, s{sJ}, 1")
        e("    s_waitcnt vmcnt(3)")
        e("    s_cbranch_scc0 L_poll")
    else:
        e("    s_waitcnt vmcnt(1)")
        e("L_poll:")
        valid(vMa, "L_fin")
        check(vMa)
        e(f"    s_sub_u32 s{sJ}, s{sJ}, 1")
        e("    s_waitcnt vmcnt(0)")
        e("    s_cbranch_scc0 L_poll")
    e(f"    s_add_u32 s{sWs}, s{sWs}, 0x80000")
    e(f"    s_addc_u32 s{sWs+1}, s{sWs+1}, 0")
    e(f"    global_store_dwordx4 v{vSl}, {r(vOwn,4)}, s[{sWs}:{sWs+1}] sc1")
    e(f"    s_lshl_b32 s{sTmp}, s{sHead}, 2")
    e(f"    v_mov_b32 v{vX}, s{sTmp}")
    e(f"    v_mov_b32 v{vX+1}, 1")
    e("    s_mov_b64 exec, 1")
    e("    s_waitcnt vmcnt(0)")
    e(f"    global_atomic_add v{vT}, v{vX}, v{vX+1}, s[{sDbg}:{sDbg+1}] sc0")
    e("    s_waitcnt vmcnt(0)")
    e(f"    v_readfirstlane_b32 s{sTmp}, v{vT}")
    e("    s_mov_b64 exec, -1")
    e(f"    s_cmp_lg_u32 s{sTmp}, 3")
    e(f"    s_cbranch_scc1 {'L_st' if stamp else 'L_end'}")
    check(vMa)
    e("    s_waitcnt vmcnt(0)")
    e("L_fin:")
    finish(vMa)
    if dpoll:
        e("L_finb:")
        finish(vMb)
    if stamp:
        e("L_st:")
        e(f"    s_memrealtime s[{sSt+4}:{sSt+5}]")
        e(f"    s_load_dwordx2 s[{sWs}:{sWs+1}], s[0:1], 64")
        e(f"    s_mov_b32 s{sSt+7}, s63")
        e(f"    s_getreg_b32 s{sSt+6}, hwreg(HW_REG_XCC_ID, 0, 4)")
        e(f"    s_getreg_b32 s{sTmp+1}, hwreg(HW_REG_HW_ID, 0, 24)")
        e(f"    s_lshl_b32 s{sTmp+1}, s{sTmp+1}, 8")
        e(f"    s_or_b32 s{sSt+6}, s{sSt+6}, s{sTmp+1}")
        e("    s_waitcnt vmcnt(0) lgkmcnt(0)")
        e(f"    s_lshl_b32 s{sTmp+2}, s2, 5")
        e(f"    s_add_u32 s{sTmp+2}, s{sTmp+2}, 0x1000000")
        e(f"    v_mov_b32 v{vP}, s{sTmp+2}")
        for i in range(8):
            e(f"    v_mov_b32 v{vQ+i}, s{sSt+i}")
        e("    s_mov_b64 exec, 1")
        e(f"    global_store_dwordx4 v{vP}, {r(vQ,4)}, s[{sWs}:{sWs+1}]")
        e(f"    global_store_dwordx4 v{vP}, {r(vQ+4,4)}, s[{sWs}:{sWs+1}] offset:16")
        e("    s_mov_b64 exec, -1")
        if stamp == 5:
            for k in range(3):
                e(f"    v_writelane_b32 v{vTr}, s{68+2*k}, {k}")
        if stamp in (2, 3, 5):
            e(f"    s_lshl_b32 s{sTmp+2}, s2, 8")
            e(f"    s_add_u32 s{sTmp+2}, s{sTmp+2}, 0x2000000")
            e(f"    v_lshlrev_b32 v{vP}, 2, v0")
            e(f"    v_add_u32 v{vP}, s{sTmp+2}, v{vP}")
            e(f"    global_store_dword v{vP}, v{vTr}, s[{sWs}:{sWs+1}]")
    if ms >= 0:
        e("L_pd:")
        e(f"    s_cmp_lg_u32 s2, {mwg}")
        e("    s_cbranch_scc1 L_end")
        e("    s_waitcnt lgkmcnt(0)")
        e(f"    s_sub_u32 s56, s56, s{sSt}")
        e(f"    s_sub_u32 s56, s56, {msb}")
        e("    s_max_i32 s56, s56, 0")
        e("    s_min_i32 s56, s56, 2000")
        e("    s_mul_i32 s56, s56, 10")
        e("    s_add_u32 s56, s56, 8000")
        e("L_pad:")
        e(f"    s_memrealtime s[{sSt+2}:{sSt+3}]")
        e("    s_waitcnt lgkmcnt(0)")
        e(f"    s_sub_u32 s{sSt+2}, s{sSt+2}, s{sSt}")
        e(f"    s_cmp_lt_u32 s{sSt+2}, s56")
        e("    s_cbranch_scc1 L_pad")
    e("L_end:")
    e("    s_endpgm")
    if pfs:
        e("L_tail:")
        e(f"    .fill ({2048 * pfb + pfo} - (L_tail - L_pc)) / 4, 4, 0xbf810000   ; keeps the code prefetch inside .text")
    e('.section .rodata,"a"')
    e(".p2align 6")
    e(f".amdhsa_kernel {NAME}_kernel")
    e(f"  .amdhsa_next_free_vgpr {nv}")
    e(f"  .amdhsa_next_free_sgpr {nsg}")
    e(f"  .amdhsa_accum_offset {(nv+3)//4*4}")
    e("  .amdhsa_group_segment_fixed_size 0")
    e("  .amdhsa_kernarg_size 72")
    e("  .amdhsa_user_sgpr_count 2")
    e("  .amdhsa_user_sgpr_kernarg_segment_ptr 1")
    e("  .amdhsa_system_sgpr_workgroup_id_x 1")
    e("  .amdhsa_float_denorm_mode_32 3")
    e(".end_amdhsa_kernel")
    if stamp == 2:
        e(f"; meta waves={NWG} iters={2*iters} every=1 bytes={1 << 29}")
    return "\n".join(o) + "\n"


if __name__ == "__main__":
    for spec in sys.argv[1:]:
        name, _, kv = spec.partition(":")
        kw = {}
        for p in kv.split(","):
            if p:
                k, v = p.split("=")
                kw[k] = v.replace("+", " ") if k in ("fl", "map", "W", "duty", "xr", "offs", "inc", "mfl", "ramp") else int(v, 0)
        path = f"cdna_kernels/{NAME}.s" if name == "main" else f"var/{name}.s"
        open(path, "w").write(gen(**kw))
```

```python
import math, struct, sys
from gen1 import NAME, HEADER, f2u


def gen(W="20.21.22.24", duty="80808080", offs="0.20", inc="0.1.9", mp=5, mstr=4, mfl="glc",
        fl="nt", stamp=0, nk0=4, NI=28, pfs=1, ck1=28, kvb=2, NP=16, dpoll=0, vm=1, ramp="", gx=0, gth=8, ginc=1, glen=0, gd=2, g0=0, free=0, diag=0, pre=1, pfo=1024, otl=0, gneg=0, k0=1, ms=-1, msb=0, mwg=0, stl=0, refm=13,
        map="w3n9n4r0n1n2n3n0w4n5n6n7n8r1w1w2w7w5w6w0", xr="14w5", cmt=0):
    Ws = [int(x) for x in W.split(".")]
    NC = len(Ws)
    offs = [int(x) for x in offs.split(".")]
    inc = [int(x) for x in inc.split(".")]
    assert len(inc) == len(offs) + 1 and len(offs) <= 3 and offs == sorted(offs)
    NR, NWG, iters, gpi, ngrp = 32, 256, 32, 8, 256
    lds = (ngrp + 3) * 64
    toks = [map[i:i+2] for i in range(0, len(map), 2)]
    if len(toks) in (10, 16):
        toks = toks[:9] + ["n6", "n7", "n8", "n9"] + toks[9:]
    if len(toks) == 14:
        toks += [f"w{i}" for i in range(8) if f"w{i}" not in toks]
    pos = {t: 8 + i for i, t in enumerate(toks)}
    assert sorted(pos) == sorted(["r0", "r1"] + [f"w{i}" for i in range(8)] + [f"n{i}" for i in range(10)])
    assert free or all(t[0] == "w" for t in toks[14:])
    spl = [t for t in toks[:14] if t[0] == "w"]
    hdt = toks[14:]
    adr = spl
    if free:
        adr = [t for t in toks if t[0] == "w"]
        spl = ["w3", "w4"]
        hdt = ["w0", "w1", "w2", "w5", "w6", "w7"]
    hi = [pos[f"n{i}"] for i in range(5, 10)]
    himask = sum(1 << b for b in hi)
    xrs = [(int(t.split("w")[0]), int(t.split("w")[1])) for t in xr.split(".") if t]
    xrmask = sum(1 << p for p, _ in xrs)
    assert all(toks[p - 8][0] == "n" for p, _ in xrs)
    scatter = hi != sorted(hi)
    contiguous = hi == list(range(hi[0], hi[0] + 5)) and not xrs
    immm = 0xfff & ~xrmask

    def lowoff(n):
        return sum(((n >> i) & 1) << pos[f"n{i}"] for i in range(5))
    o = []
    e = o.append

    vOff, vVoff, vM1 = 1, 2, 3
    vTt, vT, vT2, vP, vPk, vL, vM, vMt = 4, 5, 6, 7, 8, 9, 10, 11
    vMask = 12
    vS = 16
    vB1, vB2 = 16, 20
    vA0, vA1 = 24, 28
    vQ = 32
    vSc = 48
    vM2, vM3 = 50, 51
    vSl, vOo = 52, 53
    vX = 54
    vSn = 56
    vLd, vMad, vMs, vMn = 72, 73, 74, 75
    vGad, vGs, vGn, vG = 76, 77, 78, 79
    vK = [[80, 81, 82], [83, 84, 85]]
    vR = 88
    nv = vR + 4 * NR
    vTr = nv
    if stamp in (2, 3, 5):
        nv += 1
    sR = 8
    sT2, sNx, sXr, sSp = 12, 13, 14, 15
    sOff, sHi, sC, sHead, sSplit, sJ, sIx, sMk = 16, 17, 18, 19, 20, 21, 22, 23
    sQp, sKp, sVp, sKtp, sVtp, sMp, sOutp, sDbg, sWs = 24, 26, 28, 30, 32, 34, 36, 38, 40
    sTmp = 42
    sMaskv, sAcc, sDuty, sMo = 48, 49, 50, 51
    sSt = 52
    sEx = 4
    sCell = [3, 6, 7]
    sMb = 64
    sEv = 66
    sGb, sGr, sGw = 94, 96, 97
    nsg = 100 if (stamp in (3, 5) or gx) else 68
    glen = glen or gx
    pst = [0]

    msn = [0]

    def mile():
        if msn[0] == ms:
            e("    s_memrealtime s[56:57]")
        msn[0] += 1

    def pstamp():
        mile()
        if stamp == 3:
            e(f"    s_memrealtime s[{68+2*pst[0]}:{69+2*pst[0]}]")
            pst[0] += 1

    def r(b, n):
        return f"v[{b}:{b+n-1}]"
    DPP = "row_mask:0xf bank_mask:0xf"

    def gather(dst, items, tmp):
        runs = []
        for wb, db in sorted(items):
            if runs and runs[-1][0] + runs[-1][2] == wb and runs[-1][1] + runs[-1][2] == db:
                runs[-1][2] += 1
            else:
                runs.append([wb, db, 1])
        for k, (wb, db, n) in enumerate(runs):
            t = dst if k == 0 else tmp
            e(f"    s_bfe_u32 s{t}, s2, {hex((n << 16) | wb)}")
            if db:
                e(f"    s_lshl_b32 s{t}, s{t}, {db}")
            if k:
                e(f"    s_xor_b32 s{dst}, s{dst}, s{t}")

    e(HEADER.rstrip())
    e(f"; @launch grid=({NWG},1,1) block=(64,1,1) lds={lds}")
    if cmt:
        e(open("notes.txt").read().rstrip())
    e('.amdgcn_target "amdgcn-amd-amdhsa--gfx950"')
    e(".text")
    e(f".globl {NAME}_kernel")
    e(".p2align 8")
    e(f".type {NAME}_kernel,@function")
    e(f"{NAME}_kernel:")
    if stamp or ms >= 0:
        e(f"    s_memrealtime s[{sSt}:{sSt+1}]")
    e(f"    s_load_dwordx16 s[{sQp}:{sQp+15}], s[0:1], 0")
    e(f"    s_load_dwordx2 s[{sWs}:{sWs+1}], s[0:1], 64")
    e(f"    s_cmp_ge_u32 s2, {NWG}")
    e("    s_cbranch_scc1 L_end")
    e("    ; head index, byte offset of this split inside a head, order mask")
    gather(sHead, [(int(t[1]), i) for i, t in enumerate(hdt)], sTmp)
    gather(sSp, [(int(t[1]), pos[t]) for t in adr], sTmp)
    if xrs:
        gather(sXr, [(w, p) for p, w in xrs], sTmp)
    e(f"    v_lshrrev_b32 v{vT}, 4, v0")
    e(f"    v_lshlrev_b32 v{vT}, 6, v{vT}")
    e(f"    v_and_b32 v{vT2}, 3, v0")
    e(f"    v_lshl_add_u32 v{vT}, v{vT2}, 4, v{vT}")
    if pos["r1"] == pos["r0"] + 1:
        e(f"    v_bfe_u32 v{vT2}, v0, 2, 2")
        e(f"    v_lshl_add_u32 v{vOff}, v{vT2}, {pos['r0']}, v{vT}")
    else:
        e(f"    v_bfe_u32 v{vT2}, v0, 2, 1")
        e(f"    v_lshl_add_u32 v{vOff}, v{vT2}, {pos['r0']}, v{vT}")
        e(f"    v_bfe_u32 v{vT2}, v0, 3, 1")
        e(f"    v_lshl_add_u32 v{vOff}, v{vT2}, {pos['r1']}, v{vOff}")
    e(f"    v_add_u32 v{vOff}, s{sSp}, v{vOff}")
    e(f"    s_lshl_b32 s{sTmp}, s{sHead}, 22" if not free else f"    s_mov_b32 s{sTmp}, 0")

    def reset_off():
        e(f"    s_mov_b32 s{sOff}, {'s%d' % sXr if xrs else 0}")
        if not contiguous:
            e(f"    s_mov_b32 s{sHi}, 0")
    reset_off()
    e(f"    s_mov_b32 s{sR+2}, {hex(1 << 28) if free else '0x400000'}")
    e(f"    s_mov_b32 s{sR+3}, 0x20000")
    gather(sSplit, [(int(t[1]), i) for i, t in enumerate(spl)], sTmp + 1)
    e(f"    s_lshl_b32 s{sTmp+1}, s{sSplit}, 10")
    e(f"    s_lshl_b32 s{sTmp+2}, s{sHead}, 8")
    e(f"    s_lshl_b32 s{sTmp+3}, s{sHead}, 12")
    e(f"    v_lshlrev_b32 v{vPk}, 2, v0")
    e(f"    v_lshlrev_b32 v{vSl}, 4, v0")
    e(f"    v_and_b32 v{vVoff}, 0xf0, v{vSl}")
    e(f"    v_bfe_u32 v{vP}, v0, 4, 1")
    e(f"    v_lshl_add_u32 v{vP}, v{vP}, 3, v{vVoff}       ; v_tree offset: (l&15)*16 + ((l>>4)&1)*8")
    e(f"    v_add_u32 v{vSl}, s{sTmp+1}, v{vSl}")
    e("    s_waitcnt lgkmcnt(0)")
    pstamp()
    if stl:
        for k, p in enumerate((sQp, sKtp, sVtp, sWs)):
            e(f"    s_load_dword s{58+k}, s[{p}:{p+1}], 0        ; starts the translation of this buffer's page")
    e(f"    s_add_u32 s{sR}, s{sKp}, s{sTmp}")
    e(f"    s_addc_u32 s{sR+1}, s{sKp+1}, 0")

    def load(i):
        lo = lowoff(i)
        e(f"    buffer_load_dwordx4 {r(vR+4*i,4)}, v{vOff}, s[{sR}:{sR+3}], s{sOff} offen offset:{lo & immm} {fl}")
        cur = lo & ~immm
        if i < NR - 1:
            d = cur ^ (lowoff(i + 1) & ~immm)
            if d:
                e(f"    s_xor_b32 s{sOff}, s{sOff}, {hex(d)}")
            elif i % 4 == 3:
                e("    s_nop 0")
            if scatter and 8 <= i < 14:
                k = i - 8
                if k == 0:
                    e(f"    s_add_u32 s{sHi}, s{sHi}, 1")
                    e(f"    s_mov_b32 s{sNx}, {'s%d' % sXr if xrs else 0}")
                else:
                    e(f"    s_bfe_u32 s{sT2}, s{sHi}, {hex((1 << 16) | (k - 1))}")
                    e(f"    s_lshl_b32 s{sT2}, s{sT2}, {hi[k-1]}")
                    e(f"    s_xor_b32 s{sNx}, s{sNx}, s{sT2}")
            if not scatter and not contiguous and i == 11:
                e(f"    s_or_b32 s{sHi}, s{sHi}, {hex(~himask & 0xffffffff)}")
                e(f"    s_add_u32 s{sHi}, s{sHi}, 1")
                e(f"    s_and_b32 s{sHi}, s{sHi}, {hex(himask)}")
        elif contiguous:
            e(f"    s_add_u32 s{sOff}, s{sOff}, {hex(((1 << hi[0]) - cur) & 0xffffffff)}")
        elif scatter:
            e(f"    s_mov_b32 s{sOff}, s{sNx}")
        elif xrs:
            e(f"    s_xor_b32 s{sOff}, s{sHi}, s{sXr}")
        else:
            e(f"    s_mov_b32 s{sOff}, s{sHi}")

    for i in range(nk0):
        load(i)
    if ms == 10:
        e("    s_memrealtime s[56:57]")
    for p in (sQp, sKtp, sVtp):
        e(f"    s_add_u32 s{p}, s{p}, s{sTmp+2}")
        e(f"    s_addc_u32 s{p+1}, s{p+1}, 0")
    e(f"    s_load_dword s{sMaskv}, s[{sMp}:{sMp+1}], 0")
    e(f"    global_load_dwordx4 {r(vS,4)}, v{vT}, s[{sQp}:{sQp+1}]")
    e(f"    global_load_dword v{vA0}, v{vPk}, s[{sQp}:{sQp+1}]")
    e(f"    global_load_dword v{vA0+1}, v{vPk}, s[{sKtp}:{sKtp+1}]")
    e(f"    global_load_dwordx2 {r(vX,2)}, v{vP}, s[{sVtp}:{sVtp+1}]")
    e(f"    s_getreg_b32 s{sIx}, hwreg(HW_REG_XCC_ID, 0, 3)")
    e(f"    s_mul_i32 s{sT2}, s{sIx}, {max(4096, 64*mstr)+256}")
    e(f"    s_add_u32 s{sT2}, s{sT2}, 0x40000")
    e(f"    s_add_u32 s{sMb}, s{sWs}, s{sT2}")
    e(f"    s_addc_u32 s{sMb+1}, s{sWs+1}, 0")
    if gx:
        e(f"    s_add_u32 s{sGb}, s{sWs}, 0x100000")
        e(f"    s_addc_u32 s{sGb+1}, s{sWs+1}, 0")
    e(f"    v_lshlrev_b32 v{vMad}, {int(math.log2(mstr))}, v0")
    e(f"    s_add_u32 s{sWs}, s{sWs}, s{sTmp+3}")
    e(f"    s_addc_u32 s{sWs+1}, s{sWs+1}, 0")
    e(f"    global_load_dword v{vMs}, v{vMad}, s[{sMb}:{sMb+1}] sc1")
    e(f"    v_xor_b32 v{vM1}, 0x400, v{vSl}")
    e(f"    v_xor_b32 v{vM2}, 0x800, v{vSl}")
    e(f"    v_xor_b32 v{vM3}, 0xc00, v{vSl}")
    for k, a in enumerate((vM1, vM2, vM3, vSl)):
        e(f"    global_load_dwordx4 {r(vSn+4*k,4)}, v{a}, s[{sWs}:{sWs+1}] sc1")
    nsmall = 9
    e(f"    s_lshr_b32 s{sAcc}, s2, 3")
    if gx:
        e(f"    s_mul_i32 s{sGr}, s{sAcc}, {refm}")
        e(f"    s_add_u32 s{sGr}, s{sGr}, 5")
        e(f"    s_and_b32 s{sGr}, s{sGr}, 31")
        e(f"    s_lshl_b32 s{sT2}, 1, s{sGr}")
        e(f"    v_mul_u32_u24 v{vGad}, 4352, v0")
        e(f"    s_mov_b32 exec_lo, s{sT2}")
        e(f"    s_mov_b32 exec_hi, s{sT2}")
        e(f"    global_load_dword v{vGs}, v{vGad}, s[{sGb}:{sGb+1}] sc1")
        e("    s_mov_b64 exec, -1")
        nsmall += 1
    if pfs:
        e(f"    s_getpc_b64 s[{sTmp+4}:{sTmp+5}]")
        e("L_pc:")
        pfb = pfs if pfs >= 8 else 4 << pfs
        e(f"    s_mul_i32 s{sT2}, s{sAcc}, {64*pfb}")
        e(f"    v_mad_u32_u24 v{vMn}, v0, {pfb}, s{sT2}")
        e(f"    global_load_dword v{vSc}, v{vMn}, s[{sTmp+4}:{sTmp+5}] offset:{pfo}")
        nsmall += 1
    if ms == 11:
        e("    s_memrealtime s[56:57]")
    for i in range(nk0, NI):
        load(i)
    pstamp()
    e(f"    s_add_u32 s{sVp}, s{sVp}, s{sTmp}")
    e(f"    s_addc_u32 s{sVp+1}, s{sVp+1}, 0")
    e(f"    s_add_u32 s{sOutp}, s{sOutp}, s{sTmp+2}")
    e(f"    s_addc_u32 s{sOutp+1}, s{sOutp+1}, 0")
    e(f"    v_lshrrev_b32 v{vOo}, 5, v0")
    e(f"    v_lshl_add_u32 v{vOo}, v{vOo}, 2, v{vP}        ; output offset")
    e(f"    v_bfe_u32 v{vT}, v0, 4, 1")
    e(f"    v_lshl_add_u32 v{vVoff}, v{vT}, {pos['r0']}, v{vVoff}")
    e(f"    v_lshrrev_b32 v{vT}, 5, v0")
    e(f"    v_lshl_add_u32 v{vVoff}, v{vT}, {pos['r1']}, v{vVoff}")
    e(f"    v_add_u32 v{vVoff}, s{sSp}, v{vVoff}")
    c = (128 ** -0.5) * math.log2(math.e)
    e(f"    s_mov_b32 s{sC}, {hex(f2u(c))}")
    e(f"    v_mov_b32 v{vM}, 0xff800000")
    e(f"    v_and_b32 v{vLd}, 60, v0                      ; score slots: group*64 + (lane>>2)*4, slot 0 is a dummy")
    e(f"    v_and_b32 v{vT}, 1, v0")
    e(f"    v_lshlrev_b32 v{vT}, 4, v{vT}")
    e(f"    v_mov_b32 v{vPk}, 0xffff")
    e(f"    v_lshlrev_b32 v{vPk}, v{vT}, v{vPk}")
    e(f"    v_bfe_u32 v{vT}, v0, 1, 2")
    for i in range(4):
        e(f"    v_cmp_eq_u32 vcc, {i}, v{vT}")
        e(f"    v_mov_b32 v{vS+4+i}, 0xff800000          ; 'previous group' of group 0")
        e(f"    v_mov_b32 v{vA1+i}, 0")
        e(f"    v_cndmask_b32 v{vMask+i}, 0, v{vPk}, vcc")
    e(f"    s_lshr_b32 s{sTmp}, s{sHead}, 5")
    e(f"    s_lshl_b32 s{sTmp}, s{sTmp}, 4")
    e("    s_waitcnt lgkmcnt(0)")
    e(f"    s_lshr_b32 s{sMaskv}, s{sMaskv}, s{sTmp}")
    e(f"    s_lshl_b32 s{sMaskv}, s{sMaskv}, 16")
    e(f"    v_sub_f32 v{vL}, s{sMaskv}, 1.0               ; mask - 1")
    e(f"    v_mul_f32 v{vL}, {hex(f2u(1e9*math.log2(math.e)))}, v{vL}   ; (1-mask)*-1e9*log2(e)")
    e(f"    s_cmp_eq_u32 s{sSplit}, 0")
    e(f"    s_cselect_b32 s{sTmp}, 0, 0xff800000")
    e(f"    v_add_f32 v{vL}, s{sTmp}, v{vL}")
    dv = [int(ch, 32) for ch in duty]
    if dv == dv[:2] * 4:
        e(f"    s_bitcmp1_b32 s{sIx}, 0")
        e(f"    s_cselect_b32 s{sDuty}, {dv[1]}, {dv[0]}")
    else:
        tab = sum(d << (5 * i) for i, d in enumerate(dv))
        e(f"    s_mov_b32 s{sTmp+2}, {hex(tab & 0xffffffff)}")
        e(f"    s_mov_b32 s{sTmp+3}, {hex(tab >> 32)}")
        e(f"    s_mul_i32 s{sTmp}, s{sIx}, 5")
        e(f"    s_lshr_b64 s[{sTmp+2}:{sTmp+3}], s[{sTmp+2}:{sTmp+3}], s{sTmp}")
        e(f"    s_and_b32 s{sDuty}, s{sTmp+2}, 31")
    e(f"    ; workgroup row r = wg>>3 publishes the markers of iterations ({refm}r+5)&31 and that + 32")
    e(f"    s_mul_i32 s{sTmp}, s{sAcc}, {refm}")
    e(f"    s_add_u32 s{sTmp}, s{sTmp}, 5")
    e(f"    s_and_b32 s{sTmp}, s{sTmp}, 31")
    e(f"    s_lshl_b64 s[{sEx}:{sEx+1}], 1, s{sTmp}")
    sites = []
    for k, of in enumerate(offs):
        d, st = divmod(mp + of, NR)
        e(f"    s_add_u32 s{sCell[k]}, s{sTmp}, {d}")
        sites.append((st, k))
    if gx:
        e(f"    s_lshr_b32 s{sTmp+1}, s{sGr}, {int(math.log2(gx))}")
        e(f"    s_mul_i32 s{sTmp+1}, s{sTmp+1}, 3")
        e(f"    s_xor_b32 s{sTmp+1}, s{sTmp+1}, s2")
        e(f"    s_and_b32 s{sTmp+2}, s{sGr}, {gx-1}")
        e(f"    s_cselect_b32 s{sGr}, 0x100, s{sGr}")
        e(f"    s_and_b32 s{sTmp+1}, s{sTmp+1}, 7")
        e(f"    s_cselect_b32 s{sGw}, 0x100, s{sGr}")
        if gneg:
            e(f"    s_cmp_eq_u32 s{sGr}, 0")
            e(f"    s_cselect_b32 s{sGr}, 32, s{sGr}")
        gdw = (mp - 1 + gth) // NR
        assert gdw in (0, -1)
        if gdw:
            e(f"    s_sub_u32 s{sGw}, s{sGw}, 1")
            e(f"    s_cselect_b32 s{sGw}, 31, s{sGw}")
    e(f"    s_and_b32 s{sAcc}, s{sAcc}, 15")
    e(f"    s_mov_b32 s{sJ}, 0")
    e(f"    s_mov_b32 s{sMo}, 0")
    e(f"    s_mov_b32 s{sEv}, {iters-1}")
    if stamp:
        e("    s_mov_b32 s63, 0")
    lvl = [0, 1, 2, 4][:len(inc)]
    inctab = sum(min(v, 15) << (8 * l) for v, l in zip(inc, lvl) if l < 4)
    stubs = []

    def control(i, tag):
        for st, k in sites:
            if st == i:
                e(f"    s_cmp_eq_u32 s{sJ}, s{sCell[k]}")
                e(f"    s_cbranch_scc1 L_pub_{tag}_{k}")
                e(f"L_pubx_{tag}_{k}:")
                stubs.append((tag, k))
        if gx:
            for nm, st, reg in (("gr", mp - 1, sGr), ("gw", (mp - 1 + gth) % NR, sGw), ("ge", 30, sGr)):
                if st == i:
                    e(f"    s_cmp_eq_u32 s{sJ}, s{reg}")
                    e(f"    s_cbranch_scc1 L_pub_{tag}_{nm}")
                    e(f"L_pubx_{tag}_{nm}:")
                    stubs.append((tag, nm))
        if i == mp and not vm:
            e(f"    s_load_dword s{sMk}, s[{sMb}:{sMb+1}], s{sMo} {mfl}")
        if i == mp and vm:
            e(f"    global_load_dword v{vX}, v{vMad}, s[{sMb}:{sMb+1}] sc1")
        if i == 29 and vm:
            e(f"    v_readlane_b32 s{sMk}, v{vX}, s{sJ}")
        if i == 27:
            e(f"    v_readlane_b32 s{sTmp}, v{vMs}, s{sJ}")
            e(f"    s_add_u32 s{sAcc}, s{sAcc}, s{sDuty}")
            e(f"    s_lshr_b32 s{sIx}, s{sAcc}, 4")
            e(f"    s_and_b32 s{sAcc}, s{sAcc}, 15")
        if i == 28 and not vm:
            e(f"    s_add_u32 s{sMo}, s{sMo}, {mstr}")
        if i == (30 if vm else 29):
            e(f"    s_xor_b32 s{sTmp}, s{sTmp}, s{sMk}")
            if gx:
                e(f"    s_bitcmp1_b32 s{sTmp}, 16")
                e(f"    s_cselect_b32 s{sTmp+1}, {0 if gneg else ginc}, {ginc if gneg else 0}")
                e(f"    s_add_u32 s{sIx}, s{sIx}, s{sTmp+1}")
                if stamp:
                    e(f"    s_bfe_u32 s{sTmp+1}, s{sTmp}, 0x10010")
                    e(f"    s_add_u32 s63, s63, s{sTmp+1}")
                e(f"    s_and_b32 s{sTmp}, s{sTmp}, 0xffff")
            e(f"    s_bcnt1_i32_b32 s{sTmp}, s{sTmp}")
            if len(offs) == 3:
                e(f"    s_cmp_gt_u32 s{sTmp}, 16")
                e(f"    s_cselect_b32 s{sIx}, {NC-1}, s{sIx}")
        if i == 30:
            e(f"    s_lshr_b32 s{sTmp}, {hex(inctab)}, s{sTmp}")
            e(f"    s_and_b32 s{sTmp}, s{sTmp}, 15")
            e(f"    s_add_u32 s{sIx}, s{sIx}, s{sTmp}")
            if stamp and not gx:
                e(f"    s_min_u32 s{sIx}, s{sIx}, {NC-1}")
                e(f"    s_add_u32 s63, s63, s{sIx}")

    def dispatch(ph, order):
        for c in order[:-1]:
            e(f"    s_cmp_{'ge' if c == NC-1 else 'eq'}_u32 s{sIx}, {c}")
            e(f"    s_cbranch_scc1 L_{ph}{c}")
        e(f"    s_branch L_{ph}{order[-1]}")

    def endit(ph):
        e(f"    v_add_u32 v{vLd}, {64*gpi}, v{vLd}")
        e(f"    s_add_u32 s{sJ}, s{sJ}, 1")
        if ms == 13 and ph == "k":
            msn.append(0)
            e(f"    s_cmp_lg_u32 s{sJ}, 2")
            e(f"    s_cbranch_scc1 L_ms{len(msn)}")
            e("    s_memrealtime s[56:57]")
            e(f"L_ms{len(msn)}:")
        e(f"    s_cmp_eq_u32 s{sJ}, s{sEv}")
        e(f"    s_cbranch_scc1 L_{ph}ev")
        dispatch(ph, [1, 2, 0] + list(range(3, NC)) if NC > 3 else list(range(NC)))

    def xrow(reg, tmp, op):
        L = []
        for sw in ("v_permlane16_swap_b32", "v_permlane32_swap_b32"):
            L += [f"    v_mov_b32 v{tmp}, v{reg}", "    s_nop 1", f"    {sw} v{reg}, v{tmp}", "    s_nop 1",
                  f"    {op} v{reg}, v{reg}, v{tmp}"]
        return L

    def tr():
        if stamp == 2:
            e("    s_waitcnt lgkmcnt(0)")
            e(f"    v_writelane_b32 v{vTr}, s60, m0")
            e("    s_add_u32 m0, m0, 1")
            e("    s_memrealtime s[60:61]")

    def fin_a(S):
        e(f"    v_mov_b32_dpp v{vT}, v{S} quad_perm:[0,0,0,0] {DPP}")
        e(f"    v_mov_b32_dpp v{vT2}, v{S+2} quad_perm:[2,2,2,2] {DPP}")

    def fin_b(S, off):
        e(f"    v_add_f32_dpp v{vT}, v{S+1}, v{vT} quad_perm:[1,1,1,1] {DPP}")
        e(f"    v_add_f32_dpp v{vT2}, v{S+3}, v{vT2} quad_perm:[3,3,3,3] {DPP}")
        e(f"    v_add_f32 v{vT}, v{vT}, v{vT2}")
        e(f"    v_max_f32 v{vM}, v{vM}, v{vT}")
        e(f"    ds_write_b32 v{vLd}, v{vT} offset:{off}")

    def qp(c):
        return f"quad_perm:[{c},{c},{c},{c}] {DPP}"

    def b1(g, vB1=vB1):
        k, c = vK[(g >> 2) & 1], g & 3
        e(f"    v_and_b32_dpp v{vB1}, v{k[0]}, v{vMask} {qp(c)}")
        e(f"    v_and_b32_dpp v{vB1+1}, v{k[0]}, v{vMask+1} {qp(c)}")
        e(f"    v_and_b32_dpp v{vB1+2}, v{k[1]}, v{vMask+2} {qp(c)}")
        e(f"    v_and_b32_dpp v{vB1+3}, v{k[1]}, v{vMask+3} {qp(c)}")

    def b2(g, vB2=vB2):
        k, c = vK[(g >> 2) & 1], g & 3
        e(f"    v_and_b32_dpp v{vB2}, v{k[2]}, v{vMask} {qp(c)}")
        e(f"    v_and_b32_dpp v{vB2+1}, v{k[2]}, v{vMask+1} {qp(c)}")
        e(f"    v_and_b32_dpp v{vB2+2}, v{k[0]}, v{vMask+2} {qp(c)}")
        e(f"    v_and_b32_dpp v{vB2+3}, v{k[0]}, v{vMask+3} {qp(c)}")

    def p_a():
        e(f"    v_fma_f32 v{vP}, v{vSc}, s{sC}, -v{vMt}")
        e(f"    v_exp_f32 v{vP}, v{vP}")

    def p_b(bt):
        e(f"    v_cvt_pk_bf16_f32 v{vK[bt][0]}, v{vP}, v{vP}")
        e(f"    v_add_f32 v{vL}, v{vL}, v{vP}")

    def p_c(bt):
        e(f"    v_mov_b32_dpp v{vK[bt][1]}, v{vK[bt][0]} row_ror:4 {DPP}")
        e(f"    v_mov_b32_dpp v{vK[bt][2]}, v{vK[bt][0]} row_ror:12 {DPP}")

    def pv(i, drain=False):
        u = i % 4
        A = vA0 if u % 2 == 0 else vA1
        Pm = vB1 if u < 2 else vB2
        if drain and pre and i >= 24:
            Pm = vR + 48 + 4 * ((i - 24) // 2)
        e(f"    v_mfma_f32_16x16x32_bf16 {r(A,4)}, {r(Pm,4)}, {r(vR+4*i,4)}, {r(A,4)}")

    def vwork(i, drain):
        g, u = divmod(i, 4)
        bt, j = divmod(i, 16)
        if drain and pre and i in (17, 19, 21, 23):
            k = (i - 17) // 2
            (b1, b2)[k & 1](6 + (k >> 1), vR + 48 + 4 * k)
        if u == 0 and not (drain and pre and g >= 6):
            b2(g)
        if u == 2 and not (drain and g >= (5 if pre else 7)):
            b1(g + 1)
        if drain and bt == 1:
            return
        if j == 1:
            p_a()
            if not drain:
                e(f"    ds_read_b32 v{vSc}, v{vLd} offset:{256*(bt+2)}")
        if j == 3:
            p_b(bt ^ 1)
        if j == 5:
            p_c(bt ^ 1)

    quad = [0, 2, 1, 3]
    pstamp()
    for j in range(NI, NR):
        need = j - NI
        e(f"    s_waitcnt vmcnt({NI-1+(nsmall if need < nk0 else 0)})")
        if ms == 12 and need == 0:
            e("    s_memrealtime s[56:57]")
        load(j)
    e(f"    v_bfe_u32 v{vT2}, v0, 2, 2")
    e(f"    s_waitcnt vmcnt({NR-nk0+nsmall-4})")
    pstamp()
    for u in range(4):
        e(f"    v_cmp_eq_u32 vcc, {quad[u]}, v{vT2}")
        if u == 0:
            e(f"    v_lshlrev_b32 v{vP}, 16, v{vA0}")
            e(f"    v_lshlrev_b32 v{vPk}, 16, v{vA0+1}")
        elif u == 1:
            e(f"    v_mul_f32 v{vTt}, v{vP}, v{vPk}")
            e(f"    v_and_b32 v{vP}, 0xffff0000, v{vA0}")
        elif u == 2:
            e(f"    v_and_b32 v{vPk}, 0xffff0000, v{vA0+1}")
            e(f"    v_fmac_f32 v{vTt}, v{vP}, v{vPk}")
        else:
            e(f"    v_add_f32_dpp v{vTt}, v{vTt}, v{vTt} row_ror:1 {DPP}")
            e(f"    v_lshlrev_b32 v{vA0}, 16, v{vX}")
        for i in range(4):
            e(f"    v_cndmask_b32 v{vQ+4*u+i}, 0, v{vS+i}, vcc")
    e(f"    v_add_f32_dpp v{vTt}, v{vTt}, v{vTt} row_ror:2 {DPP}")
    e(f"    v_and_b32 v{vA0+1}, 0xffff0000, v{vX}")
    e(f"    v_lshlrev_b32 v{vA0+2}, 16, v{vX+1}")
    e(f"    v_add_f32_dpp v{vTt}, v{vTt}, v{vTt} row_ror:4 {DPP}")
    e(f"    v_and_b32 v{vA0+3}, 0xffff0000, v{vX+1}")
    e("    s_nop 0")
    e(f"    v_add_f32_dpp v{vTt}, v{vTt}, v{vTt} row_ror:8 {DPP}")
    for x in xrow(vTt, vT, "v_add_f32"):
        e(x)
    e(f"    v_fma_f32 v{vTt}, v{vTt}, s{sC}, v{vL}")
    e(f"    s_waitcnt vmcnt({min(NR-1, NR-nk0+nsmall-5) if nk0 == 0 else NR-nk0+nsmall-5})")
    e(f"    v_not_b32 v{vMn}, v{vMs}")
    pstamp()
    if stamp == 2:
        e(f"    v_mov_b32 v{vTr}, 0")
        e("    s_mov_b32 m0, 0")
        e("    s_memrealtime s[60:61]")
    if stamp == 3:
        e(f"    v_mov_b32 v{vTr}, 0")
        e("    s_waitcnt lgkmcnt(0)")
        for k in range(pst[0]):
            e(f"    v_writelane_b32 v{vTr}, s{68+2*k}, {k}")

    def wcount(i, Wn):
        if not vm:
            return Wn - 1
        n = Wn - 1 + (1 if mp < i < mp + Wn else 0)
        if i == 29:
            n = min(n, 29 - mp - 1)
        return n

    def kbody(c):
        e(f"L_k{c}:                                          ; K iteration, {Ws[c]} loads in flight")
        tr()
        for i in range(NR):
            g, u = divmod(i, 4)
            S = vS + 4 * (g & 1)
            Sp = vS + 4 * ((g + 1) & 1)
            cc = "0" if u == 0 else r(S, 4)
            e(f"    v_mfma_f32_16x16x32_bf16 {r(S,4)}, {r(vR+4*i,4)}, {r(vQ+4*u,4)}, {cc}")
            e(f"    s_waitcnt vmcnt({wcount(i, Ws[c])})" + (" lgkmcnt(0)" if i == 29 and not vm else ""))
            load(i)
            control(i, f"k{c}")
            if u == 1:
                fin_a(Sp)
            if u == 2:
                fin_b(Sp, 64 * g)
        endit("k")

    def vbody(c):
        e(f"L_v{c}:                                          ; V iteration, {Ws[c]} loads in flight")
        tr()
        for i in range(NR):
            pv(i)
            e(f"    s_waitcnt vmcnt({wcount(i, Ws[c])})" + (" lgkmcnt(0)" if i % 16 == 1 else ""))
            load(i)
            control(i, f"v{c}")
            vwork(i, False)
        endit("v")

    def put_stubs():
        for tag, k in stubs:
            e(f"L_pub_{tag}_{k}:")
            if k == "gr":
                e(f"    s_lshl_b64 exec, 1, s{sJ}")
                e(f"    global_load_dword v{vG}, v{vGad}, s[{sGb}:{sGb+1}] sc1")
                e("    s_mov_b64 exec, -1")
                e(f"    s_branch L_pubx_{tag}_{k}")
                continue
            if k == "gw":
                e(f"    v_not_b32 v{vGn}, v{vGs}")
                e(f"    s_lshl_b64 exec, {2 if gdw else 1}, s{sJ}")
                e(f"    global_store_dword v{vGad}, v{vGn}, s[{sGb}:{sGb+1}] sc1")
                e("    s_mov_b64 exec, -1")
                e(f"    s_add_u32 s{sGw}, s{sGw}, 32")
                e(f"    s_branch L_pubx_{tag}_{k}")
                continue
            if k == "ge":
                e(f"    v_cmp_ne_u32 vcc, v{vG}, v{vGs}")
                e(f"    s_add_u32 s{sGr}, s{sGr}, 32")
                e(f"    s_bitcmp1_b64 vcc, s{sJ}")
                e(f"    s_cbranch_scc{1 if gneg else 0} L_pubx_{tag}_{k}")
                e(f"    s_mov_b64 vcc, {((1 << glen) - 1) << gd}")
                e(f"    s_lshl_b64 exec, vcc, s{sJ}")
                e(f"    s_cbranch_scc0 L_pube_{tag}")
                e(f"    global_store_byte_d16_hi v{vMad}, v{vMn}, s[{sMb}:{sMb+1}] offset:2")
                e(f"L_pube_{tag}:")
                e("    s_mov_b64 exec, -1")
                e(f"    s_branch L_pubx_{tag}_{k}")
                continue
            e(f"    s_mov_b64 exec, s[{sEx}:{sEx+1}]")
            op = ("global_store_byte", "global_store_short", "global_store_dword")[k]
            e(f"    {op} v{vMad}, v{vMn}, s[{sMb}:{sMb+1}]")
            e("    s_mov_b64 exec, -1")
            e(f"    s_add_u32 s{sCell[k]}, s{sCell[k]}, 32")
            if k == len(offs) - 1:
                e(f"    s_lshl_b64 s[{sEx}:{sEx+1}], s[{sEx}:{sEx+1}], 32")
            e(f"    s_branch L_pubx_{tag}_{k}")
        stubs.clear()

    korder = [k0] + [c for c in range(NC) if c != k0]
    for c in korder:
        kbody(c)
        put_stubs()
    e("L_kev:")
    e(f"    s_cmp_eq_u32 s{sJ}, {iters}")
    e("    s_cbranch_scc1 L_kdone")
    e(f"    s_mov_b32 s{sR}, s{sVp}")
    e(f"    s_mov_b32 s{sR+1}, s{sVp+1}")
    reset_off()
    e(f"    v_mov_b32 v{vOff}, v{vVoff}")
    e(f"    s_mov_b32 s{sEv}, {iters}")
    if otl == 1:
        e(f"    global_load_dword v{vX+1}, v{vOo}, s[{sOutp}:{sOutp+1}]      ; warms the translation of the output page; value unused")
    e(f"    v_and_b32 v{vPk}, 3, v0")
    e(f"    v_and_b32 v{vP}, 60, v0")
    e(f"    v_lshl_add_u32 v{vPk}, v{vPk}, 6, v{vP}")
    e(f"    v_add_u32 v{vPk}, 64, v{vPk}")
    if kvb > 0:
        e(f"    s_max_u32 s{sIx}, s{sIx}, {kvb}")
    dispatch("k", list(range(NC)))
    e("L_kdone:")
    mile()
    Sl = vS + 4 * ((gpi - 1) & 1)
    e("    ; V phase reads the scores one key per lane: group 4*batch + (l&3), slot l>>2")
    e(f"    ds_read_b32 v{vSc}, v{vPk}")
    e(f"    ds_read_b32 v{vSc+1}, v{vPk} offset:256")
    fin_a(Sl)
    e(f"    s_mov_b32 s{sEv}, {2*iters-1-(1 if ramp else 0)}")
    fin_b(Sl, 0)
    e(f"    v_mov_b32 v{vLd}, v{vPk}")
    e(f"    v_max_f32_dpp v{vM}, v{vM}, v{vM} row_ror:4 {DPP}")
    e("    s_nop 1")
    e(f"    v_max_f32_dpp v{vM}, v{vM}, v{vM} row_ror:8 {DPP}")
    for x in xrow(vM, vT, "v_max_f32"):
        e(x)
    e(f"    v_mul_f32 v{vMt}, s{sC}, v{vM}")
    e(f"    v_max_f32 v{vMt}, v{vMt}, v{vTt}")
    e(f"    v_and_b32 v{vMt}, -2, v{vMt}")
    e("    s_waitcnt lgkmcnt(0)")
    e(f"    v_sub_f32 v{vTt}, v{vTt}, v{vMt}")
    e(f"    v_exp_f32 v{vTt}, v{vTt}")
    p_a()
    e(f"    v_mul_f32 v{vL}, 0x3c800000, v{vTt}")
    p_b(0)
    e(f"    v_mov_b32 v{vSc}, v{vSc+1}")
    p_c(0)
    for i in range(4):
        e(f"    v_mul_f32 v{vA0+i}, v{vA0+i}, v{vTt}")
    b1(0)
    dispatch("v", list(range(NC)))
    for c in range(NC):
        vbody(c)
        put_stubs()

    vMa = vQ
    vMb = vR + 32
    vOwn = vQ + 12

    def check(d):
        for k, a in enumerate((vM1, vM2, vM3)):
            e(f"    global_load_dwordx4 {r(d+4*k,4)}, v{a}, s[{sWs}:{sWs+1}] sc1")

    def valid(d, target):
        e(f"    v_bitop3_b32 v{vT}, 1, v{d+1}, v{vSn+1} bitop3:0x60")
        for k in range(1, 6):
            e(f"    v_bitop3_b32 v{vT}, v{vT}, v{d+1+2*k}, v{vSn+1+2*k} bitop3:0x60")
        e(f"    v_cmp_eq_u32 vcc, 0, v{vT}")
        e(f"    s_cbranch_vccz {target}")

    def finish(d):
        P = [vOwn, d, d + 4, d + 8]
        Wt = vA0
        T = vR
        if diag & 2:
            e(f"    v_add_f32 v{T}, v{P[0]}, v{P[1]}")
            e(f"    v_add_f32 v{T+1}, v{P[2]}, v{P[3]}")
            e(f"    v_add_f32 v{T+2}, v{P[0]+2}, v{P[1]+2}")
            e(f"    v_add_f32 v{T+3}, v{P[2]+2}, v{P[3]+2}")
            e(f"    v_add_f32 v{T}, v{T}, v{T+1}")
            e(f"    v_add_f32 v{T+2}, v{T+2}, v{T+3}")
            e(f"    v_cvt_pk_bf16_f32 v{T}, v{T}, v{T+2}")
            e(f"    global_store_dword v{vOo}, v{T}, s[{sOutp}:{sOutp+1}]")
            e("    s_endpgm")
            return
        if stamp == 5:
            e("    s_memrealtime s[70:71]")
        for k in range(3):
            e(f"    v_and_b32 v{d+1+4*k}, -2, v{d+1+4*k}")
        e(f"    v_max3_f32 v{vM}, v{vMt}, v{d+1}, v{d+5}")
        e(f"    v_max_f32 v{vM}, v{vM}, v{d+9}")
        for k in range(4):
            e(f"    v_sub_f32 v{Wt+k}, v{vMt if k == 0 else P[k]+1}, v{vM}")
        for k in range(4):
            e(f"    v_exp_f32 v{Wt+k}, v{Wt+k}")
        for k in range(4):
            e(f"    v_and_b32 v{P[k]+3}, -2, v{P[k]+3}")
        for k in range(4):
            sel = "op_sel_hi:[1,0]" if k % 2 == 0 else "op_sel:[0,1] op_sel_hi:[1,1]"
            e(f"    v_pk_mul_f32 {r(T+2*k,2)}, {r(P[k]+2,2)}, {r(Wt+(k&2),2)} {sel}")
        e(f"    v_pk_add_f32 {r(T,2)}, {r(T,2)}, {r(T+2,2)}")
        e(f"    v_pk_add_f32 {r(T+4,2)}, {r(T+4,2)}, {r(T+6,2)}")
        e(f"    v_pk_add_f32 {r(T,2)}, {r(T,2)}, {r(T+4,2)}")
        e(f"    v_rcp_f32 v{vL}, v{T+1}")
        for k in range(4):
            e(f"    v_mul_f32 v{T+8+k}, v{Wt+k}, v{P[k]}")
        e(f"    v_add_f32 v{T+8}, v{T+8}, v{T+9}")
        e(f"    v_add_f32 v{T+10}, v{T+10}, v{T+11}")
        e(f"    v_mul_f32 v{T}, v{T}, v{vL}")
        e(f"    v_add_f32 v{T+8}, v{T+8}, v{T+10}")
        e(f"    v_mul_f32 v{T+8}, v{T+8}, v{vL}")
        e(f"    v_cvt_pk_bf16_f32 v{T}, v{T+8}, v{T}")
        e(f"    global_store_dword v{vOo}, v{T}, s[{sOutp}:{sOutp+1}]")
        if stamp == 5:
            e("    s_memrealtime s[72:73]")
        if stamp:
            e("    s_waitcnt vmcnt(0)")
            e("    s_branch L_st")
        elif ms >= 0:
            e("    s_branch L_pd")
        else:
            e("    s_endpgm")

    e("L_vev:")
    mile()
    if ramp:
        w0, w1, st0 = [int(x) for x in ramp.split(".")]
        tr()
        for i in range(NR):
            pv(i)
            wn = w0 if i < st0 else min(w1, int(round(w0 + (w1 - w0) * (i - st0 + 1) / (NR - st0))))
            e(f"    s_waitcnt vmcnt({wn-1})" + (" lgkmcnt(0)" if i % 16 == 1 else ""))
            load(i)
            vwork(i, False)
        e(f"    v_add_u32 v{vLd}, {64*gpi}, v{vLd}")
    if otl == 2:
        e(f"    global_load_dword v{vX+1}, v{vOo}, s[{sOutp}:{sOutp+1}]      ; warms the translation of the output page; value unused")
    e(f"    v_not_b32 v{vSn+13}, v{vSn+13}")
    e(f"    v_not_b32 v{vSn+15}, v{vSn+15}")
    e(f"    v_and_or_b32 v{vOwn+1}, v{vSn+13}, 1, v{vMt}")
    tr()
    if ck1 == 0:
        check(vMa)
    red = [[f"    v_add_f32_dpp v{vL}, v{vL}, v{vL} row_ror:{sh} {DPP}"] for sh in (1, 2, 4, 8)]
    for sw in ("v_permlane16_swap_b32", "v_permlane32_swap_b32"):
        red += [[f"    v_mov_b32 v{vT}, v{vL}"], [f"    {sw} v{vL}, v{vT}"], [f"    v_add_f32 v{vL}, v{vL}, v{vT}"]]
    red += [[f"    v_and_b32 v{vL}, -2, v{vL}", f"    v_and_or_b32 v{vOwn+3}, v{vSn+15}, 1, v{vL}"]]
    Wmax = max(Ws) if not ramp else NR
    for i in range(NR):
        n = NR - 1 - i + (3 if i >= ck1 else 0) + (1 if otl == 2 else 0)
        if i == 1 or NR - 1 - i < Wmax or i >= 6:
            e(f"    s_waitcnt vmcnt({n})" + (" lgkmcnt(0)" if i == 1 else ""))
        pv(i, True)
        if i == ck1 - 1:
            check(vMa)
        if i >= 6 and red:
            for x in red.pop(0):
                e(x)
        vwork(i, True)
    assert not red
    mile()
    if stamp:
        e(f"    s_memrealtime s[{sSt+2}:{sSt+3}]")
    if dpoll:
        check(vMb)
        e(f"    s_mov_b32 s{sJ}, {NP}")
        e("    s_nop 1")
    else:
        e(f"    s_mov_b32 s{sJ}, {NP}")
        e("    s_nop 4")
    e(f"    v_permlane32_swap_b32 v{vA0}, v{vA0+2}")
    e(f"    v_permlane32_swap_b32 v{vA0+1}, v{vA0+3}")
    e(f"    v_permlane32_swap_b32 v{vA1}, v{vA1+2}")
    e(f"    v_permlane32_swap_b32 v{vA1+1}, v{vA1+3}")
    e("    s_nop 0")
    e(f"    v_add_f32 v{vOwn}, v{vA0}, v{vA1+2}")
    e(f"    v_add_f32 v{vOwn+2}, v{vA0+1}, v{vA1+3}")
    e("    ; fast path: plain store, seen at once by workgroups that share this L2; bounded number of looks")
    e(f"    global_store_dwordx4 v{vSl}, {r(vOwn,4)}, s[{sWs}:{sWs+1}]")
    if diag & 8:
        e("    s_endpgm")
    if stamp == 5:
        e("    s_memrealtime s[68:69]")
    if dpoll:
        e("    s_waitcnt vmcnt(4)")
        valid(vMa, "L_fin")
        check(vMa)
        e("    s_waitcnt vmcnt(4)")
        e("L_poll:")
        valid(vMb, "L_finb")
        if diag & 4:
            e("    s_waitcnt vmcnt(0)")
            valid(vMa, "L_fin")
            check(vMa)
            e("    s_waitcnt vmcnt(0)")
            valid(vMa, "L_fin")
            e("    s_endpgm")
        check(vMb)
        e("    s_waitcnt vmcnt(3)")
        valid(vMa, "L_fin")
        check(vMa)
        e(f"    s_sub_u32 s{sJ}, s{sJ}, 1")
        e("    s_waitcnt vmcnt(3)")
        e("    s_cbranch_scc0 L_poll")
    else:
        e("    s_waitcnt vmcnt(1)")
        e("L_poll:")
        valid(vMa, "L_fin")
        check(vMa)
        e(f"    s_sub_u32 s{sJ}, s{sJ}, 1")
        e("    s_waitcnt vmcnt(0)")
        e("    s_cbranch_scc0 L_poll")
    e(f"    s_add_u32 s{sWs}, s{sWs}, 0x80000")
    e(f"    s_addc_u32 s{sWs+1}, s{sWs+1}, 0")
    e(f"    global_store_dwordx4 v{vSl}, {r(vOwn,4)}, s[{sWs}:{sWs+1}] sc1")
    e(f"    s_lshl_b32 s{sTmp}, s{sHead}, 2")
    e(f"    v_mov_b32 v{vX}, s{sTmp}")
    e(f"    v_mov_b32 v{vX+1}, 1")
    e("    s_mov_b64 exec, 1")
    e("    s_waitcnt vmcnt(0)")
    e(f"    global_atomic_add v{vT}, v{vX}, v{vX+1}, s[{sDbg}:{sDbg+1}] sc0")
    e("    s_waitcnt vmcnt(0)")
    e(f"    v_readfirstlane_b32 s{sTmp}, v{vT}")
    e("    s_mov_b64 exec, -1")
    e(f"    s_cmp_lg_u32 s{sTmp}, 3")
    e(f"    s_cbranch_scc1 {'L_st' if stamp else 'L_end'}")
    check(vMa)
    e("    s_waitcnt vmcnt(0)")
    e("L_fin:")
    finish(vMa)
    if dpoll:
        e("L_finb:")
        finish(vMb)
    if stamp:
        e("L_st:")
        e(f"    s_memrealtime s[{sSt+4}:{sSt+5}]")
        e(f"    s_load_dwordx2 s[{sWs}:{sWs+1}], s[0:1], 64")
        e(f"    s_mov_b32 s{sSt+7}, s63")
        e(f"    s_getreg_b32 s{sSt+6}, hwreg(HW_REG_XCC_ID, 0, 4)")
        e(f"    s_getreg_b32 s{sTmp+1}, hwreg(HW_REG_HW_ID, 0, 24)")
        e(f"    s_lshl_b32 s{sTmp+1}, s{sTmp+1}, 8")
        e(f"    s_or_b32 s{sSt+6}, s{sSt+6}, s{sTmp+1}")
        e("    s_waitcnt vmcnt(0) lgkmcnt(0)")
        e(f"    s_lshl_b32 s{sTmp+2}, s2, 5")
        e(f"    s_add_u32 s{sTmp+2}, s{sTmp+2}, 0x1000000")
        e(f"    v_mov_b32 v{vP}, s{sTmp+2}")
        for i in range(8):
            e(f"    v_mov_b32 v{vQ+i}, s{sSt+i}")
        e("    s_mov_b64 exec, 1")
        e(f"    global_store_dwordx4 v{vP}, {r(vQ,4)}, s[{sWs}:{sWs+1}]")
        e(f"    global_store_dwordx4 v{vP}, {r(vQ+4,4)}, s[{sWs}:{sWs+1}] offset:16")
        e("    s_mov_b64 exec, -1")
        if stamp == 5:
            for k in range(3):
                e(f"    v_writelane_b32 v{vTr}, s{68+2*k}, {k}")
        if stamp in (2, 3, 5):
            e(f"    s_lshl_b32 s{sTmp+2}, s2, 8")
            e(f"    s_add_u32 s{sTmp+2}, s{sTmp+2}, 0x2000000")
            e(f"    v_lshlrev_b32 v{vP}, 2, v0")
            e(f"    v_add_u32 v{vP}, s{sTmp+2}, v{vP}")
            e(f"    global_store_dword v{vP}, v{vTr}, s[{sWs}:{sWs+1}]")
    if ms >= 0:
        e("L_pd:")
        e(f"    s_cmp_lg_u32 s2, {mwg}")
        e("    s_cbranch_scc1 L_end")
        e("    s_waitcnt lgkmcnt(0)")
        e(f"    s_sub_u32 s56, s56, s{sSt}")
        e(f"    s_sub_u32 s56, s56, {msb}")
        e("    s_max_i32 s56, s56, 0")
        e("    s_min_i32 s56, s56, 2000")
        e("    s_mul_i32 s56, s56, 10")
        e("    s_add_u32 s56, s56, 8000")
        e("L_pad:")
        e(f"    s_memrealtime s[{sSt+2}:{sSt+3}]")
        e("    s_waitcnt lgkmcnt(0)")
        e(f"    s_sub_u32 s{sSt+2}, s{sSt+2}, s{sSt}")
        e(f"    s_cmp_lt_u32 s{sSt+2}, s56")
        e("    s_cbranch_scc1 L_pad")
    e("L_end:")
    e("    s_endpgm")
    if pfs:
        e("L_tail:")
        e(f"    .fill ({2048 * pfb + pfo} - (L_tail - L_pc)) / 4, 4, 0xbf810000   ; keeps the code prefetch inside .text")
    e('.section .rodata,"a"')
    e(".p2align 6")
    e(f".amdhsa_kernel {NAME}_kernel")
    e(f"  .amdhsa_next_free_vgpr {nv}")
    e(f"  .amdhsa_next_free_sgpr {nsg}")
    e(f"  .amdhsa_accum_offset {(nv+3)//4*4}")
    e("  .amdhsa_group_segment_fixed_size 0")
    e("  .amdhsa_kernarg_size 72")
    e("  .amdhsa_user_sgpr_count 2")
    e("  .amdhsa_user_sgpr_kernarg_segment_ptr 1")
    e("  .amdhsa_system_sgpr_workgroup_id_x 1")
    e("  .amdhsa_float_denorm_mode_32 3")
    e(".end_amdhsa_kernel")
    if stamp == 2:
        e(f"; meta waves={NWG} iters={2*iters} every=1 bytes={1 << 29}")
    return "\n".join(o) + "\n"


if __name__ == "__main__":
    for spec in sys.argv[1:]:
        name, _, kv = spec.partition(":")
        kw = {}
        for p in kv.split(","):
            if p:
                k, v = p.split("=")
                kw[k] = v.replace("+", " ") if k in ("fl", "map", "W", "duty", "xr", "offs", "inc", "mfl", "ramp") else int(v, 0)
        path = f"cdna_kernels/{NAME}.s" if name == "main" else f"var/{name}.s"
        open(path, "w").write(gen(**kw))
```

```python
import math, struct, sys
from gen1 import NAME, HEADER, f2u


def gen(W="20.21.22.24", duty="90909090", offs="0.20", inc="0.1.9", mp=5, mstr=4, mfl="glc",
        fl="nt", stamp=0, nk0=4, NI=28, pfs=1, ck1=28, kvb=2, NP=12, dpoll=1, vm=1, ramp="", gx=0, gth=8, ginc=1, glen=0, gd=2, g0=0, free=0, diag=0, pre=1, pfo=128, otl=0, gneg=0, k0=1, ms=-1, msb=0, mwg=0, stl=0, pfe=1, xc=1, defer=1, refm=13,
        map="w3n6n4r0n1n2n3n0w4n5n7n8n9r1w1w2w7w5w6w0", xr="14w5", cmt=0):
    Ws = [int(x) for x in W.split(".")]
    NC = len(Ws)
    offs = [int(x) for x in offs.split(".")]
    inc = [int(x) for x in inc.split(".")]
    assert len(inc) == len(offs) + 1 and len(offs) <= 3 and offs == sorted(offs)
    NR, NWG, iters, gpi, ngrp = 32, 256, 32, 8, 256
    lds = (ngrp + 3) * 64
    toks = [map[i:i+2] for i in range(0, len(map), 2)]
    if len(toks) in (10, 16):
        toks = toks[:9] + ["n6", "n7", "n8", "n9"] + toks[9:]
    if len(toks) == 14:
        toks += [f"w{i}" for i in range(8) if f"w{i}" not in toks]
    pos = {t: 8 + i for i, t in enumerate(toks)}
    assert sorted(pos) == sorted(["r0", "r1"] + [f"w{i}" for i in range(8)] + [f"n{i}" for i in range(10)])
    assert free or all(t[0] == "w" for t in toks[14:])
    spl = [t for t in toks[:14] if t[0] == "w"]
    hdt = toks[14:]
    adr = spl
    if free:
        adr = [t for t in toks if t[0] == "w"]
        spl = ["w3", "w4"]
        hdt = ["w0", "w1", "w2", "w5", "w6", "w7"]
    hi = [pos[f"n{i}"] for i in range(5, 10)]
    himask = sum(1 << b for b in hi)
    xrs = [(int(t.split("w")[0]), int(t.split("w")[1])) for t in xr.split(".") if t]
    xrmask = sum(1 << p for p, _ in xrs)
    assert all(toks[p - 8][0] == "n" for p, _ in xrs)
    scatter = hi != sorted(hi)
    contiguous = hi == list(range(hi[0], hi[0] + 5)) and not xrs
    immm = 0xfff & ~xrmask

    def lowoff(n):
        return sum(((n >> i) & 1) << pos[f"n{i}"] for i in range(5))
    o = []
    e = o.append

    vOff, vVoff, vM1 = 1, 2, 3
    vTt, vT, vT2, vP, vPk, vL, vM, vMt = 4, 5, 6, 7, 8, 9, 10, 11
    vMask = 12
    vS = 16
    vB1, vB2 = 16, 20
    vA0, vA1 = 24, 28
    vQ = 32
    vSc = 48
    vM2, vM3 = 50, 51
    vSl, vOo = 52, 53
    vX = 54
    vSn = 56
    vLd, vMad, vMs, vMn = 72, 73, 74, 75
    vGad, vGs, vGn, vG = 76, 77, 78, 79
    vK = [[80, 81, 82], [83, 84, 85]]
    vVt = 86
    vR = 88
    nv = vR + 4 * NR
    vTr = nv
    if stamp in (2, 3, 5):
        nv += 1
    sR = 8
    sT2, sNx, sXr, sSp = 12, 13, 14, 15
    sOff, sHi, sC, sHead, sSplit, sJ, sIx, sMk = 16, 17, 18, 19, 20, 21, 22, 23
    sQp, sKp, sVp, sKtp, sVtp, sMp, sOutp, sDbg, sWs = 24, 26, 28, 30, 32, 34, 36, 38, 40
    sTmp = 42
    sMaskv, sAcc, sDuty, sMo = 48, 49, 50, 51
    sSt = 52
    sEx = 4
    sCell = [3, 6, 7]
    sMb = 64
    sEv = 66
    sGb, sGr, sGw = 94, 96, 97
    nsg = 100 if (stamp in (3, 5) or gx) else 76
    glen = glen or gx
    pst = [0]

    msn = [0]

    def mile():
        if msn[0] == ms:
            e("    s_memrealtime s[56:57]")
        msn[0] += 1

    def pstamp():
        mile()
        if stamp == 3:
            e(f"    s_memrealtime s[{68+2*pst[0]}:{69+2*pst[0]}]")
            pst[0] += 1

    def r(b, n):
        return f"v[{b}:{b+n-1}]"
    DPP = "row_mask:0xf bank_mask:0xf"

    def gather(dst, items, tmp):
        runs = []
        for wb, db in sorted(items):
            if runs and runs[-1][0] + runs[-1][2] == wb and runs[-1][1] + runs[-1][2] == db:
                runs[-1][2] += 1
            else:
                runs.append([wb, db, 1])
        for k, (wb, db, n) in enumerate(runs):
            t = dst if k == 0 else tmp
            e(f"    s_bfe_u32 s{t}, s2, {hex((n << 16) | wb)}")
            if db:
                e(f"    s_lshl_b32 s{t}, s{t}, {db}")
            if k:
                e(f"    s_xor_b32 s{dst}, s{dst}, s{t}")

    e(HEADER.rstrip())
    e(f"; @launch grid=({NWG},1,1) block=(64,1,1) lds={lds}")
    if cmt:
        e(open("notes.txt").read().rstrip())
    e('.amdgcn_target "amdgcn-amd-amdhsa--gfx950"')
    e(".text")
    e(f".globl {NAME}_kernel")
    e(".p2align 8")
    e(f".type {NAME}_kernel,@function")
    e(f"{NAME}_kernel:")
    if stamp or ms >= 0:
        e(f"    s_memrealtime s[{sSt}:{sSt+1}]")
    e(f"    s_load_dwordx16 s[{sQp}:{sQp+15}], s[0:1], 0")
    e(f"    s_load_dwordx2 s[{sWs}:{sWs+1}], s[0:1], 64")
    e(f"    s_cmp_ge_u32 s2, {NWG}")
    e("    s_cbranch_scc1 L_end")
    pfb = pfs if pfs >= 8 else 4 << pfs

    def prefetch():
        if not pfs:
            return 0
        e(f"    s_getpc_b64 s[{sTmp+4}:{sTmp+5}]")
        e("L_pc:")
        e(f"    s_mul_i32 s{sT2}, s{sAcc}, {64*pfb}")
        e(f"    v_mad_u32_u24 v{vMn}, v0, {pfb}, s{sT2}")
        e(f"    global_load_dword v{vSc}, v{vMn}, s[{sTmp+4}:{sTmp+5}] offset:{pfo}")
        return 1
    e(f"    s_lshr_b32 s{sAcc}, s2, 3")
    if pfe:
        prefetch()
    e("    ; head index, byte offset of this split inside a head, order mask")
    gather(sHead, [(int(t[1]), i) for i, t in enumerate(hdt)], sTmp)
    gather(sSp, [(int(t[1]), pos[t]) for t in adr], sTmp)
    if xrs:
        gather(sXr, [(w, p) for p, w in xrs], sTmp)
    e(f"    v_lshrrev_b32 v{vT}, 4, v0")
    e(f"    v_lshlrev_b32 v{vT}, 6, v{vT}")
    e(f"    v_and_b32 v{vT2}, 3, v0")
    e(f"    v_lshl_add_u32 v{vT}, v{vT2}, 4, v{vT}")
    if pos["r1"] == pos["r0"] + 1:
        e(f"    v_bfe_u32 v{vT2}, v0, 2, 2")
        e(f"    v_lshl_add_u32 v{vOff}, v{vT2}, {pos['r0']}, v{vT}")
    else:
        e(f"    v_bfe_u32 v{vT2}, v0, 2, 1")
        e(f"    v_lshl_add_u32 v{vOff}, v{vT2}, {pos['r0']}, v{vT}")
        e(f"    v_bfe_u32 v{vT2}, v0, 3, 1")
        e(f"    v_lshl_add_u32 v{vOff}, v{vT2}, {pos['r1']}, v{vOff}")
    e(f"    v_add_u32 v{vOff}, s{sSp}, v{vOff}")
    e(f"    s_lshl_b32 s{sTmp}, s{sHead}, 22" if not free else f"    s_mov_b32 s{sTmp}, 0")

    dl = sorted({(lowoff(i) & ~immm) ^ (lowoff(i + 1) & ~immm) for i in range(NR - 1)} - {0})
    xreg = {}
    if xc:
        for k, d in enumerate(dl):
            xreg[d] = 68 + k if stamp not in (3, 5) else 88 + k
            e(f"    s_mov_b32 s{xreg[d]}, {hex(d)}")

    def reset_off():
        e(f"    s_mov_b32 s{sOff}, {'s%d' % sXr if xrs else 0}")
        if not contiguous:
            e(f"    s_mov_b32 s{sHi}, 0")
    reset_off()
    e(f"    s_mov_b32 s{sR+2}, {hex(1 << 28) if free else '0x400000'}")
    e(f"    s_mov_b32 s{sR+3}, 0x20000")
    gather(sSplit, [(int(t[1]), i) for i, t in enumerate(spl)], sTmp + 1)
    e(f"    s_lshl_b32 s{sTmp+1}, s{sSplit}, 10")
    e(f"    s_lshl_b32 s{sTmp+2}, s{sHead}, 8")
    e(f"    s_lshl_b32 s{sTmp+3}, s{sHead}, 12")
    e(f"    v_lshlrev_b32 v{vMad}, 2, v0")
    e(f"    v_lshlrev_b32 v{vSl}, 4, v0")
    e(f"    v_and_b32 v{vVoff}, 0xf0, v{vSl}")
    e(f"    v_bfe_u32 v{vP}, v0, 4, 1")
    e(f"    v_lshl_add_u32 v{vOo}, v{vP}, 3, v{vVoff}       ; v_tree offset: (l&15)*16 + ((l>>4)&1)*8")
    e(f"    v_add_u32 v{vSl}, s{sTmp+1}, v{vSl}")
    e("    s_waitcnt lgkmcnt(0)")
    pstamp()
    if stl:
        for k, p in enumerate((sQp, sKtp, sVtp, sWs)):
            e(f"    s_load_dword s{58+k}, s[{p}:{p+1}], 0        ; starts the translation of this buffer's page")
    e(f"    s_add_u32 s{sR}, s{sKp}, s{sTmp}")
    e(f"    s_addc_u32 s{sR+1}, s{sKp+1}, 0")

    hruns = []
    for k, b in enumerate(hi):
        if hruns and hruns[-1][1] + hruns[-1][2] == b:
            hruns[-1][2] += 1
        else:
            hruns.append([k, b, 1])

    def load(i, first=False):
        lo = lowoff(i)
        e(f"    buffer_load_dwordx4 {r(vR+4*i,4)}, v{vOff}, s[{sR}:{sR+3}], s{sOff} offen offset:{lo & immm} {fl}")
        cur = lo & ~immm
        if i < NR - 1:
            d = cur ^ (lowoff(i + 1) & ~immm)
            if d:
                e(f"    s_xor_b32 s{sOff}, s{sOff}, {'s%d' % xreg[d] if d in xreg else hex(d)}")
            elif i % 4 == 3:
                e("    s_nop 0")
            if scatter and first:
                if i == 8:
                    e(f"    s_mov_b32 s{sHi}, 1")
                    e(f"    s_xor_b32 s{sNx}, {'s%d' % sXr if xrs else 0}, {hex(1 << hi[0])}")
            elif scatter and 8 <= i < 8 + len(hruns):
                cb, db, n = hruns[i - 8]
                if i == 8:
                    e(f"    s_add_u32 s{sHi}, s{sHi}, 1")
                e(f"    s_bfe_u32 s{sT2}, s{sHi}, {hex((n << 16) | cb)}")
                e(f"    s_lshl_b32 s{sT2}, s{sT2}, {db}")
                e(f"    s_xor_b32 s{sNx}, {('s%d' % sXr if xrs else 0) if i == 8 else 's%d' % sNx}, s{sT2}")
            if not scatter and not contiguous and i == 11:
                e(f"    s_or_b32 s{sHi}, s{sHi}, {hex(~himask & 0xffffffff)}")
                e(f"    s_add_u32 s{sHi}, s{sHi}, 1")
                e(f"    s_and_b32 s{sHi}, s{sHi}, {hex(himask)}")
        elif contiguous:
            e(f"    s_add_u32 s{sOff}, s{sOff}, {hex(((1 << hi[0]) - cur) & 0xffffffff)}")
        elif scatter:
            e(f"    s_mov_b32 s{sOff}, s{sNx}")
        elif xrs:
            e(f"    s_xor_b32 s{sOff}, s{sHi}, s{sXr}")
        else:
            e(f"    s_mov_b32 s{sOff}, s{sHi}")

    for i in range(nk0):
        load(i, True)
    if ms == 10:
        e("    s_memrealtime s[56:57]")
    for p in (sQp, sKtp, sVtp):
        e(f"    s_add_u32 s{p}, s{p}, s{sTmp+2}")
        e(f"    s_addc_u32 s{p+1}, s{p+1}, 0")
    e(f"    s_load_dword s{sMaskv}, s[{sMp}:{sMp+1}], 0")
    e(f"    global_load_dwordx4 {r(vS,4)}, v{vT}, s[{sQp}:{sQp+1}]")
    e(f"    global_load_dword v{vA0}, v{vMad}, s[{sQp}:{sQp+1}]")
    e(f"    global_load_dword v{vA0+1}, v{vMad}, s[{sKtp}:{sKtp+1}]")
    e(f"    global_load_dwordx2 {r(vVt,2)}, v{vOo}, s[{sVtp}:{sVtp+1}]")
    e(f"    s_getreg_b32 s{sIx}, hwreg(HW_REG_XCC_ID, 0, 3)")
    e(f"    s_mul_i32 s{sT2}, s{sIx}, {max(4096, 64*mstr)+256}")
    e(f"    s_add_u32 s{sT2}, s{sT2}, 0x40000")
    e(f"    s_add_u32 s{sMb}, s{sWs}, s{sT2}")
    e(f"    s_addc_u32 s{sMb+1}, s{sWs+1}, 0")
    if gx:
        e(f"    s_add_u32 s{sGb}, s{sWs}, 0x100000")
        e(f"    s_addc_u32 s{sGb+1}, s{sWs+1}, 0")
    assert mstr == 4
    e(f"    s_add_u32 s{sWs}, s{sWs}, s{sTmp+3}")
    e(f"    s_addc_u32 s{sWs+1}, s{sWs+1}, 0")
    e(f"    global_load_dword v{vMs}, v{vMad}, s[{sMb}:{sMb+1}] sc1")
    e(f"    v_xor_b32 v{vM1}, 0x400, v{vSl}")
    e(f"    v_xor_b32 v{vM2}, 0x800, v{vSl}")
    e(f"    v_xor_b32 v{vM3}, 0xc00, v{vSl}")
    for k, a in enumerate((vM1, vM2, vM3, vSl)):
        e(f"    global_load_dwordx4 {r(vSn+4*k,4)}, v{a}, s[{sWs}:{sWs+1}] sc1")
    nsmall = 9
    if gx:
        e(f"    s_mul_i32 s{sGr}, s{sAcc}, {refm}")
        e(f"    s_add_u32 s{sGr}, s{sGr}, 5")
        e(f"    s_and_b32 s{sGr}, s{sGr}, 31")
        e(f"    s_lshl_b32 s{sT2}, 1, s{sGr}")
        e(f"    v_mul_u32_u24 v{vGad}, 4352, v0")
        e(f"    s_mov_b32 exec_lo, s{sT2}")
        e(f"    s_mov_b32 exec_hi, s{sT2}")
        e(f"    global_load_dword v{vGs}, v{vGad}, s[{sGb}:{sGb+1}] sc1")
        e("    s_mov_b64 exec, -1")
        nsmall += 1
    if not pfe:
        nsmall += prefetch()
    if ms == 11:
        e("    s_memrealtime s[56:57]")
    for i in range(nk0, NI):
        load(i, True)
    pstamp()
    cs = (128 ** -0.5) * math.log2(math.e)

    def late_a():
        e(f"    s_lshl_b32 s{sTmp}, s{sHead}, 22" if not free else f"    s_mov_b32 s{sTmp}, 0")
        e(f"    s_lshl_b32 s{sTmp+2}, s{sHead}, 8")
        e(f"    s_add_u32 s{sVp}, s{sVp}, s{sTmp}")
        e(f"    s_addc_u32 s{sVp+1}, s{sVp+1}, 0")
        e(f"    s_add_u32 s{sOutp}, s{sOutp}, s{sTmp+2}")
        e(f"    s_addc_u32 s{sOutp+1}, s{sOutp+1}, 0")
        e(f"    v_lshrrev_b32 v{vPk}, 5, v0")
        e(f"    v_lshl_add_u32 v{vOo}, v{vPk}, 2, v{vOo}        ; output offset")
        e(f"    v_lshl_add_u32 v{vVoff}, v{vPk}, {pos['r1']}, v{vVoff}")
        e(f"    v_bfe_u32 v{vPk}, v0, 4, 1")
        e(f"    v_lshl_add_u32 v{vVoff}, v{vPk}, {pos['r0']}, v{vVoff}")
        e(f"    v_add_u32 v{vVoff}, s{sSp}, v{vVoff}")
        e(f"    s_mov_b32 s{sC}, {hex(f2u(cs))}")
        e(f"    s_lshr_b32 s{sTmp}, s{sHead}, 5")
        e(f"    s_lshl_b32 s{sTmp}, s{sTmp}, 4")
        e("    s_waitcnt lgkmcnt(0)")
        e(f"    s_lshr_b32 s{sMaskv}, s{sMaskv}, s{sTmp}")
        e(f"    s_lshl_b32 s{sMaskv}, s{sMaskv}, 16")
        e(f"    v_sub_f32 v{vL}, s{sMaskv}, 1.0               ; mask - 1")
        e(f"    v_mul_f32 v{vL}, {hex(f2u(1e9*math.log2(math.e)))}, v{vL}   ; (1-mask)*-1e9*log2(e)")
        e(f"    s_cmp_eq_u32 s{sSplit}, 0")
        e(f"    s_cselect_b32 s{sTmp}, 0, 0xff800000")
        e(f"    v_add_f32 v{vL}, s{sTmp}, v{vL}")

    def late_b():
        e(f"    v_and_b32 v{vP}, 1, v0")
        e(f"    v_lshlrev_b32 v{vP}, 4, v{vP}")
        e(f"    v_mov_b32 v{vPk}, 0xffff")
        e(f"    v_lshlrev_b32 v{vPk}, v{vP}, v{vPk}")
        e(f"    v_bfe_u32 v{vP}, v0, 1, 2")
        fill = [[f"    v_lshlrev_b32 v{vA1}, 16, v{vA0}", f"    v_lshlrev_b32 v{vA1+1}, 16, v{vA0+1}"],
                [f"    v_mul_f32 v{vTt}, v{vA1}, v{vA1+1}", f"    v_and_b32 v{vA1}, 0xffff0000, v{vA0}"],
                [f"    v_and_b32 v{vA1+1}, 0xffff0000, v{vA0+1}", f"    v_fmac_f32 v{vTt}, v{vA1}, v{vA1+1}"],
                [f"    v_lshlrev_b32 v{vA0}, 16, v{vVt}", f"    v_and_b32 v{vA0+1}, 0xffff0000, v{vVt}"]]
        for i in range(4):
            e(f"    v_cmp_eq_u32 vcc, {i}, v{vP}")
            for x in fill[i]:
                e(x)
            e(f"    v_cndmask_b32 v{vMask+i}, 0, v{vPk}, vcc")
        e(f"    v_lshlrev_b32 v{vA0+2}, 16, v{vVt+1}")
        e(f"    v_and_b32 v{vA0+3}, 0xffff0000, v{vVt+1}")

    def late_c():
        for k, sh in enumerate((1, 2, 4, 8)):
            e(f"    v_add_f32_dpp v{vTt}, v{vTt}, v{vTt} row_ror:{sh} {DPP}")
            e(f"    v_mov_b32 v{vA1+k}, 0")
            if k < 3:
                e("    s_nop 0")
        for x in xrow(vTt, vP, "v_add_f32"):
            e(x)
        e(f"    v_fma_f32 v{vTt}, v{vTt}, s{sC}, v{vL}")

    def xrow(reg, tmp, op):
        L = []
        for sw in ("v_permlane16_swap_b32", "v_permlane32_swap_b32"):
            L += [f"    v_mov_b32 v{tmp}, v{reg}", "    s_nop 1", f"    {sw} v{reg}, v{tmp}", "    s_nop 1",
                  f"    {op} v{reg}, v{reg}, v{tmp}"]
        return L

    if not defer:
        late_a()
    e(f"    v_mov_b32 v{vM}, 0xff800000")
    e(f"    v_and_b32 v{vLd}, 60, v0                      ; score slots: group*64 + (lane>>2)*4, slot 0 is a dummy")
    for i in range(4):
        e(f"    v_mov_b32 v{vS+4+i}, v{vM}                  ; 'previous group' of group 0")
    dv = [int(ch, 32) for ch in duty]
    if dv == dv[:2] * 4:
        e(f"    s_bitcmp1_b32 s{sIx}, 0")
        e(f"    s_cselect_b32 s{sDuty}, {dv[1]}, {dv[0]}")
    else:
        tab = sum(d << (5 * i) for i, d in enumerate(dv))
        e(f"    s_mov_b32 s{sTmp+2}, {hex(tab & 0xffffffff)}")
        e(f"    s_mov_b32 s{sTmp+3}, {hex(tab >> 32)}")
        e(f"    s_mul_i32 s{sTmp}, s{sIx}, 5")
        e(f"    s_lshr_b64 s[{sTmp+2}:{sTmp+3}], s[{sTmp+2}:{sTmp+3}], s{sTmp}")
        e(f"    s_and_b32 s{sDuty}, s{sTmp+2}, 31")
    e(f"    ; workgroup row r = wg>>3 publishes the markers of iterations ({refm}r+5)&31 and that + 32")
    e(f"    s_mul_i32 s{sTmp}, s{sAcc}, {refm}")
    e(f"    s_add_u32 s{sTmp}, s{sTmp}, 5")
    e(f"    s_and_b32 s{sTmp}, s{sTmp}, 31")
    e(f"    s_lshl_b64 s[{sEx}:{sEx+1}], 1, s{sTmp}")
    sites = []
    for k, of in enumerate(offs):
        d, st = divmod(mp + of, NR)
        e(f"    s_add_u32 s{sCell[k]}, s{sTmp}, {d}")
        sites.append((st, k))
    if gx:
        e(f"    s_lshr_b32 s{sTmp+1}, s{sGr}, {int(math.log2(gx))}")
        e(f"    s_mul_i32 s{sTmp+1}, s{sTmp+1}, 3")
        e(f"    s_xor_b32 s{sTmp+1}, s{sTmp+1}, s2")
        e(f"    s_and_b32 s{sTmp+2}, s{sGr}, {gx-1}")
        e(f"    s_cselect_b32 s{sGr}, 0x100, s{sGr}")
        e(f"    s_and_b32 s{sTmp+1}, s{sTmp+1}, 7")
        e(f"    s_cselect_b32 s{sGw}, 0x100, s{sGr}")
        if gneg:
            e(f"    s_cmp_eq_u32 s{sGr}, 0")
            e(f"    s_cselect_b32 s{sGr}, 32, s{sGr}")
        gdw = (mp - 1 + gth) // NR
        assert gdw in (0, -1)
        if gdw:
            e(f"    s_sub_u32 s{sGw}, s{sGw}, 1")
            e(f"    s_cselect_b32 s{sGw}, 31, s{sGw}")
    e(f"    s_and_b32 s{sAcc}, s{sAcc}, 15")
    e(f"    s_mov_b32 s{sJ}, 0")
    if not vm:
        e(f"    s_mov_b32 s{sMo}, 0")
    e(f"    s_mov_b32 s{sEv}, {2 if defer else iters-1}")
    if stamp:
        e("    s_mov_b32 s63, 0")
    lvl = [0, 1, 2, 4][:len(inc)]
    inctab = sum(min(v, 15) << (8 * l) for v, l in zip(inc, lvl) if l < 4)
    stubs = []

    def control(i, tag):
        for st, k in sites:
            if st == i:
                e(f"    s_cmp_eq_u32 s{sJ}, s{sCell[k]}")
                e(f"    s_cbranch_scc1 L_pub_{tag}_{k}")
                e(f"L_pubx_{tag}_{k}:")
                stubs.append((tag, k))
        if gx:
            for nm, st, reg in (("gr", mp - 1, sGr), ("gw", (mp - 1 + gth) % NR, sGw), ("ge", 30, sGr)):
                if st == i:
                    e(f"    s_cmp_eq_u32 s{sJ}, s{reg}")
                    e(f"    s_cbranch_scc1 L_pub_{tag}_{nm}")
                    e(f"L_pubx_{tag}_{nm}:")
                    stubs.append((tag, nm))
        if i == mp and not vm:
            e(f"    s_load_dword s{sMk}, s[{sMb}:{sMb+1}], s{sMo} {mfl}")
        if i == mp and vm:
            e(f"    global_load_dword v{vX}, v{vMad}, s[{sMb}:{sMb+1}] sc1")
        if i == 29 and vm:
            e(f"    v_readlane_b32 s{sMk}, v{vX}, s{sJ}")
        if i == 27:
            e(f"    v_readlane_b32 s{sTmp}, v{vMs}, s{sJ}")
            e(f"    s_add_u32 s{sAcc}, s{sAcc}, s{sDuty}")
            e(f"    s_lshr_b32 s{sIx}, s{sAcc}, 4")
            e(f"    s_and_b32 s{sAcc}, s{sAcc}, 15")
        if i == 28 and not vm:
            e(f"    s_add_u32 s{sMo}, s{sMo}, {mstr}")
        if i == (30 if vm else 29):
            e(f"    s_xor_b32 s{sTmp}, s{sTmp}, s{sMk}")
            if gx:
                e(f"    s_bitcmp1_b32 s{sTmp}, 16")
                e(f"    s_cselect_b32 s{sTmp+1}, {0 if gneg else ginc}, {ginc if gneg else 0}")
                e(f"    s_add_u32 s{sIx}, s{sIx}, s{sTmp+1}")
                if stamp:
                    e(f"    s_bfe_u32 s{sTmp+1}, s{sTmp}, 0x10010")
                    e(f"    s_add_u32 s63, s63, s{sTmp+1}")
                e(f"    s_and_b32 s{sTmp}, s{sTmp}, 0xffff")
            e(f"    s_bcnt1_i32_b32 s{sTmp}, s{sTmp}")
            if len(offs) == 3:
                e(f"    s_cmp_gt_u32 s{sTmp}, 16")
                e(f"    s_cselect_b32 s{sIx}, {NC-1}, s{sIx}")
        if i == 30:
            e(f"    s_lshr_b32 s{sTmp}, {hex(inctab)}, s{sTmp}")
            e(f"    s_and_b32 s{sTmp}, s{sTmp}, 15")
            e(f"    s_add_u32 s{sIx}, s{sIx}, s{sTmp}")
            if stamp and not gx:
                e(f"    s_min_u32 s{sIx}, s{sIx}, {NC-1}")
                e(f"    s_add_u32 s63, s63, s{sIx}")

    def dispatch(ph, order):
        for c in order[:-1]:
            e(f"    s_cmp_{'ge' if c == NC-1 else 'eq'}_u32 s{sIx}, {c}")
            e(f"    s_cbranch_scc1 L_{ph}{c}")
        e(f"    s_branch L_{ph}{order[-1]}")

    def endit(ph):
        e(f"    v_add_u32 v{vLd}, {64*gpi}, v{vLd}")
        e(f"    s_add_u32 s{sJ}, s{sJ}, 1")
        if ms == 13 and ph == "k":
            msn.append(0)
            e(f"    s_cmp_lg_u32 s{sJ}, 2")
            e(f"    s_cbranch_scc1 L_ms{len(msn)}")
            e("    s_memrealtime s[56:57]")
            e(f"L_ms{len(msn)}:")
        e(f"    s_cmp_eq_u32 s{sJ}, s{sEv}")
        e(f"    s_cbranch_scc1 L_{ph}ev")
        dispatch(ph, [1, 2, 0] + list(range(3, NC)) if NC > 3 else list(range(NC)))

    def tr():
        if stamp == 2:
            e("    s_waitcnt lgkmcnt(0)")
            e(f"    v_writelane_b32 v{vTr}, s60, m0")
            e("    s_add_u32 m0, m0, 1")
            e("    s_memrealtime s[60:61]")

    def fin_a(S):
        e(f"    v_mov_b32_dpp v{vT}, v{S} quad_perm:[0,0,0,0] {DPP}")
        e(f"    v_mov_b32_dpp v{vT2}, v{S+2} quad_perm:[2,2,2,2] {DPP}")

    def fin_b(S, off):
        e(f"    v_add_f32_dpp v{vT}, v{S+1}, v{vT} quad_perm:[1,1,1,1] {DPP}")
        e(f"    v_add_f32_dpp v{vT2}, v{S+3}, v{vT2} quad_perm:[3,3,3,3] {DPP}")
        e(f"    v_add_f32 v{vT}, v{vT}, v{vT2}")
        e(f"    v_max_f32 v{vM}, v{vM}, v{vT}")
        e(f"    ds_write_b32 v{vLd}, v{vT} offset:{off}")

    def qp(c):
        return f"quad_perm:[{c},{c},{c},{c}] {DPP}"

    def b1(g, vB1=vB1):
        k, c = vK[(g >> 2) & 1], g & 3
        e(f"    v_and_b32_dpp v{vB1}, v{k[0]}, v{vMask} {qp(c)}")
        e(f"    v_and_b32_dpp v{vB1+1}, v{k[0]}, v{vMask+1} {qp(c)}")
        e(f"    v_and_b32_dpp v{vB1+2}, v{k[1]}, v{vMask+2} {qp(c)}")
        e(f"    v_and_b32_dpp v{vB1+3}, v{k[1]}, v{vMask+3} {qp(c)}")

    def b2(g, vB2=vB2):
        k, c = vK[(g >> 2) & 1], g & 3
        e(f"    v_and_b32_dpp v{vB2}, v{k[2]}, v{vMask} {qp(c)}")
        e(f"    v_and_b32_dpp v{vB2+1}, v{k[2]}, v{vMask+1} {qp(c)}")
        e(f"    v_and_b32_dpp v{vB2+2}, v{k[0]}, v{vMask+2} {qp(c)}")
        e(f"    v_and_b32_dpp v{vB2+3}, v{k[0]}, v{vMask+3} {qp(c)}")

    def p_a():
        e(f"    v_fma_f32 v{vP}, v{vSc}, s{sC}, -v{vMt}")
        e(f"    v_exp_f32 v{vP}, v{vP}")

    def p_b(bt):
        e(f"    v_cvt_pk_bf16_f32 v{vK[bt][0]}, v{vP}, v{vP}")
        e(f"    v_add_f32 v{vL}, v{vL}, v{vP}")

    def p_c(bt):
        e(f"    v_mov_b32_dpp v{vK[bt][1]}, v{vK[bt][0]} row_ror:4 {DPP}")
        e(f"    v_mov_b32_dpp v{vK[bt][2]}, v{vK[bt][0]} row_ror:12 {DPP}")

    def pv(i, drain=False):
        u = i % 4
        A = vA0 if u % 2 == 0 else vA1
        Pm = vB1 if u < 2 else vB2
        if drain and pre and i >= 24:
            Pm = vR + 48 + 4 * ((i - 24) // 2)
        e(f"    v_mfma_f32_16x16x32_bf16 {r(A,4)}, {r(Pm,4)}, {r(vR+4*i,4)}, {r(A,4)}")

    def vwork(i, drain):
        g, u = divmod(i, 4)
        bt, j = divmod(i, 16)
        if drain and pre and i in (17, 19, 21, 23):
            k = (i - 17) // 2
            (b1, b2)[k & 1](6 + (k >> 1), vR + 48 + 4 * k)
        if u == 0 and not (drain and pre and g >= 6):
            b2(g)
        if u == 2 and not (drain and g >= (5 if pre else 7)):
            b1(g + 1)
        if drain and bt == 1:
            return
        if j == 1:
            p_a()
            if not drain:
                e(f"    ds_read_b32 v{vSc}, v{vLd} offset:{256*(bt+2)}")
        if j == 3:
            p_b(bt ^ 1)
        if j == 5:
            p_c(bt ^ 1)

    quad = [0, 2, 1, 3]
    pstamp()
    for j in range(NI, NR):
        need = j - NI
        e(f"    s_waitcnt vmcnt({NI-1+(nsmall if need < nk0 else 0)})")
        if ms == 12 and need == 0:
            e("    s_memrealtime s[56:57]")
        load(j, True)
    e(f"    v_bfe_u32 v{vT2}, v0, 2, 2")
    for u in range(4):
        e(f"    v_cmp_eq_u32 s[{sTmp+2*u if u < 3 else sMp}:{sTmp+2*u+1 if u < 3 else sMp+1}], {quad[u]}, v{vT2}")
    e(f"    s_waitcnt vmcnt({NR-nk0+nsmall-1})            ; q")
    pstamp()
    for u in range(4):
        for i in range(4):
            e(f"    v_cndmask_b32 v{vQ+4*u+i}, 0, v{vS+i}, s[{sTmp+2*u if u < 3 else sMp}:{sTmp+2*u+1 if u < 3 else sMp+1}]")
    if not defer:
        e(f"    s_waitcnt vmcnt({NR-nk0+nsmall-4})")
        late_b()
        late_c()
    e(f"    s_waitcnt vmcnt({min(NR-1, NR-nk0+nsmall-5) if nk0 == 0 else NR-nk0+nsmall-5})")
    e(f"    v_not_b32 v{vMn}, v{vMs}")
    pstamp()
    if stamp == 2:
        e(f"    v_mov_b32 v{vTr}, 0")
        e("    s_mov_b32 m0, 0")
        e("    s_memrealtime s[60:61]")
    if stamp == 3:
        e(f"    v_mov_b32 v{vTr}, 0")
        e("    s_waitcnt lgkmcnt(0)")
        for k in range(pst[0]):
            e(f"    v_writelane_b32 v{vTr}, s{68+2*k}, {k}")

    def wcount(i, Wn):
        if not vm:
            return Wn - 1
        n = Wn - 1 + (1 if mp < i < mp + Wn else 0)
        if i == 29:
            n = min(n, 29 - mp - 1)
        return n

    def kbody(c):
        e(f"L_k{c}:                                          ; K iteration, {Ws[c]} loads in flight")
        tr()
        for i in range(NR):
            g, u = divmod(i, 4)
            S = vS + 4 * (g & 1)
            Sp = vS + 4 * ((g + 1) & 1)
            cc = "0" if u == 0 else r(S, 4)
            e(f"    v_mfma_f32_16x16x32_bf16 {r(S,4)}, {r(vR+4*i,4)}, {r(vQ+4*u,4)}, {cc}")
            e(f"    s_waitcnt vmcnt({wcount(i, Ws[c])})" + (" lgkmcnt(0)" if i == 29 and not vm else ""))
            load(i)
            control(i, f"k{c}")
            if u == 1:
                fin_a(Sp)
            if u == 2:
                fin_b(Sp, 64 * g)
        endit("k")

    def vbody(c):
        e(f"L_v{c}:                                          ; V iteration, {Ws[c]} loads in flight")
        tr()
        for i in range(NR):
            pv(i)
            e(f"    s_waitcnt vmcnt({wcount(i, Ws[c])})" + (" lgkmcnt(0)" if i % 16 == 1 else ""))
            load(i)
            control(i, f"v{c}")
            vwork(i, False)
        endit("v")

    def put_stubs():
        for tag, k in stubs:
            e(f"L_pub_{tag}_{k}:")
            if k == "gr":
                e(f"    s_lshl_b64 exec, 1, s{sJ}")
                e(f"    global_load_dword v{vG}, v{vGad}, s[{sGb}:{sGb+1}] sc1")
                e("    s_mov_b64 exec, -1")
                e(f"    s_branch L_pubx_{tag}_{k}")
                continue
            if k == "gw":
                e(f"    v_not_b32 v{vGn}, v{vGs}")
                e(f"    s_lshl_b64 exec, {2 if gdw else 1}, s{sJ}")
                e(f"    global_store_dword v{vGad}, v{vGn}, s[{sGb}:{sGb+1}] sc1")
                e("    s_mov_b64 exec, -1")
                e(f"    s_add_u32 s{sGw}, s{sGw}, 32")
                e(f"    s_branch L_pubx_{tag}_{k}")
                continue
            if k == "ge":
                e(f"    v_cmp_ne_u32 vcc, v{vG}, v{vGs}")
                e(f"    s_add_u32 s{sGr}, s{sGr}, 32")
                e(f"    s_bitcmp1_b64 vcc, s{sJ}")
                e(f"    s_cbranch_scc{1 if gneg else 0} L_pubx_{tag}_{k}")
                e(f"    s_mov_b64 vcc, {((1 << glen) - 1) << gd}")
                e(f"    s_lshl_b64 exec, vcc, s{sJ}")
                e(f"    s_cbranch_scc0 L_pube_{tag}")
                e(f"    global_store_byte_d16_hi v{vMad}, v{vMn}, s[{sMb}:{sMb+1}] offset:2")
                e(f"L_pube_{tag}:")
                e("    s_mov_b64 exec, -1")
                e(f"    s_branch L_pubx_{tag}_{k}")
                continue
            e(f"    s_mov_b64 exec, s[{sEx}:{sEx+1}]")
            op = ("global_store_byte", "global_store_short", "global_store_dword")[k]
            e(f"    {op} v{vMad}, v{vMn}, s[{sMb}:{sMb+1}]")
            e("    s_mov_b64 exec, -1")
            e(f"    s_add_u32 s{sCell[k]}, s{sCell[k]}, 32")
            if k == len(offs) - 1:
                e(f"    s_lshl_b64 s[{sEx}:{sEx+1}], s[{sEx}:{sEx+1}], 32")
            e(f"    s_branch L_pubx_{tag}_{k}")
        stubs.clear()

    korder = [k0] + [c for c in range(NC) if c != k0]
    for c in korder:
        kbody(c)
        put_stubs()
    e("L_kev:")
    e(f"    s_cmp_eq_u32 s{sJ}, {iters}")
    e("    s_cbranch_scc1 L_kdone")
    if defer:
        e("    ; one-time set-up for the V phase, in three small pieces between K iterations")
        for k, (fn, nxt) in enumerate(((late_a, 4), (late_b, 6), (late_c, iters - 1))):
            e(f"    s_cmp_lg_u32 s{sJ}, {2+2*k}")
            e(f"    s_cbranch_scc1 L_late{k}")
            fn()
            e(f"    s_mov_b32 s{sEv}, {nxt}")
            e("    s_branch L_kn")
            e(f"L_late{k}:")
    e(f"    s_mov_b32 s{sR}, s{sVp}")
    e(f"    s_mov_b32 s{sR+1}, s{sVp+1}")
    reset_off()
    e(f"    v_mov_b32 v{vOff}, v{vVoff}")
    e(f"    s_mov_b32 s{sEv}, {iters}")
    if otl == 1:
        e(f"    global_load_dword v{vX+1}, v{vOo}, s[{sOutp}:{sOutp+1}]      ; warms the translation of the output page; value unused")
    e(f"    v_and_b32 v{vPk}, 3, v0")
    e(f"    v_and_b32 v{vP}, 60, v0")
    e(f"    v_lshl_add_u32 v{vPk}, v{vPk}, 6, v{vP}")
    e(f"    v_add_u32 v{vPk}, 64, v{vPk}")
    if kvb > 0:
        e(f"    s_max_u32 s{sIx}, s{sIx}, {kvb}")
    e("L_kn:")
    dispatch("k", list(range(NC)))
    e("L_kdone:")
    mile()
    Sl = vS + 4 * ((gpi - 1) & 1)
    e("    ; V phase reads the scores one key per lane: group 4*batch + (l&3), slot l>>2")
    e(f"    ds_read_b32 v{vSc}, v{vPk}")
    e(f"    ds_read_b32 v{vSc+1}, v{vPk} offset:256")
    fin_a(Sl)
    e(f"    s_mov_b32 s{sEv}, {2*iters-1-(1 if ramp else 0)}")
    fin_b(Sl, 0)
    e(f"    v_mov_b32 v{vLd}, v{vPk}")
    e(f"    v_max_f32_dpp v{vM}, v{vM}, v{vM} row_ror:4 {DPP}")
    e("    s_nop 1")
    e(f"    v_max_f32_dpp v{vM}, v{vM}, v{vM} row_ror:8 {DPP}")
    for x in xrow(vM, vT, "v_max_f32"):
        e(x)
    e(f"    v_mul_f32 v{vMt}, s{sC}, v{vM}")
    e(f"    v_max_f32 v{vMt}, v{vMt}, v{vTt}")
    e(f"    v_and_b32 v{vMt}, -2, v{vMt}")
    e("    s_waitcnt lgkmcnt(0)")
    e(f"    v_sub_f32 v{vTt}, v{vTt}, v{vMt}")
    e(f"    v_exp_f32 v{vTt}, v{vTt}")
    p_a()
    e(f"    v_mul_f32 v{vL}, 0x3c800000, v{vTt}")
    p_b(0)
    e(f"    v_mov_b32 v{vSc}, v{vSc+1}")
    p_c(0)
    for i in range(4):
        e(f"    v_mul_f32 v{vA0+i}, v{vA0+i}, v{vTt}")
    b1(0)
    dispatch("v", list(range(NC)))
    for c in range(NC):
        vbody(c)
        put_stubs()

    vMa = vQ
    vMb = vR + 32
    vOwn = vQ + 12

    def check(d):
        for k, a in enumerate((vM1, vM2, vM3)):
            e(f"    global_load_dwordx4 {r(d+4*k,4)}, v{a}, s[{sWs}:{sWs+1}] sc1")

    def valid(d, target):
        e(f"    v_bitop3_b32 v{vT}, 1, v{d+1}, v{vSn+1} bitop3:0x60")
        for k in range(1, 6):
            e(f"    v_bitop3_b32 v{vT}, v{vT}, v{d+1+2*k}, v{vSn+1+2*k} bitop3:0x60")
        e(f"    v_cmp_eq_u32 vcc, 0, v{vT}")
        e(f"    s_cbranch_vccz {target}")

    def finish(d):
        P = [vOwn, d, d + 4, d + 8]
        Wt = vA0
        T = vR
        if diag & 2:
            e(f"    v_add_f32 v{T}, v{P[0]}, v{P[1]}")
            e(f"    v_add_f32 v{T+1}, v{P[2]}, v{P[3]}")
            e(f"    v_add_f32 v{T+2}, v{P[0]+2}, v{P[1]+2}")
            e(f"    v_add_f32 v{T+3}, v{P[2]+2}, v{P[3]+2}")
            e(f"    v_add_f32 v{T}, v{T}, v{T+1}")
            e(f"    v_add_f32 v{T+2}, v{T+2}, v{T+3}")
            e(f"    v_cvt_pk_bf16_f32 v{T}, v{T}, v{T+2}")
            e(f"    global_store_dword v{vOo}, v{T}, s[{sOutp}:{sOutp+1}]")
            e("    s_endpgm")
            return
        if stamp == 5:
            e("    s_memrealtime s[70:71]")
        for k in range(3):
            e(f"    v_and_b32 v{d+1+4*k}, -2, v{d+1+4*k}")
        e(f"    v_max3_f32 v{vM}, v{vMt}, v{d+1}, v{d+5}")
        e(f"    v_max_f32 v{vM}, v{vM}, v{d+9}")
        for k in range(4):
            e(f"    v_sub_f32 v{Wt+k}, v{vMt if k == 0 else P[k]+1}, v{vM}")
        for k in range(4):
            e(f"    v_exp_f32 v{Wt+k}, v{Wt+k}")
        for k in range(4):
            e(f"    v_and_b32 v{P[k]+3}, -2, v{P[k]+3}")
        for k in range(4):
            sel = "op_sel_hi:[1,0]" if k % 2 == 0 else "op_sel:[0,1] op_sel_hi:[1,1]"
            e(f"    v_pk_mul_f32 {r(T+2*k,2)}, {r(P[k]+2,2)}, {r(Wt+(k&2),2)} {sel}")
        e(f"    v_pk_add_f32 {r(T,2)}, {r(T,2)}, {r(T+2,2)}")
        e(f"    v_pk_add_f32 {r(T+4,2)}, {r(T+4,2)}, {r(T+6,2)}")
        e(f"    v_pk_add_f32 {r(T,2)}, {r(T,2)}, {r(T+4,2)}")
        e(f"    v_rcp_f32 v{vL}, v{T+1}")
        for k in range(4):
            e(f"    v_mul_f32 v{T+8+k}, v{Wt+k}, v{P[k]}")
        e(f"    v_add_f32 v{T+8}, v{T+8}, v{T+9}")
        e(f"    v_add_f32 v{T+10}, v{T+10}, v{T+11}")
        e(f"    v_mul_f32 v{T}, v{T}, v{vL}")
        e(f"    v_add_f32 v{T+8}, v{T+8}, v{T+10}")
        e(f"    v_mul_f32 v{T+8}, v{T+8}, v{vL}")
        e(f"    v_cvt_pk_bf16_f32 v{T}, v{T+8}, v{T}")
        e(f"    global_store_dword v{vOo}, v{T}, s[{sOutp}:{sOutp+1}]")
        if stamp == 5:
            e("    s_memrealtime s[72:73]")
        if stamp:
            e("    s_waitcnt vmcnt(0)")
            e("    s_branch L_st")
        elif ms >= 0:
            e("    s_branch L_pd")
        else:
            e("    s_endpgm")

    e("L_vev:")
    mile()
    if ramp:
        w0, w1, st0 = [int(x) for x in ramp.split(".")]
        tr()
        for i in range(NR):
            pv(i)
            wn = w0 if i < st0 else min(w1, int(round(w0 + (w1 - w0) * (i - st0 + 1) / (NR - st0))))
            e(f"    s_waitcnt vmcnt({wn-1})" + (" lgkmcnt(0)" if i % 16 == 1 else ""))
            load(i)
            vwork(i, False)
        e(f"    v_add_u32 v{vLd}, {64*gpi}, v{vLd}")
    if otl == 2:
        e(f"    global_load_dword v{vX+1}, v{vOo}, s[{sOutp}:{sOutp+1}]      ; warms the translation of the output page; value unused")
    e(f"    v_not_b32 v{vSn+13}, v{vSn+13}")
    e(f"    v_not_b32 v{vSn+15}, v{vSn+15}")
    e(f"    v_and_or_b32 v{vOwn+1}, v{vSn+13}, 1, v{vMt}")
    tr()
    if ck1 == 0:
        check(vMa)
    red = [[f"    v_add_f32_dpp v{vL}, v{vL}, v{vL} row_ror:{sh} {DPP}"] for sh in (1, 2, 4, 8)]
    for sw in ("v_permlane16_swap_b32", "v_permlane32_swap_b32"):
        red += [[f"    v_mov_b32 v{vT}, v{vL}"], [f"    {sw} v{vL}, v{vT}"], [f"    v_add_f32 v{vL}, v{vL}, v{vT}"]]
    red += [[f"    v_and_b32 v{vL}, -2, v{vL}", f"    v_and_or_b32 v{vOwn+3}, v{vSn+15}, 1, v{vL}"]]
    Wmax = max(Ws) if not ramp else NR
    for i in range(NR):
        n = NR - 1 - i + (3 if i >= ck1 else 0) + (1 if otl == 2 else 0)
        if i == 1 or NR - 1 - i < Wmax or i >= 6:
            e(f"    s_waitcnt vmcnt({n})" + (" lgkmcnt(0)" if i == 1 else ""))
        pv(i, True)
        if i == ck1 - 1:
            check(vMa)
        if i >= 6 and red:
            for x in red.pop(0):
                e(x)
        vwork(i, True)
    assert not red
    mile()
    if stamp:
        e(f"    s_memrealtime s[{sSt+2}:{sSt+3}]")
    if dpoll:
        check(vMb)
        e(f"    s_mov_b32 s{sJ}, {NP}")
        e("    s_nop 1")
    else:
        e(f"    s_mov_b32 s{sJ}, {NP}")
        e("    s_nop 4")
    e(f"    v_permlane32_swap_b32 v{vA0}, v{vA0+2}")
    e(f"    v_permlane32_swap_b32 v{vA0+1}, v{vA0+3}")
    e(f"    v_permlane32_swap_b32 v{vA1}, v{vA1+2}")
    e(f"    v_permlane32_swap_b32 v{vA1+1}, v{vA1+3}")
    e("    s_nop 0")
    e(f"    v_add_f32 v{vOwn}, v{vA0}, v{vA1+2}")
    e(f"    v_add_f32 v{vOwn+2}, v{vA0+1}, v{vA1+3}")
    e("    ; fast path: plain store, seen at once by workgroups that share this L2; bounded number of looks")
    e(f"    global_store_dwordx4 v{vSl}, {r(vOwn,4)}, s[{sWs}:{sWs+1}]")
    if diag & 8:
        e("    s_endpgm")
    if stamp == 5:
        e("    s_memrealtime s[68:69]")
    if dpoll:
        e("    s_waitcnt vmcnt(4)")
        valid(vMa, "L_fin")
        check(vMa)
        e("    s_waitcnt vmcnt(4)")
        e("L_poll:")
        valid(vMb, "L_finb")
        if diag & 4:
            e("    s_waitcnt vmcnt(0)")
            valid(vMa, "L_fin")
            check(vMa)
            e("    s_waitcnt vmcnt(0)")
            valid(vMa, "L_fin")
            e("    s_endpgm")
        check(vMb)
        e("    s_waitcnt vmcnt(3)")
        valid(vMa, "L_fin")
        check(vMa)
        e(f"    s_sub_u32 s{sJ}, s{sJ}, 1")
        e("    s_waitcnt vmcnt(3)")
        e("    s_cbranch_scc0 L_poll")
    else:
        e("    s_waitcnt vmcnt(1)")
        e("L_poll:")
        valid(vMa, "L_fin")
        check(vMa)
        e(f"    s_sub_u32 s{sJ}, s{sJ}, 1")
        e("    s_waitcnt vmcnt(0)")
        e("    s_cbranch_scc0 L_poll")
    e(f"    s_add_u32 s{sWs}, s{sWs}, 0x80000")
    e(f"    s_addc_u32 s{sWs+1}, s{sWs+1}, 0")
    e(f"    global_store_dwordx4 v{vSl}, {r(vOwn,4)}, s[{sWs}:{sWs+1}] sc1")
    e(f"    s_lshl_b32 s{sTmp}, s{sHead}, 2")
    e(f"    v_mov_b32 v{vX}, s{sTmp}")
    e(f"    v_mov_b32 v{vX+1}, 1")
    e("    s_mov_b64 exec, 1")
    e("    s_waitcnt vmcnt(0)")
    e(f"    global_atomic_add v{vT}, v{vX}, v{vX+1}, s[{sDbg}:{sDbg+1}] sc0")
    e("    s_waitcnt vmcnt(0)")
    e(f"    v_readfirstlane_b32 s{sTmp}, v{vT}")
    e("    s_mov_b64 exec, -1")
    e(f"    s_cmp_lg_u32 s{sTmp}, 3")
    e(f"    s_cbranch_scc1 {'L_st' if stamp else 'L_end'}")
    check(vMa)
    e("    s_waitcnt vmcnt(0)")
    e("L_fin:")
    finish(vMa)
    if dpoll:
        e("L_finb:")
        finish(vMb)
    if stamp:
        e("L_st:")
        e(f"    s_memrealtime s[{sSt+4}:{sSt+5}]")
        e(f"    s_load_dwordx2 s[{sWs}:{sWs+1}], s[0:1], 64")
        e(f"    s_mov_b32 s{sSt+7}, s63")
        e(f"    s_getreg_b32 s{sSt+6}, hwreg(HW_REG_XCC_ID, 0, 4)")
        e(f"    s_getreg_b32 s{sTmp+1}, hwreg(HW_REG_HW_ID, 0, 24)")
        e(f"    s_lshl_b32 s{sTmp+1}, s{sTmp+1}, 8")
        e(f"    s_or_b32 s{sSt+6}, s{sSt+6}, s{sTmp+1}")
        e("    s_waitcnt vmcnt(0) lgkmcnt(0)")
        e(f"    s_lshl_b32 s{sTmp+2}, s2, 5")
        e(f"    s_add_u32 s{sTmp+2}, s{sTmp+2}, 0x1000000")
        e(f"    v_mov_b32 v{vP}, s{sTmp+2}")
        for i in range(8):
            e(f"    v_mov_b32 v{vQ+i}, s{sSt+i}")
        e("    s_mov_b64 exec, 1")
        e(f"    global_store_dwordx4 v{vP}, {r(vQ,4)}, s[{sWs}:{sWs+1}]")
        e(f"    global_store_dwordx4 v{vP}, {r(vQ+4,4)}, s[{sWs}:{sWs+1}] offset:16")
        e("    s_mov_b64 exec, -1")
        if stamp == 5:
            for k in range(3):
                e(f"    v_writelane_b32 v{vTr}, s{68+2*k}, {k}")
        if stamp in (2, 3, 5):
            e(f"    s_lshl_b32 s{sTmp+2}, s2, 8")
            e(f"    s_add_u32 s{sTmp+2}, s{sTmp+2}, 0x2000000")
            e(f"    v_lshlrev_b32 v{vP}, 2, v0")
            e(f"    v_add_u32 v{vP}, s{sTmp+2}, v{vP}")
            e(f"    global_store_dword v{vP}, v{vTr}, s[{sWs}:{sWs+1}]")
    if ms >= 0:
        e("L_pd:")
        e(f"    s_cmp_lg_u32 s2, {mwg}")
        e("    s_cbranch_scc1 L_end")
        e("    s_waitcnt lgkmcnt(0)")
        e(f"    s_sub_u32 s56, s56, s{sSt}")
        e(f"    s_sub_u32 s56, s56, {msb}")
        e("    s_max_i32 s56, s56, 0")
        e("    s_min_i32 s56, s56, 2000")
        e("    s_mul_i32 s56, s56, 10")
        e("    s_add_u32 s56, s56, 8000")
        e("L_pad:")
        e(f"    s_memrealtime s[{sSt+2}:{sSt+3}]")
        e("    s_waitcnt lgkmcnt(0)")
        e(f"    s_sub_u32 s{sSt+2}, s{sSt+2}, s{sSt}")
        e(f"    s_cmp_lt_u32 s{sSt+2}, s56")
        e("    s_cbranch_scc1 L_pad")
    e("L_end:")
    e("    s_endpgm")
    if pfs:
        e("L_tail:")
        e(f"    .fill ({2048 * pfb + pfo} - (L_tail - L_pc)) / 4, 4, 0xbf810000   ; keeps the code prefetch inside .text")
    e('.section .rodata,"a"')
    e(".p2align 6")
    e(f".amdhsa_kernel {NAME}_kernel")
    e(f"  .amdhsa_next_free_vgpr {nv}")
    e(f"  .amdhsa_next_free_sgpr {nsg}")
    e(f"  .amdhsa_accum_offset {(nv+3)//4*4}")
    e("  .amdhsa_group_segment_fixed_size 0")
    e("  .amdhsa_kernarg_size 72")
    e("  .amdhsa_user_sgpr_count 2")
    e("  .amdhsa_user_sgpr_kernarg_segment_ptr 1")
    e("  .amdhsa_system_sgpr_workgroup_id_x 1")
    e("  .amdhsa_float_denorm_mode_32 3")
    e(".end_amdhsa_kernel")
    if stamp == 2:
        e(f"; meta waves={NWG} iters={2*iters} every=1 bytes={1 << 29}")
    return "\n".join(o) + "\n"


if __name__ == "__main__":
    for spec in sys.argv[1:]:
        name, _, kv = spec.partition(":")
        kw = {}
        for p in kv.split(","):
            if p:
                k, v = p.split("=")
                kw[k] = v.replace("+", " ") if k in ("fl", "map", "W", "duty", "xr", "offs", "inc", "mfl", "ramp") else int(v, 0)
        path = f"cdna_kernels/{NAME}.s" if name == "main" else f"var/{name}.s"
        open(path, "w").write(gen(**kw))
```

```python
import math, struct, sys
from gen1 import NAME, HEADER, f2u


def gen(W="20.21.22.24", duty="90909090", offs="0.20", inc="0.1.9", mp=5, mstr=4, mfl="glc",
        fl="nt", stamp=0, nk0=4, NI=28, pfs=1, ck1=28, kvb=2, NP=12, dpoll=1, vm=1, ramp="", gx=0, gth=8, ginc=1, glen=0, gd=2, g0=0, free=0, diag=0, pre=1, pfo=128, otl=0, gneg=0, k0=1, ms=-1, msb=0, mwg=0, stl=0, pfe=1, xc=1, defer=1, vt=0, refm=13,
        map="w3n6n4r0n1n2n3n0w4n5n7n8n9r1w1w2w5w6w7w0", xr="14w6", cmt=0):
    Ws = [int(x) for x in W.split(".")]
    NC = len(Ws)
    offs = [int(x) for x in offs.split(".")]
    inc = [int(x) for x in inc.split(".")]
    assert len(inc) == len(offs) + 1 and len(offs) <= 3 and offs == sorted(offs)
    NR, NWG, iters, gpi, ngrp = 32, 256, 32, 8, 256
    lds = (ngrp + 3) * 64
    toks = [map[i:i+2] for i in range(0, len(map), 2)]
    if len(toks) in (10, 16):
        toks = toks[:9] + ["n6", "n7", "n8", "n9"] + toks[9:]
    if len(toks) == 14:
        toks += [f"w{i}" for i in range(8) if f"w{i}" not in toks]
    pos = {t: 8 + i for i, t in enumerate(toks)}
    assert sorted(pos) == sorted(["r0", "r1"] + [f"w{i}" for i in range(8)] + [f"n{i}" for i in range(10)])
    assert free or all(t[0] == "w" for t in toks[14:])
    spl = [t for t in toks[:14] if t[0] == "w"]
    hdt = toks[14:]
    adr = spl
    if free:
        adr = [t for t in toks if t[0] == "w"]
        spl = ["w3", "w4"]
        hdt = ["w0", "w1", "w2", "w5", "w6", "w7"]
    hi = [pos[f"n{i}"] for i in range(5, 10)]
    himask = sum(1 << b for b in hi)
    xrs = [(int(t.split("w")[0]), int(t.split("w")[1])) for t in xr.split(".") if t]
    xrmask = sum(1 << p for p, _ in xrs)
    assert all(toks[p - 8][0] == "n" for p, _ in xrs)
    scatter = hi != sorted(hi)
    contiguous = hi == list(range(hi[0], hi[0] + 5)) and not xrs
    immm = 0xfff & ~xrmask

    def lowoff(n):
        return sum(((n >> i) & 1) << pos[f"n{i}"] for i in range(5))
    o = []
    e = o.append

    vOff, vVoff, vM1 = 1, 2, 3
    vTt, vT, vT2, vP, vPk, vL, vM, vMt = 4, 5, 6, 7, 8, 9, 10, 11
    vMask = 12
    vS = 16
    vB1, vB2 = 16, 20
    vA0, vA1 = 24, 28
    vQ = 32
    vSc = 48
    vM2, vM3 = 50, 51
    vSl, vOo = 52, 53
    vX = 54
    vSn = 56
    vLd, vMad, vMs, vMn = 72, 73, 74, 75
    vGad, vGs, vGn, vG = 76, 77, 78, 79
    vK = [[80, 81, 82], [83, 84, 85]]
    vVt = 86
    vR = 88
    nv = vR + 4 * NR
    vTr = nv
    if stamp in (2, 3, 5):
        nv += 1
    sR = 8
    sT2, sNx, sXr, sSp = 12, 13, 14, 15
    sOff, sHi, sC, sHead, sSplit, sJ, sIx, sMk = 16, 17, 18, 19, 20, 21, 22, 23
    sQp, sKp, sVp, sKtp, sVtp, sMp, sOutp, sDbg, sWs = 24, 26, 28, 30, 32, 34, 36, 38, 40
    sTmp = 42
    sMaskv, sAcc, sDuty, sMo = 48, 49, 50, 51
    sSt = 52
    sEx = 4
    sCell = [3, 6, 7]
    sMb = 64
    sEv = 66
    sGb, sGr, sGw = 94, 96, 97
    nsg = 100 if (stamp in (3, 5) or gx) else 76
    glen = glen or gx
    pst = [0]

    msn = [0]

    def mile():
        if msn[0] == ms:
            e("    s_memrealtime s[56:57]")
        msn[0] += 1

    def pstamp():
        mile()
        if stamp == 3:
            e(f"    s_memrealtime s[{68+2*pst[0]}:{69+2*pst[0]}]")
            pst[0] += 1

    def r(b, n):
        return f"v[{b}:{b+n-1}]"
    DPP = "row_mask:0xf bank_mask:0xf"

    def gather(dst, items, tmp):
        runs = []
        for wb, db in sorted(items):
            if runs and runs[-1][0] + runs[-1][2] == wb and runs[-1][1] + runs[-1][2] == db:
                runs[-1][2] += 1
            else:
                runs.append([wb, db, 1])
        for k, (wb, db, n) in enumerate(runs):
            t = dst if k == 0 else tmp
            e(f"    s_bfe_u32 s{t}, s2, {hex((n << 16) | wb)}")
            if db:
                e(f"    s_lshl_b32 s{t}, s{t}, {db}")
            if k:
                e(f"    s_xor_b32 s{dst}, s{dst}, s{t}")

    e(HEADER.rstrip())
    e(f"; @launch grid=({NWG},1,1) block=(64,1,1) lds={lds}")
    if cmt:
        e(open("notes.txt").read().rstrip())
    e('.amdgcn_target "amdgcn-amd-amdhsa--gfx950"')
    e(".text")
    e(f".globl {NAME}_kernel")
    e(".p2align 8")
    e(f".type {NAME}_kernel,@function")
    e(f"{NAME}_kernel:")
    if stamp or ms >= 0:
        e(f"    s_memrealtime s[{sSt}:{sSt+1}]")
    e(f"    s_load_dwordx16 s[{sQp}:{sQp+15}], s[0:1], 0")
    e(f"    s_load_dwordx2 s[{sWs}:{sWs+1}], s[0:1], 64")
    e(f"    s_cmp_ge_u32 s2, {NWG}")
    e("    s_cbranch_scc1 L_end")
    pfb = pfs if pfs >= 8 else 4 << pfs

    def prefetch():
        if not pfs:
            return 0
        e(f"    s_getpc_b64 s[{sTmp+4}:{sTmp+5}]")
        e("L_pc:")
        e(f"    s_mul_i32 s{sT2}, s{sAcc}, {64*pfb}")
        e(f"    v_mad_u32_u24 v{vMn}, v0, {pfb}, s{sT2}")
        e(f"    global_load_dword v{vSc}, v{vMn}, s[{sTmp+4}:{sTmp+5}] offset:{pfo}")
        return 1
    e(f"    s_lshr_b32 s{sAcc}, s2, 3")
    if pfe:
        prefetch()
    e("    ; head index, byte offset of this split inside a head, order mask")
    gather(sHead, [(int(t[1]), i) for i, t in enumerate(hdt)], sTmp)
    gather(sSp, [(int(t[1]), pos[t]) for t in adr], sTmp)
    if xrs:
        gather(sXr, [(w, p) for p, w in xrs], sTmp)
    e(f"    v_lshrrev_b32 v{vT}, 4, v0")
    e(f"    v_lshlrev_b32 v{vT}, 6, v{vT}")
    e(f"    v_and_b32 v{vT2}, 3, v0")
    e(f"    v_lshl_add_u32 v{vT}, v{vT2}, 4, v{vT}")
    if pos["r1"] == pos["r0"] + 1:
        e(f"    v_bfe_u32 v{vT2}, v0, 2, 2")
        e(f"    v_lshl_add_u32 v{vOff}, v{vT2}, {pos['r0']}, v{vT}")
    else:
        e(f"    v_bfe_u32 v{vT2}, v0, 2, 1")
        e(f"    v_lshl_add_u32 v{vOff}, v{vT2}, {pos['r0']}, v{vT}")
        e(f"    v_bfe_u32 v{vT2}, v0, 3, 1")
        e(f"    v_lshl_add_u32 v{vOff}, v{vT2}, {pos['r1']}, v{vOff}")
    e(f"    v_add_u32 v{vOff}, s{sSp}, v{vOff}")
    e(f"    s_lshl_b32 s{sTmp}, s{sHead}, 22" if not free else f"    s_mov_b32 s{sTmp}, 0")

    dl = sorted({(lowoff(i) & ~immm) ^ (lowoff(i + 1) & ~immm) for i in range(NR - 1)} - {0})
    xreg = {}
    if xc:
        for k, d in enumerate(dl):
            xreg[d] = 68 + k if stamp not in (3, 5) else 88 + k
            e(f"    s_mov_b32 s{xreg[d]}, {hex(d)}")

    def reset_off():
        e(f"    s_mov_b32 s{sOff}, {'s%d' % sXr if xrs else 0}")
        if not contiguous:
            e(f"    s_mov_b32 s{sHi}, 0")
    reset_off()
    e(f"    s_mov_b32 s{sR+2}, {hex(1 << 28) if free else '0x400000'}")
    e(f"    s_mov_b32 s{sR+3}, 0x20000")
    gather(sSplit, [(int(t[1]), i) for i, t in enumerate(spl)], sTmp + 1)
    e(f"    s_lshl_b32 s{sTmp+1}, s{sSplit}, 10")
    e(f"    s_lshl_b32 s{sTmp+2}, s{sHead}, 8")
    e(f"    s_lshl_b32 s{sTmp+3}, s{sHead}, 12")
    e(f"    v_lshlrev_b32 v{vMad}, 2, v0")
    e(f"    v_lshlrev_b32 v{vSl}, 4, v0")
    e(f"    v_and_b32 v{vVoff}, 0xf0, v{vSl}")
    e(f"    v_bfe_u32 v{vP}, v0, 4, 1")
    e(f"    v_lshl_add_u32 v{vOo}, v{vP}, 3, v{vVoff}       ; v_tree offset: (l&15)*16 + ((l>>4)&1)*8")
    e(f"    v_add_u32 v{vSl}, s{sTmp+1}, v{vSl}")
    e("    s_waitcnt lgkmcnt(0)")
    pstamp()
    def touch():
        for k, p in enumerate((sQp, sWs, sKtp, sVtp)):
            e(f"    s_load_dword s{58+k}, s[{p}:{p+1}], 0        ; starts the translation of this buffer's page")
        if stl & 8:
            e(f"    s_load_dword s62, s[{sVp}:{sVp+1}], s{sTmp}")
            e(f"    s_add_u32 s{sT2}, s{sTmp}, 0x200000")
            e(f"    s_load_dword s62, s[{sVp}:{sVp+1}], s{sT2}")
    if (stl & 5) == 1:
        touch()
    e(f"    s_add_u32 s{sR}, s{sKp}, s{sTmp}")
    e(f"    s_addc_u32 s{sR+1}, s{sKp+1}, 0")
    if stl & 2:
        e(f"    s_mov_b32 s{sT2}, 0x200000")
        e(f"    s_load_dword s62, s[{sR}:{sR+1}], s{sT2}")

    hruns = []
    for k, b in enumerate(hi):
        if hruns and hruns[-1][1] + hruns[-1][2] == b:
            hruns[-1][2] += 1
        else:
            hruns.append([k, b, 1])

    def load(i, first=False):
        lo = lowoff(i)
        e(f"    buffer_load_dwordx4 {r(vR+4*i,4)}, v{vOff}, s[{sR}:{sR+3}], s{sOff} offen offset:{lo & immm} {fl}")
        cur = lo & ~immm
        if i < NR - 1:
            d = cur ^ (lowoff(i + 1) & ~immm)
            if d:
                e(f"    s_xor_b32 s{sOff}, s{sOff}, {'s%d' % xreg[d] if d in xreg else hex(d)}")
            elif i % 4 == 3:
                e("    s_nop 0")
            if scatter and first:
                if i == 8:
                    e(f"    s_mov_b32 s{sHi}, 1")
                    e(f"    s_xor_b32 s{sNx}, {'s%d' % sXr if xrs else 0}, {hex(1 << hi[0])}")
            elif scatter and 8 <= i < 8 + len(hruns):
                cb, db, n = hruns[i - 8]
                if i == 8:
                    e(f"    s_add_u32 s{sHi}, s{sHi}, 1")
                e(f"    s_bfe_u32 s{sT2}, s{sHi}, {hex((n << 16) | cb)}")
                e(f"    s_lshl_b32 s{sT2}, s{sT2}, {db}")
                e(f"    s_xor_b32 s{sNx}, {('s%d' % sXr if xrs else 0) if i == 8 else 's%d' % sNx}, s{sT2}")
            if not scatter and not contiguous and i == 11:
                e(f"    s_or_b32 s{sHi}, s{sHi}, {hex(~himask & 0xffffffff)}")
                e(f"    s_add_u32 s{sHi}, s{sHi}, 1")
                e(f"    s_and_b32 s{sHi}, s{sHi}, {hex(himask)}")
        elif contiguous:
            e(f"    s_add_u32 s{sOff}, s{sOff}, {hex(((1 << hi[0]) - cur) & 0xffffffff)}")
        elif scatter:
            e(f"    s_mov_b32 s{sOff}, s{sNx}")
        elif xrs:
            e(f"    s_xor_b32 s{sOff}, s{sHi}, s{sXr}")
        else:
            e(f"    s_mov_b32 s{sOff}, s{sHi}")

    for i in range(nk0):
        load(i, True)
        if i == 0 and (stl & 5) == 5:
            touch()
    if ms == 10:
        e("    s_memrealtime s[56:57]")
    for p in (sQp, sKtp, sVtp):
        e(f"    s_add_u32 s{p}, s{p}, s{sTmp+2}")
        e(f"    s_addc_u32 s{p+1}, s{p+1}, 0")
    e(f"    s_load_dword s{sMaskv}, s[{sMp}:{sMp+1}], 0")
    e(f"    global_load_dwordx4 {r(vS,4)}, v{vT}, s[{sQp}:{sQp+1}]")
    e(f"    global_load_dword v{vA0}, v{vMad}, s[{sQp}:{sQp+1}]")
    e(f"    global_load_dword v{vA0+1}, v{vMad}, s[{sKtp}:{sKtp+1}]")
    e(f"    global_load_dwordx2 {r(vVt,2)}, v{vOo}, s[{sVtp}:{sVtp+1}]")
    e(f"    s_getreg_b32 s{sIx}, hwreg(HW_REG_XCC_ID, 0, 3)")
    e(f"    s_mul_i32 s{sT2}, s{sIx}, {max(4096, 64*mstr)+256}")
    e(f"    s_add_u32 s{sT2}, s{sT2}, 0x40000")
    e(f"    s_add_u32 s{sMb}, s{sWs}, s{sT2}")
    e(f"    s_addc_u32 s{sMb+1}, s{sWs+1}, 0")
    if gx:
        e(f"    s_add_u32 s{sGb}, s{sWs}, 0x100000")
        e(f"    s_addc_u32 s{sGb+1}, s{sWs+1}, 0")
    assert mstr == 4
    e(f"    s_add_u32 s{sWs}, s{sWs}, s{sTmp+3}")
    e(f"    s_addc_u32 s{sWs+1}, s{sWs+1}, 0")
    e(f"    global_load_dword v{vMs}, v{vMad}, s[{sMb}:{sMb+1}] sc1")
    e(f"    v_xor_b32 v{vM1}, 0x400, v{vSl}")
    e(f"    v_xor_b32 v{vM2}, 0x800, v{vSl}")
    e(f"    v_xor_b32 v{vM3}, 0xc00, v{vSl}")
    for k, a in enumerate((vM1, vM2, vM3, vSl)):
        e(f"    global_load_dwordx4 {r(vSn+4*k,4)}, v{a}, s[{sWs}:{sWs+1}] sc1")
    nsmall = 9
    if gx:
        e(f"    s_mul_i32 s{sGr}, s{sAcc}, {refm}")
        e(f"    s_add_u32 s{sGr}, s{sGr}, 5")
        e(f"    s_and_b32 s{sGr}, s{sGr}, 31")
        e(f"    s_lshl_b32 s{sT2}, 1, s{sGr}")
        e(f"    v_mul_u32_u24 v{vGad}, 4352, v0")
        e(f"    s_mov_b32 exec_lo, s{sT2}")
        e(f"    s_mov_b32 exec_hi, s{sT2}")
        e(f"    global_load_dword v{vGs}, v{vGad}, s[{sGb}:{sGb+1}] sc1")
        e("    s_mov_b64 exec, -1")
        nsmall += 1
    if not pfe:
        nsmall += prefetch()
    if ms == 11:
        e("    s_memrealtime s[56:57]")
    for i in range(nk0, NI):
        load(i, True)
    pstamp()
    cs = (128 ** -0.5) * math.log2(math.e)

    def late_a():
        e(f"    s_lshl_b32 s{sTmp}, s{sHead}, 22" if not free else f"    s_mov_b32 s{sTmp}, 0")
        e(f"    s_lshl_b32 s{sTmp+2}, s{sHead}, 8")
        e(f"    s_add_u32 s{sVp}, s{sVp}, s{sTmp}")
        e(f"    s_addc_u32 s{sVp+1}, s{sVp+1}, 0")
        e(f"    s_add_u32 s{sOutp}, s{sOutp}, s{sTmp+2}")
        e(f"    s_addc_u32 s{sOutp+1}, s{sOutp+1}, 0")
        e(f"    v_lshrrev_b32 v{vPk}, 5, v0")
        e(f"    v_lshl_add_u32 v{vOo}, v{vPk}, 2, v{vOo}        ; output offset")
        e(f"    v_lshl_add_u32 v{vVoff}, v{vPk}, {pos['r1']}, v{vVoff}")
        e(f"    v_bfe_u32 v{vPk}, v0, 4, 1")
        e(f"    v_lshl_add_u32 v{vVoff}, v{vPk}, {pos['r0']}, v{vVoff}")
        e(f"    v_add_u32 v{vVoff}, s{sSp}, v{vVoff}")
        e(f"    s_mov_b32 s{sC}, {hex(f2u(cs))}")
        e(f"    s_lshr_b32 s{sTmp}, s{sHead}, 5")
        e(f"    s_lshl_b32 s{sTmp}, s{sTmp}, 4")
        e("    s_waitcnt lgkmcnt(0)")
        e(f"    s_lshr_b32 s{sMaskv}, s{sMaskv}, s{sTmp}")
        e(f"    s_lshl_b32 s{sMaskv}, s{sMaskv}, 16")
        e(f"    v_sub_f32 v{vL}, s{sMaskv}, 1.0               ; mask - 1")
        e(f"    v_mul_f32 v{vL}, {hex(f2u(1e9*math.log2(math.e)))}, v{vL}   ; (1-mask)*-1e9*log2(e)")
        e(f"    s_cmp_eq_u32 s{sSplit}, 0")
        e(f"    s_cselect_b32 s{sTmp}, 0, 0xff800000")
        e(f"    v_add_f32 v{vL}, s{sTmp}, v{vL}")
        if vt & 1:
            e(f"    s_mov_b32 s{sTmp}, 0x200000")
            e(f"    s_load_dword s58, s[{sVp}:{sVp+1}], 0           ; start the translation of the V pages early")
            e(f"    s_load_dword s59, s[{sVp}:{sVp+1}], s{sTmp}")
        if vt & 4:
            e(f"    s_load_dword s62, s[{sOutp}:{sOutp+1}], 0")

    def late_b():
        e(f"    v_and_b32 v{vP}, 1, v0")
        e(f"    v_lshlrev_b32 v{vP}, 4, v{vP}")
        e(f"    v_mov_b32 v{vPk}, 0xffff")
        e(f"    v_lshlrev_b32 v{vPk}, v{vP}, v{vPk}")
        e(f"    v_bfe_u32 v{vP}, v0, 1, 2")
        fill = [[f"    v_lshlrev_b32 v{vA1}, 16, v{vA0}", f"    v_lshlrev_b32 v{vA1+1}, 16, v{vA0+1}"],
                [f"    v_mul_f32 v{vTt}, v{vA1}, v{vA1+1}", f"    v_and_b32 v{vA1}, 0xffff0000, v{vA0}"],
                [f"    v_and_b32 v{vA1+1}, 0xffff0000, v{vA0+1}", f"    v_fmac_f32 v{vTt}, v{vA1}, v{vA1+1}"],
                [f"    v_lshlrev_b32 v{vA0}, 16, v{vVt}", f"    v_and_b32 v{vA0+1}, 0xffff0000, v{vVt}"]]
        for i in range(4):
            e(f"    v_cmp_eq_u32 vcc, {i}, v{vP}")
            for x in fill[i]:
                e(x)
            e(f"    v_cndmask_b32 v{vMask+i}, 0, v{vPk}, vcc")
        e(f"    v_lshlrev_b32 v{vA0+2}, 16, v{vVt+1}")
        e(f"    v_and_b32 v{vA0+3}, 0xffff0000, v{vVt+1}")

    def late_c():
        for k, sh in enumerate((1, 2, 4, 8)):
            e(f"    v_add_f32_dpp v{vTt}, v{vTt}, v{vTt} row_ror:{sh} {DPP}")
            e(f"    v_mov_b32 v{vA1+k}, 0")
            if k < 3:
                e("    s_nop 0")
        for x in xrow(vTt, vP, "v_add_f32"):
            e(x)
        e(f"    v_fma_f32 v{vTt}, v{vTt}, s{sC}, v{vL}")
        if vt & 2:
            e(f"    v_and_b32 v{vP}, 0x200000, v{vVoff}")
            e(f"    global_load_dword v{vX+1}, v{vP}, s[{sVp}:{sVp+1}] nt")

    def xrow(reg, tmp, op):
        L = []
        for sw in ("v_permlane16_swap_b32", "v_permlane32_swap_b32"):
            L += [f"    v_mov_b32 v{tmp}, v{reg}", "    s_nop 1", f"    {sw} v{reg}, v{tmp}", "    s_nop 1",
                  f"    {op} v{reg}, v{reg}, v{tmp}"]
        return L

    if not defer:
        late_a()
    e(f"    v_mov_b32 v{vM}, 0xff800000")
    e(f"    v_and_b32 v{vLd}, 60, v0                      ; score slots: group*64 + (lane>>2)*4, slot 0 is a dummy")
    for i in range(4):
        e(f"    v_mov_b32 v{vS+4+i}, v{vM}                  ; 'previous group' of group 0")
    dv = [int(ch, 32) for ch in duty]
    if dv == dv[:2] * 4:
        e(f"    s_bitcmp1_b32 s{sIx}, 0")
        e(f"    s_cselect_b32 s{sDuty}, {dv[1]}, {dv[0]}")
    else:
        tab = sum(d << (5 * i) for i, d in enumerate(dv))
        e(f"    s_mov_b32 s{sTmp+2}, {hex(tab & 0xffffffff)}")
        e(f"    s_mov_b32 s{sTmp+3}, {hex(tab >> 32)}")
        e(f"    s_mul_i32 s{sTmp}, s{sIx}, 5")
        e(f"    s_lshr_b64 s[{sTmp+2}:{sTmp+3}], s[{sTmp+2}:{sTmp+3}], s{sTmp}")
        e(f"    s_and_b32 s{sDuty}, s{sTmp+2}, 31")
    e(f"    ; workgroup row r = wg>>3 publishes the markers of iterations ({refm}r+5)&31 and that + 32")
    e(f"    s_mul_i32 s{sTmp}, s{sAcc}, {refm}")
    e(f"    s_add_u32 s{sTmp}, s{sTmp}, 5")
    e(f"    s_and_b32 s{sTmp}, s{sTmp}, 31")
    e(f"    s_lshl_b64 s[{sEx}:{sEx+1}], 1, s{sTmp}")
    sites = []
    for k, of in enumerate(offs):
        d, st = divmod(mp + of, NR)
        e(f"    s_add_u32 s{sCell[k]}, s{sTmp}, {d}")
        sites.append((st, k))
    if gx:
        e(f"    s_lshr_b32 s{sTmp+1}, s{sGr}, {int(math.log2(gx))}")
        e(f"    s_mul_i32 s{sTmp+1}, s{sTmp+1}, 3")
        e(f"    s_xor_b32 s{sTmp+1}, s{sTmp+1}, s2")
        e(f"    s_and_b32 s{sTmp+2}, s{sGr}, {gx-1}")
        e(f"    s_cselect_b32 s{sGr}, 0x100, s{sGr}")
        e(f"    s_and_b32 s{sTmp+1}, s{sTmp+1}, 7")
        e(f"    s_cselect_b32 s{sGw}, 0x100, s{sGr}")
        if gneg:
            e(f"    s_cmp_eq_u32 s{sGr}, 0")
            e(f"    s_cselect_b32 s{sGr}, 32, s{sGr}")
        gdw = (mp - 1 + gth) // NR
        assert gdw in (0, -1)
        if gdw:
            e(f"    s_sub_u32 s{sGw}, s{sGw}, 1")
            e(f"    s_cselect_b32 s{sGw}, 31, s{sGw}")
    e(f"    s_and_b32 s{sAcc}, s{sAcc}, 15")
    e(f"    s_mov_b32 s{sJ}, 0")
    if not vm:
        e(f"    s_mov_b32 s{sMo}, 0")
    e(f"    s_mov_b32 s{sEv}, {2 if defer else iters-1}")
    if stamp:
        e("    s_mov_b32 s63, 0")
    lvl = [0, 1, 2, 4][:len(inc)]
    inctab = sum(min(v, 15) << (8 * l) for v, l in zip(inc, lvl) if l < 4)
    stubs = []

    def control(i, tag):
        for st, k in sites:
            if st == i:
                e(f"    s_cmp_eq_u32 s{sJ}, s{sCell[k]}")
                e(f"    s_cbranch_scc1 L_pub_{tag}_{k}")
                e(f"L_pubx_{tag}_{k}:")
                stubs.append((tag, k))
        if gx:
            for nm, st, reg in (("gr", mp - 1, sGr), ("gw", (mp - 1 + gth) % NR, sGw), ("ge", 30, sGr)):
                if st == i:
                    e(f"    s_cmp_eq_u32 s{sJ}, s{reg}")
                    e(f"    s_cbranch_scc1 L_pub_{tag}_{nm}")
                    e(f"L_pubx_{tag}_{nm}:")
                    stubs.append((tag, nm))
        if i == mp and not vm:
            e(f"    s_load_dword s{sMk}, s[{sMb}:{sMb+1}], s{sMo} {mfl}")
        if i == mp and vm:
            e(f"    global_load_dword v{vX}, v{vMad}, s[{sMb}:{sMb+1}] sc1")
        if i == 29 and vm:
            e(f"    v_readlane_b32 s{sMk}, v{vX}, s{sJ}")
        if i == 27:
            e(f"    v_readlane_b32 s{sTmp}, v{vMs}, s{sJ}")
            e(f"    s_add_u32 s{sAcc}, s{sAcc}, s{sDuty}")
            e(f"    s_lshr_b32 s{sIx}, s{sAcc}, 4")
            e(f"    s_and_b32 s{sAcc}, s{sAcc}, 15")
        if i == 28 and not vm:
            e(f"    s_add_u32 s{sMo}, s{sMo}, {mstr}")
        if i == (30 if vm else 29):
            e(f"    s_xor_b32 s{sTmp}, s{sTmp}, s{sMk}")
            if gx:
                e(f"    s_bitcmp1_b32 s{sTmp}, 16")
                e(f"    s_cselect_b32 s{sTmp+1}, {0 if gneg else ginc}, {ginc if gneg else 0}")
                e(f"    s_add_u32 s{sIx}, s{sIx}, s{sTmp+1}")
                if stamp:
                    e(f"    s_bfe_u32 s{sTmp+1}, s{sTmp}, 0x10010")
                    e(f"    s_add_u32 s63, s63, s{sTmp+1}")
                e(f"    s_and_b32 s{sTmp}, s{sTmp}, 0xffff")
            e(f"    s_bcnt1_i32_b32 s{sTmp}, s{sTmp}")
            if len(offs) == 3:
                e(f"    s_cmp_gt_u32 s{sTmp}, 16")
                e(f"    s_cselect_b32 s{sIx}, {NC-1}, s{sIx}")
        if i == 30:
            e(f"    s_lshr_b32 s{sTmp}, {hex(inctab)}, s{sTmp}")
            e(f"    s_and_b32 s{sTmp}, s{sTmp}, 15")
            e(f"    s_add_u32 s{sIx}, s{sIx}, s{sTmp}")
            if stamp and not gx:
                e(f"    s_min_u32 s{sIx}, s{sIx}, {NC-1}")
                e(f"    s_add_u32 s63, s63, s{sIx}")

    def dispatch(ph, order):
        for c in order[:-1]:
            e(f"    s_cmp_{'ge' if c == NC-1 else 'eq'}_u32 s{sIx}, {c}")
            e(f"    s_cbranch_scc1 L_{ph}{c}")
        e(f"    s_branch L_{ph}{order[-1]}")

    def endit(ph):
        e(f"    v_add_u32 v{vLd}, {64*gpi}, v{vLd}")
        e(f"    s_add_u32 s{sJ}, s{sJ}, 1")
        if ms == 13 and ph == "k":
            msn.append(0)
            e(f"    s_cmp_lg_u32 s{sJ}, 2")
            e(f"    s_cbranch_scc1 L_ms{len(msn)}")
            e("    s_memrealtime s[56:57]")
            e(f"L_ms{len(msn)}:")
        e(f"    s_cmp_eq_u32 s{sJ}, s{sEv}")
        e(f"    s_cbranch_scc1 L_{ph}ev")
        dispatch(ph, [1, 2, 0] + list(range(3, NC)) if NC > 3 else list(range(NC)))

    def tr():
        if stamp == 2:
            e("    s_waitcnt lgkmcnt(0)")
            e(f"    v_writelane_b32 v{vTr}, s60, m0")
            e("    s_add_u32 m0, m0, 1")
            e("    s_memrealtime s[60:61]")

    def fin_a(S):
        e(f"    v_mov_b32_dpp v{vT}, v{S} quad_perm:[0,0,0,0] {DPP}")
        e(f"    v_mov_b32_dpp v{vT2}, v{S+2} quad_perm:[2,2,2,2] {DPP}")

    def fin_b(S, off):
        e(f"    v_add_f32_dpp v{vT}, v{S+1}, v{vT} quad_perm:[1,1,1,1] {DPP}")
        e(f"    v_add_f32_dpp v{vT2}, v{S+3}, v{vT2} quad_perm:[3,3,3,3] {DPP}")
        e(f"    v_add_f32 v{vT}, v{vT}, v{vT2}")
        e(f"    v_max_f32 v{vM}, v{vM}, v{vT}")
        e(f"    ds_write_b32 v{vLd}, v{vT} offset:{off}")

    def qp(c):
        return f"quad_perm:[{c},{c},{c},{c}] {DPP}"

    def b1(g, vB1=vB1):
        k, c = vK[(g >> 2) & 1], g & 3
        e(f"    v_and_b32_dpp v{vB1}, v{k[0]}, v{vMask} {qp(c)}")
        e(f"    v_and_b32_dpp v{vB1+1}, v{k[0]}, v{vMask+1} {qp(c)}")
        e(f"    v_and_b32_dpp v{vB1+2}, v{k[1]}, v{vMask+2} {qp(c)}")
        e(f"    v_and_b32_dpp v{vB1+3}, v{k[1]}, v{vMask+3} {qp(c)}")

    def b2(g, vB2=vB2):
        k, c = vK[(g >> 2) & 1], g & 3
        e(f"    v_and_b32_dpp v{vB2}, v{k[2]}, v{vMask} {qp(c)}")
        e(f"    v_and_b32_dpp v{vB2+1}, v{k[2]}, v{vMask+1} {qp(c)}")
        e(f"    v_and_b32_dpp v{vB2+2}, v{k[0]}, v{vMask+2} {qp(c)}")
        e(f"    v_and_b32_dpp v{vB2+3}, v{k[0]}, v{vMask+3} {qp(c)}")

    def p_a():
        e(f"    v_fma_f32 v{vP}, v{vSc}, s{sC}, -v{vMt}")
        e(f"    v_exp_f32 v{vP}, v{vP}")

    def p_b(bt):
        e(f"    v_cvt_pk_bf16_f32 v{vK[bt][0]}, v{vP}, v{vP}")
        e(f"    v_add_f32 v{vL}, v{vL}, v{vP}")

    def p_c(bt):
        e(f"    v_mov_b32_dpp v{vK[bt][1]}, v{vK[bt][0]} row_ror:4 {DPP}")
        e(f"    v_mov_b32_dpp v{vK[bt][2]}, v{vK[bt][0]} row_ror:12 {DPP}")

    def pv(i, drain=False):
        u = i % 4
        A = vA0 if u % 2 == 0 else vA1
        Pm = vB1 if u < 2 else vB2
        if drain and pre and i >= 24:
            Pm = vR + 48 + 4 * ((i - 24) // 2)
        e(f"    v_mfma_f32_16x16x32_bf16 {r(A,4)}, {r(Pm,4)}, {r(vR+4*i,4)}, {r(A,4)}")

    def vwork(i, drain):
        g, u = divmod(i, 4)
        bt, j = divmod(i, 16)
        if drain and pre and i in (17, 19, 21, 23):
            k = (i - 17) // 2
            (b1, b2)[k & 1](6 + (k >> 1), vR + 48 + 4 * k)
        if u == 0 and not (drain and pre and g >= 6):
            b2(g)
        if u == 2 and not (drain and g >= (5 if pre else 7)):
            b1(g + 1)
        if drain and bt == 1:
            return
        if j == 1:
            p_a()
            if not drain:
                e(f"    ds_read_b32 v{vSc}, v{vLd} offset:{256*(bt+2)}")
        if j == 3:
            p_b(bt ^ 1)
        if j == 5:
            p_c(bt ^ 1)

    quad = [0, 2, 1, 3]
    pstamp()
    for j in range(NI, NR):
        need = j - NI
        e(f"    s_waitcnt vmcnt({NI-1+(nsmall if need < nk0 else 0)})")
        if ms == 12 and need == 0:
            e("    s_memrealtime s[56:57]")
        load(j, True)
    e(f"    v_bfe_u32 v{vT2}, v0, 2, 2")
    for u in range(4):
        e(f"    v_cmp_eq_u32 s[{sTmp+2*u if u < 3 else sMp}:{sTmp+2*u+1 if u < 3 else sMp+1}], {quad[u]}, v{vT2}")
    e(f"    s_waitcnt vmcnt({NR-nk0+nsmall-1})            ; q")
    pstamp()
    for u in range(4):
        for i in range(4):
            e(f"    v_cndmask_b32 v{vQ+4*u+i}, 0, v{vS+i}, s[{sTmp+2*u if u < 3 else sMp}:{sTmp+2*u+1 if u < 3 else sMp+1}]")
    if not defer:
        e(f"    s_waitcnt vmcnt({NR-nk0+nsmall-4})")
        late_b()
        late_c()
    e(f"    s_waitcnt vmcnt({min(NR-1, NR-nk0+nsmall-5) if nk0 == 0 else NR-nk0+nsmall-5})")
    e(f"    v_not_b32 v{vMn}, v{vMs}")
    pstamp()
    if stamp == 2:
        e(f"    v_mov_b32 v{vTr}, 0")
        e("    s_mov_b32 m0, 0")
        e("    s_memrealtime s[60:61]")
    if stamp == 3:
        e(f"    v_mov_b32 v{vTr}, 0")
        e("    s_waitcnt lgkmcnt(0)")
        for k in range(pst[0]):
            e(f"    v_writelane_b32 v{vTr}, s{68+2*k}, {k}")

    def wcount(i, Wn):
        if not vm:
            return Wn - 1
        n = Wn - 1 + (1 if mp < i < mp + Wn else 0)
        if i == 29:
            n = min(n, 29 - mp - 1)
        return n

    def kbody(c):
        e(f"L_k{c}:                                          ; K iteration, {Ws[c]} loads in flight")
        tr()
        for i in range(NR):
            g, u = divmod(i, 4)
            S = vS + 4 * (g & 1)
            Sp = vS + 4 * ((g + 1) & 1)
            cc = "0" if u == 0 else r(S, 4)
            e(f"    v_mfma_f32_16x16x32_bf16 {r(S,4)}, {r(vR+4*i,4)}, {r(vQ+4*u,4)}, {cc}")
            e(f"    s_waitcnt vmcnt({wcount(i, Ws[c])})" + (" lgkmcnt(0)" if i == 29 and not vm else ""))
            load(i)
            control(i, f"k{c}")
            if u == 1:
                fin_a(Sp)
            if u == 2:
                fin_b(Sp, 64 * g)
        endit("k")

    def vbody(c):
        e(f"L_v{c}:                                          ; V iteration, {Ws[c]} loads in flight")
        tr()
        for i in range(NR):
            pv(i)
            e(f"    s_waitcnt vmcnt({wcount(i, Ws[c])})" + (" lgkmcnt(0)" if i % 16 == 1 else ""))
            load(i)
            control(i, f"v{c}")
            vwork(i, False)
        endit("v")

    def put_stubs():
        for tag, k in stubs:
            e(f"L_pub_{tag}_{k}:")
            if k == "gr":
                e(f"    s_lshl_b64 exec, 1, s{sJ}")
                e(f"    global_load_dword v{vG}, v{vGad}, s[{sGb}:{sGb+1}] sc1")
                e("    s_mov_b64 exec, -1")
                e(f"    s_branch L_pubx_{tag}_{k}")
                continue
            if k == "gw":
                e(f"    v_not_b32 v{vGn}, v{vGs}")
                e(f"    s_lshl_b64 exec, {2 if gdw else 1}, s{sJ}")
                e(f"    global_store_dword v{vGad}, v{vGn}, s[{sGb}:{sGb+1}] sc1")
                e("    s_mov_b64 exec, -1")
                e(f"    s_add_u32 s{sGw}, s{sGw}, 32")
                e(f"    s_branch L_pubx_{tag}_{k}")
                continue
            if k == "ge":
                e(f"    v_cmp_ne_u32 vcc, v{vG}, v{vGs}")
                e(f"    s_add_u32 s{sGr}, s{sGr}, 32")
                e(f"    s_bitcmp1_b64 vcc, s{sJ}")
                e(f"    s_cbranch_scc{1 if gneg else 0} L_pubx_{tag}_{k}")
                e(f"    s_mov_b64 vcc, {((1 << glen) - 1) << gd}")
                e(f"    s_lshl_b64 exec, vcc, s{sJ}")
                e(f"    s_cbranch_scc0 L_pube_{tag}")
                e(f"    global_store_byte_d16_hi v{vMad}, v{vMn}, s[{sMb}:{sMb+1}] offset:2")
                e(f"L_pube_{tag}:")
                e("    s_mov_b64 exec, -1")
                e(f"    s_branch L_pubx_{tag}_{k}")
                continue
            e(f"    s_mov_b64 exec, s[{sEx}:{sEx+1}]")
            op = ("global_store_byte", "global_store_short", "global_store_dword")[k]
            e(f"    {op} v{vMad}, v{vMn}, s[{sMb}:{sMb+1}]")
            e("    s_mov_b64 exec, -1")
            e(f"    s_add_u32 s{sCell[k]}, s{sCell[k]}, 32")
            if k == len(offs) - 1:
                e(f"    s_lshl_b64 s[{sEx}:{sEx+1}], s[{sEx}:{sEx+1}], 32")
            e(f"    s_branch L_pubx_{tag}_{k}")
        stubs.clear()

    korder = [k0] + [c for c in range(NC) if c != k0]
    for c in korder:
        kbody(c)
        put_stubs()
    e("L_kev:")
    e(f"    s_cmp_eq_u32 s{sJ}, {iters}")
    e("    s_cbranch_scc1 L_kdone")
    if defer:
        e("    ; one-time set-up for the V phase, in three small pieces between K iterations")
        for k, (fn, nxt) in enumerate(((late_a, 4), (late_b, 6), (late_c, iters - 1))):
            e(f"    s_cmp_lg_u32 s{sJ}, {2+2*k}")
            e(f"    s_cbranch_scc1 L_late{k}")
            fn()
            e(f"    s_mov_b32 s{sEv}, {nxt}")
            e("    s_branch L_kn")
            e(f"L_late{k}:")
    e(f"    s_mov_b32 s{sR}, s{sVp}")
    e(f"    s_mov_b32 s{sR+1}, s{sVp+1}")
    reset_off()
    e(f"    v_mov_b32 v{vOff}, v{vVoff}")
    e(f"    s_mov_b32 s{sEv}, {iters}")
    if otl == 1:
        e(f"    global_load_dword v{vX+1}, v{vOo}, s[{sOutp}:{sOutp+1}]      ; warms the translation of the output page; value unused")
    e(f"    v_and_b32 v{vPk}, 3, v0")
    e(f"    v_and_b32 v{vP}, 60, v0")
    e(f"    v_lshl_add_u32 v{vPk}, v{vPk}, 6, v{vP}")
    e(f"    v_add_u32 v{vPk}, 64, v{vPk}")
    if kvb > 0:
        e(f"    s_max_u32 s{sIx}, s{sIx}, {kvb}")
    e("L_kn:")
    dispatch("k", list(range(NC)))
    e("L_kdone:")
    mile()
    Sl = vS + 4 * ((gpi - 1) & 1)
    e("    ; V phase reads the scores one key per lane: group 4*batch + (l&3), slot l>>2")
    e(f"    ds_read_b32 v{vSc}, v{vPk}")
    e(f"    ds_read_b32 v{vSc+1}, v{vPk} offset:256")
    fin_a(Sl)
    e(f"    s_mov_b32 s{sEv}, {2*iters-1-(1 if ramp else 0)}")
    fin_b(Sl, 0)
    e(f"    v_mov_b32 v{vLd}, v{vPk}")
    e(f"    v_max_f32_dpp v{vM}, v{vM}, v{vM} row_ror:4 {DPP}")
    e("    s_nop 1")
    e(f"    v_max_f32_dpp v{vM}, v{vM}, v{vM} row_ror:8 {DPP}")
    for x in xrow(vM, vT, "v_max_f32"):
        e(x)
    e(f"    v_mul_f32 v{vMt}, s{sC}, v{vM}")
    e(f"    v_max_f32 v{vMt}, v{vMt}, v{vTt}")
    e(f"    v_and_b32 v{vMt}, -2, v{vMt}")
    e("    s_waitcnt lgkmcnt(0)")
    e(f"    v_sub_f32 v{vTt}, v{vTt}, v{vMt}")
    e(f"    v_exp_f32 v{vTt}, v{vTt}")
    p_a()
    e(f"    v_mul_f32 v{vL}, 0x3c800000, v{vTt}")
    p_b(0)
    e(f"    v_mov_b32 v{vSc}, v{vSc+1}")
    p_c(0)
    for i in range(4):
        e(f"    v_mul_f32 v{vA0+i}, v{vA0+i}, v{vTt}")
    b1(0)
    dispatch("v", list(range(NC)))
    for c in range(NC):
        vbody(c)
        put_stubs()

    vMa = vQ
    vMb = vR + 32
    vOwn = vQ + 12

    def check(d):
        for k, a in enumerate((vM1, vM2, vM3)):
            e(f"    global_load_dwordx4 {r(d+4*k,4)}, v{a}, s[{sWs}:{sWs+1}] sc1")

    def valid(d, target):
        e(f"    v_bitop3_b32 v{vT}, 1, v{d+1}, v{vSn+1} bitop3:0x60")
        for k in range(1, 6):
            e(f"    v_bitop3_b32 v{vT}, v{vT}, v{d+1+2*k}, v{vSn+1+2*k} bitop3:0x60")
        e(f"    v_cmp_eq_u32 vcc, 0, v{vT}")
        e(f"    s_cbranch_vccz {target}")

    def finish(d):
        P = [vOwn, d, d + 4, d + 8]
        Wt = vA0
        T = vR
        if diag & 2:
            e(f"    v_add_f32 v{T}, v{P[0]}, v{P[1]}")
            e(f"    v_add_f32 v{T+1}, v{P[2]}, v{P[3]}")
            e(f"    v_add_f32 v{T+2}, v{P[0]+2}, v{P[1]+2}")
            e(f"    v_add_f32 v{T+3}, v{P[2]+2}, v{P[3]+2}")
            e(f"    v_add_f32 v{T}, v{T}, v{T+1}")
            e(f"    v_add_f32 v{T+2}, v{T+2}, v{T+3}")
            e(f"    v_cvt_pk_bf16_f32 v{T}, v{T}, v{T+2}")
            e(f"    global_store_dword v{vOo}, v{T}, s[{sOutp}:{sOutp+1}]")
            e("    s_endpgm")
            return
        if stamp == 5:
            e("    s_memrealtime s[70:71]")
        for k in range(3):
            e(f"    v_and_b32 v{d+1+4*k}, -2, v{d+1+4*k}")
        e(f"    v_max3_f32 v{vM}, v{vMt}, v{d+1}, v{d+5}")
        e(f"    v_max_f32 v{vM}, v{vM}, v{d+9}")
        for k in range(4):
            e(f"    v_sub_f32 v{Wt+k}, v{vMt if k == 0 else P[k]+1}, v{vM}")
        for k in range(4):
            e(f"    v_exp_f32 v{Wt+k}, v{Wt+k}")
        for k in range(4):
            e(f"    v_and_b32 v{P[k]+3}, -2, v{P[k]+3}")
        for k in range(4):
            sel = "op_sel_hi:[1,0]" if k % 2 == 0 else "op_sel:[0,1] op_sel_hi:[1,1]"
            e(f"    v_pk_mul_f32 {r(T+2*k,2)}, {r(P[k]+2,2)}, {r(Wt+(k&2),2)} {sel}")
        e(f"    v_pk_add_f32 {r(T,2)}, {r(T,2)}, {r(T+2,2)}")
        e(f"    v_pk_add_f32 {r(T+4,2)}, {r(T+4,2)}, {r(T+6,2)}")
        e(f"    v_pk_add_f32 {r(T,2)}, {r(T,2)}, {r(T+4,2)}")
        e(f"    v_rcp_f32 v{vL}, v{T+1}")
        for k in range(4):
            e(f"    v_mul_f32 v{T+8+k}, v{Wt+k}, v{P[k]}")
        e(f"    v_add_f32 v{T+8}, v{T+8}, v{T+9}")
        e(f"    v_add_f32 v{T+10}, v{T+10}, v{T+11}")
        e(f"    v_mul_f32 v{T}, v{T}, v{vL}")
        e(f"    v_add_f32 v{T+8}, v{T+8}, v{T+10}")
        e(f"    v_mul_f32 v{T+8}, v{T+8}, v{vL}")
        e(f"    v_cvt_pk_bf16_f32 v{T}, v{T+8}, v{T}")
        e(f"    global_store_dword v{vOo}, v{T}, s[{sOutp}:{sOutp+1}]")
        if stamp == 5:
            e("    s_memrealtime s[72:73]")
        if stamp:
            e("    s_waitcnt vmcnt(0)")
            e("    s_branch L_st")
        elif ms >= 0:
            e("    s_branch L_pd")
        else:
            e("    s_endpgm")

    e("L_vev:")
    mile()
    if ramp:
        w0, w1, st0 = [int(x) for x in ramp.split(".")]
        tr()
        for i in range(NR):
            pv(i)
            wn = w0 if i < st0 else min(w1, int(round(w0 + (w1 - w0) * (i - st0 + 1) / (NR - st0))))
            e(f"    s_waitcnt vmcnt({wn-1})" + (" lgkmcnt(0)" if i % 16 == 1 else ""))
            load(i)
            vwork(i, False)
        e(f"    v_add_u32 v{vLd}, {64*gpi}, v{vLd}")
    if otl == 2:
        e(f"    global_load_dword v{vX+1}, v{vOo}, s[{sOutp}:{sOutp+1}]      ; warms the translation of the output page; value unused")
    e(f"    v_not_b32 v{vSn+13}, v{vSn+13}")
    e(f"    v_not_b32 v{vSn+15}, v{vSn+15}")
    e(f"    v_and_or_b32 v{vOwn+1}, v{vSn+13}, 1, v{vMt}")
    tr()
    if ck1 == 0:
        check(vMa)
    red = [[f"    v_add_f32_dpp v{vL}, v{vL}, v{vL} row_ror:{sh} {DPP}"] for sh in (1, 2, 4, 8)]
    for sw in ("v_permlane16_swap_b32", "v_permlane32_swap_b32"):
        red += [[f"    v_mov_b32 v{vT}, v{vL}"], [f"    {sw} v{vL}, v{vT}"], [f"    v_add_f32 v{vL}, v{vL}, v{vT}"]]
    red += [[f"    v_and_b32 v{vL}, -2, v{vL}", f"    v_and_or_b32 v{vOwn+3}, v{vSn+15}, 1, v{vL}"]]
    Wmax = max(Ws) if not ramp else NR
    for i in range(NR):
        n = NR - 1 - i + (3 if i >= ck1 else 0) + (1 if otl == 2 else 0)
        if i == 1 or NR - 1 - i < Wmax or i >= 6:
            e(f"    s_waitcnt vmcnt({n})" + (" lgkmcnt(0)" if i == 1 else ""))
        pv(i, True)
        if i == ck1 - 1:
            check(vMa)
        if i >= 6 and red:
            for x in red.pop(0):
                e(x)
        vwork(i, True)
    assert not red
    mile()
    if stamp:
        e(f"    s_memrealtime s[{sSt+2}:{sSt+3}]")
    if dpoll:
        check(vMb)
        e(f"    s_mov_b32 s{sJ}, {NP}")
        e("    s_nop 1")
    else:
        e(f"    s_mov_b32 s{sJ}, {NP}")
        e("    s_nop 4")
    e(f"    v_permlane32_swap_b32 v{vA0}, v{vA0+2}")
    e(f"    v_permlane32_swap_b32 v{vA0+1}, v{vA0+3}")
    e(f"    v_permlane32_swap_b32 v{vA1}, v{vA1+2}")
    e(f"    v_permlane32_swap_b32 v{vA1+1}, v{vA1+3}")
    e("    s_nop 0")
    e(f"    v_add_f32 v{vOwn}, v{vA0}, v{vA1+2}")
    e(f"    v_add_f32 v{vOwn+2}, v{vA0+1}, v{vA1+3}")
    e("    ; fast path: plain store, seen at once by workgroups that share this L2; bounded number of looks")
    e(f"    global_store_dwordx4 v{vSl}, {r(vOwn,4)}, s[{sWs}:{sWs+1}]")
    if diag & 8:
        e("    s_endpgm")
    if stamp == 5:
        e("    s_memrealtime s[68:69]")
    if dpoll:
        e("    s_waitcnt vmcnt(4)")
        valid(vMa, "L_fin")
        check(vMa)
        e("    s_waitcnt vmcnt(4)")
        e("L_poll:")
        valid(vMb, "L_finb")
        if diag & 4:
            e("    s_waitcnt vmcnt(0)")
            valid(vMa, "L_fin")
            check(vMa)
            e("    s_waitcnt vmcnt(0)")
            valid(vMa, "L_fin")
            e("    s_endpgm")
        check(vMb)
        e("    s_waitcnt vmcnt(3)")
        valid(vMa, "L_fin")
        check(vMa)
        e(f"    s_sub_u32 s{sJ}, s{sJ}, 1")
        e("    s_waitcnt vmcnt(3)")
        e("    s_cbranch_scc0 L_poll")
    else:
        e("    s_waitcnt vmcnt(1)")
        e("L_poll:")
        valid(vMa, "L_fin")
        check(vMa)
        e(f"    s_sub_u32 s{sJ}, s{sJ}, 1")
        e("    s_waitcnt vmcnt(0)")
        e("    s_cbranch_scc0 L_poll")
    e(f"    s_add_u32 s{sWs}, s{sWs}, 0x80000")
    e(f"    s_addc_u32 s{sWs+1}, s{sWs+1}, 0")
    e(f"    global_store_dwordx4 v{vSl}, {r(vOwn,4)}, s[{sWs}:{sWs+1}] sc1")
    e(f"    s_lshl_b32 s{sTmp}, s{sHead}, 2")
    e(f"    v_mov_b32 v{vX}, s{sTmp}")
    e(f"    v_mov_b32 v{vX+1}, 1")
    e("    s_mov_b64 exec, 1")
    e("    s_waitcnt vmcnt(0)")
    e(f"    global_atomic_add v{vT}, v{vX}, v{vX+1}, s[{sDbg}:{sDbg+1}] sc0")
    e("    s_waitcnt vmcnt(0)")
    e(f"    v_readfirstlane_b32 s{sTmp}, v{vT}")
    e("    s_mov_b64 exec, -1")
    e(f"    s_cmp_lg_u32 s{sTmp}, 3")
    e(f"    s_cbranch_scc1 {'L_st' if stamp else 'L_end'}")
    check(vMa)
    e("    s_waitcnt vmcnt(0)")
    e("L_fin:")
    finish(vMa)
    if dpoll:
        e("L_finb:")
        finish(vMb)
    if stamp:
        e("L_st:")
        e(f"    s_memrealtime s[{sSt+4}:{sSt+5}]")
        e(f"    s_load_dwordx2 s[{sWs}:{sWs+1}], s[0:1], 64")
        e(f"    s_mov_b32 s{sSt+7}, s63")
        e(f"    s_getreg_b32 s{sSt+6}, hwreg(HW_REG_XCC_ID, 0, 4)")
        e(f"    s_getreg_b32 s{sTmp+1}, hwreg(HW_REG_HW_ID, 0, 24)")
        e(f"    s_lshl_b32 s{sTmp+1}, s{sTmp+1}, 8")
        e(f"    s_or_b32 s{sSt+6}, s{sSt+6}, s{sTmp+1}")
        e("    s_waitcnt vmcnt(0) lgkmcnt(0)")
        e(f"    s_lshl_b32 s{sTmp+2}, s2, 5")
        e(f"    s_add_u32 s{sTmp+2}, s{sTmp+2}, 0x1000000")
        e(f"    v_mov_b32 v{vP}, s{sTmp+2}")
        for i in range(8):
            e(f"    v_mov_b32 v{vQ+i}, s{sSt+i}")
        e("    s_mov_b64 exec, 1")
        e(f"    global_store_dwordx4 v{vP}, {r(vQ,4)}, s[{sWs}:{sWs+1}]")
        e(f"    global_store_dwordx4 v{vP}, {r(vQ+4,4)}, s[{sWs}:{sWs+1}] offset:16")
        e("    s_mov_b64 exec, -1")
        if stamp == 5:
            for k in range(3):
                e(f"    v_writelane_b32 v{vTr}, s{68+2*k}, {k}")
        if stamp in (2, 3, 5):
            e(f"    s_lshl_b32 s{sTmp+2}, s2, 8")
            e(f"    s_add_u32 s{sTmp+2}, s{sTmp+2}, 0x2000000")
            e(f"    v_lshlrev_b32 v{vP}, 2, v0")
            e(f"    v_add_u32 v{vP}, s{sTmp+2}, v{vP}")
            e(f"    global_store_dword v{vP}, v{vTr}, s[{sWs}:{sWs+1}]")
    if ms >= 0:
        e("L_pd:")
        e(f"    s_cmp_lg_u32 s2, {mwg}")
        e("    s_cbranch_scc1 L_end")
        e("    s_waitcnt lgkmcnt(0)")
        e(f"    s_sub_u32 s56, s56, s{sSt}")
        e(f"    s_sub_u32 s56, s56, {msb}")
        e("    s_max_i32 s56, s56, 0")
        e("    s_min_i32 s56, s56, 2000")
        e("    s_mul_i32 s56, s56, 10")
        e("    s_add_u32 s56, s56, 8000")
        e("L_pad:")
        e(f"    s_memrealtime s[{sSt+2}:{sSt+3}]")
        e("    s_waitcnt lgkmcnt(0)")
        e(f"    s_sub_u32 s{sSt+2}, s{sSt+2}, s{sSt}")
        e(f"    s_cmp_lt_u32 s{sSt+2}, s56")
        e("    s_cbranch_scc1 L_pad")
    e("L_end:")
    e("    s_endpgm")
    if pfs:
        e("L_tail:")
        e(f"    .fill ({2048 * pfb + pfo} - (L_tail - L_pc)) / 4, 4, 0xbf810000   ; keeps the code prefetch inside .text")
    e('.section .rodata,"a"')
    e(".p2align 6")
    e(f".amdhsa_kernel {NAME}_kernel")
    e(f"  .amdhsa_next_free_vgpr {nv}")
    e(f"  .amdhsa_next_free_sgpr {nsg}")
    e(f"  .amdhsa_accum_offset {(nv+3)//4*4}")
    e("  .amdhsa_group_segment_fixed_size 0")
    e("  .amdhsa_kernarg_size 72")
    e("  .amdhsa_user_sgpr_count 2")
    e("  .amdhsa_user_sgpr_kernarg_segment_ptr 1")
    e("  .amdhsa_system_sgpr_workgroup_id_x 1")
    e("  .amdhsa_float_denorm_mode_32 3")
    e(".end_amdhsa_kernel")
    if stamp == 2:
        e(f"; meta waves={NWG} iters={2*iters} every=1 bytes={1 << 29}")
    return "\n".join(o) + "\n"


if __name__ == "__main__":
    for spec in sys.argv[1:]:
        name, _, kv = spec.partition(":")
        kw = {}
        for p in kv.split(","):
            if p:
                k, v = p.split("=")
                kw[k] = v.replace("+", " ") if k in ("fl", "map", "W", "duty", "xr", "offs", "inc", "mfl", "ramp") else int(v, 0)
        path = f"cdna_kernels/{NAME}.s" if name == "main" else f"var/{name}.s"
        open(path, "w").write(gen(**kw))
```

```python
import math, struct, sys
from gen1 import NAME, HEADER, f2u


def gen(W="20.21.22.24", duty="90909090", offs="0.20", inc="0.1.9", mp=5, mstr=4, mfl="glc",
        fl="nt", stamp=0, nk0=4, NI=28, pfs=1, ck1=28, kvb=2, NP=12, dpoll=1, vm=1, ramp="", gx=0, gth=8, ginc=1, glen=0, gd=2, g0=0, free=0, diag=0, pre=1, pfo=128, otl=0, gneg=0, k0=1, ms=-1, msb=0, mwg=0, stl=5, pfe=1, xc=1, defer=1, vt=1, dt=0, tpos=0, lean=0, refm=13,
        map="w3n6n4r0n1n2n3n0w4n5n7n8n9r1w1w2w5w6w7w0", xr="14w6", cmt=0):
    Ws = [int(x) for x in W.split(".")]
    NC = len(Ws)
    offs = [int(x) for x in offs.split(".")]
    inc = [int(x) for x in inc.split(".")]
    assert len(inc) == len(offs) + 1 and len(offs) <= 3 and offs == sorted(offs)
    NR, NWG, iters, gpi, ngrp = 32, 256, 32, 8, 256
    lds = (ngrp + 3) * 64
    toks = [map[i:i+2] for i in range(0, len(map), 2)]
    if len(toks) in (10, 16):
        toks = toks[:9] + ["n6", "n7", "n8", "n9"] + toks[9:]
    if len(toks) == 14:
        toks += [f"w{i}" for i in range(8) if f"w{i}" not in toks]
    pos = {t: 8 + i for i, t in enumerate(toks)}
    assert sorted(pos) == sorted(["r0", "r1"] + [f"w{i}" for i in range(8)] + [f"n{i}" for i in range(10)])
    assert free or all(t[0] == "w" for t in toks[14:])
    spl = [t for t in toks[:14] if t[0] == "w"]
    hdt = toks[14:]
    adr = spl
    if free:
        adr = [t for t in toks if t[0] == "w"]
        spl = ["w3", "w4"]
        hdt = ["w0", "w1", "w2", "w5", "w6", "w7"]
    hi = [pos[f"n{i}"] for i in range(5, 10)]
    himask = sum(1 << b for b in hi)
    xrs = [(int(t.split("w")[0]), int(t.split("w")[1])) for t in xr.split(".") if t]
    xrmask = sum(1 << p for p, _ in xrs)
    assert all(toks[p - 8][0] == "n" for p, _ in xrs)
    scatter = hi != sorted(hi)
    contiguous = hi == list(range(hi[0], hi[0] + 5)) and not xrs
    immm = 0xfff & ~xrmask

    def lowoff(n):
        return sum(((n >> i) & 1) << pos[f"n{i}"] for i in range(5))
    o = []
    e = o.append

    vOff, vVoff, vM1 = 1, 2, 3
    vTt, vT, vT2, vP, vPk, vL, vM, vMt = 4, 5, 6, 7, 8, 9, 10, 11
    vMask = 12
    vS = 16
    vB1, vB2 = 16, 20
    vA0, vA1 = 24, 28
    vQ = 32
    vSc = 48
    vM2, vM3 = 50, 51
    vSl, vOo = 52, 53
    vX = 54
    vSn = 56
    vLd, vMad, vMs, vMn = 72, 73, 74, 75
    vGad, vGs, vGn, vG = 76, 77, 78, 79
    vK = [[80, 81, 82], [83, 84, 85]]
    vVt = 86
    vR = 88
    nv = vR + 4 * NR
    vTr = nv
    if stamp in (2, 3, 5):
        nv += 1
    sR = 8
    sT2, sNx, sXr, sSp = 12, 13, 14, 15
    sOff, sHi, sC, sHead, sSplit, sJ, sIx, sMk = 16, 17, 18, 19, 20, 21, 22, 23
    sQp, sKp, sVp, sKtp, sVtp, sMp, sOutp, sDbg, sWs = 24, 26, 28, 30, 32, 34, 36, 38, 40
    sTmp = 42
    sMaskv, sAcc, sDuty, sMo = 48, 49, 50, 51
    sSt = 52
    sEx = 4
    sCell = [3, 6, 7]
    sMb = 64
    sEv = 66
    sGb, sGr, sGw = 94, 96, 97
    nsg = 100 if (stamp in (3, 5) or gx) else 76
    glen = glen or gx
    pst = [0]

    msn = [0]

    def mile():
        if msn[0] == ms:
            e("    s_memrealtime s[56:57]")
        msn[0] += 1

    def pstamp():
        mile()
        if stamp == 3:
            e(f"    s_memrealtime s[{68+2*pst[0]}:{69+2*pst[0]}]")
            pst[0] += 1

    def r(b, n):
        return f"v[{b}:{b+n-1}]"
    DPP = "row_mask:0xf bank_mask:0xf"

    def gather(dst, items, tmp):
        runs = []
        for wb, db in sorted(items):
            if runs and runs[-1][0] + runs[-1][2] == wb and runs[-1][1] + runs[-1][2] == db:
                runs[-1][2] += 1
            else:
                runs.append([wb, db, 1])
        for k, (wb, db, n) in enumerate(runs):
            t = dst if k == 0 else tmp
            e(f"    s_bfe_u32 s{t}, s2, {hex((n << 16) | wb)}")
            if db:
                e(f"    s_lshl_b32 s{t}, s{t}, {db}")
            if k:
                e(f"    s_xor_b32 s{dst}, s{dst}, s{t}")

    e(HEADER.rstrip())
    e(f"; @launch grid=({NWG},1,1) block=(64,1,1) lds={lds}")
    if cmt:
        e(open("notes.txt").read().rstrip())
    e('.amdgcn_target "amdgcn-amd-amdhsa--gfx950"')
    e(".text")
    e(f".globl {NAME}_kernel")
    e(".p2align 8")
    e(f".type {NAME}_kernel,@function")
    e(f"{NAME}_kernel:")
    if stamp or ms >= 0:
        e(f"    s_memrealtime s[{sSt}:{sSt+1}]")
    e(f"    s_load_dwordx16 s[{sQp}:{sQp+15}], s[0:1], 0")
    e(f"    s_load_dwordx2 s[{sWs}:{sWs+1}], s[0:1], 64")
    e(f"    s_cmp_ge_u32 s2, {NWG}")
    e("    s_cbranch_scc1 L_end")
    pfb = pfs if pfs >= 8 else 4 << pfs

    def prefetch():
        if not pfs:
            return 0
        e(f"    s_getpc_b64 s[{sTmp+4}:{sTmp+5}]")
        e("L_pc:")
        e(f"    s_mul_i32 s{sT2}, s{sAcc}, {64*pfb}")
        e(f"    v_mad_u32_u24 v{vMn}, v0, {pfb}, s{sT2}")
        e(f"    global_load_dword v{vSc}, v{vMn}, s[{sTmp+4}:{sTmp+5}] offset:{pfo}")
        return 1
    e(f"    s_lshr_b32 s{sAcc}, s2, 3")
    if pfe:
        prefetch()
    e("    ; head index, byte offset of this split inside a head, order mask")
    gather(sHead, [(int(t[1]), i) for i, t in enumerate(hdt)], sTmp)
    gather(sSp, [(int(t[1]), pos[t]) for t in adr], sTmp)
    if xrs:
        gather(sXr, [(w, p) for p, w in xrs], sTmp)
    e(f"    v_lshrrev_b32 v{vT}, 4, v0")
    e(f"    v_lshlrev_b32 v{vT}, 6, v{vT}")
    e(f"    v_and_b32 v{vT2}, 3, v0")
    e(f"    v_lshl_add_u32 v{vT}, v{vT2}, 4, v{vT}")
    if pos["r1"] == pos["r0"] + 1:
        e(f"    v_bfe_u32 v{vT2}, v0, 2, 2")
        e(f"    v_lshl_add_u32 v{vOff}, v{vT2}, {pos['r0']}, v{vT}")
    else:
        e(f"    v_bfe_u32 v{vT2}, v0, 2, 1")
        e(f"    v_lshl_add_u32 v{vOff}, v{vT2}, {pos['r0']}, v{vT}")
        e(f"    v_bfe_u32 v{vT2}, v0, 3, 1")
        e(f"    v_lshl_add_u32 v{vOff}, v{vT2}, {pos['r1']}, v{vOff}")
    e(f"    v_add_u32 v{vOff}, s{sSp}, v{vOff}")
    e(f"    s_lshl_b32 s{sTmp}, s{sHead}, 22" if not free else f"    s_mov_b32 s{sTmp}, 0")

    dl = sorted({(lowoff(i) & ~immm) ^ (lowoff(i + 1) & ~immm) for i in range(NR - 1)} - {0})
    xreg = {}
    if xc:
        for k, d in enumerate(dl):
            xreg[d] = 68 + k if stamp not in (3, 5) else 88 + k

    def reset_off():
        e(f"    s_mov_b32 s{sOff}, {'s%d' % sXr if xrs else 0}")
        if not contiguous:
            e(f"    s_mov_b32 s{sHi}, 0")
    if scatter:
        e(f"    s_mov_b32 s{sOff}, {'s%d' % sXr if xrs else 0}")
    else:
        reset_off()
    e(f"    s_mov_b32 s{sR+2}, {hex(1 << 28) if free else '0x400000'}")
    e(f"    s_mov_b32 s{sR+3}, 0x20000")
    def consts():
        for d, rg in xreg.items():
            e(f"    s_mov_b32 s{rg}, {hex(d)}")

    def small_addr():
        gather(sSplit, [(int(t[1]), i) for i, t in enumerate(spl)], sTmp + 1)
        e(f"    s_lshl_b32 s{sTmp+1}, s{sSplit}, 10")
        e(f"    s_lshl_b32 s{sTmp+2}, s{sHead}, 8")
        e(f"    s_lshl_b32 s{sTmp+3}, s{sHead}, 12")
        e(f"    v_lshlrev_b32 v{vMad}, 2, v0")
        e(f"    v_lshlrev_b32 v{vSl}, 4, v0")
        e(f"    v_and_b32 v{vVoff}, 0xf0, v{vSl}")
        e(f"    v_bfe_u32 v{vP}, v0, 4, 1")
        e(f"    v_lshl_add_u32 v{vOo}, v{vP}, 3, v{vVoff}       ; v_tree offset: (l&15)*16 + ((l>>4)&1)*8")
        e(f"    v_add_u32 v{vSl}, s{sTmp+1}, v{vSl}")
    if not lean:
        consts()
        small_addr()
    e("    s_waitcnt lgkmcnt(0)")
    pstamp()
    def touch():
        for k, p in enumerate((sQp, sWs) if dt else (sQp, sWs, sKtp, sVtp)):
            e(f"    s_load_dword s{58+k}, s[{p}:{p+1}], 0        ; starts the translation of this buffer's page")
        if stl & 8:
            e(f"    s_load_dword s62, s[{sVp}:{sVp+1}], s{sTmp}")
            e(f"    s_add_u32 s{sT2}, s{sTmp}, 0x200000")
            e(f"    s_load_dword s62, s[{sVp}:{sVp+1}], s{sT2}")
    if (stl & 5) == 1:
        touch()
    e(f"    s_add_u32 s{sR}, s{sKp}, s{sTmp}")
    e(f"    s_addc_u32 s{sR+1}, s{sKp+1}, 0")
    if stl & 2:
        e(f"    s_mov_b32 s{sT2}, 0x200000")
        e(f"    s_load_dword s62, s[{sR}:{sR+1}], s{sT2}")

    hruns = []
    for k, b in enumerate(hi):
        if hruns and hruns[-1][1] + hruns[-1][2] == b:
            hruns[-1][2] += 1
        else:
            hruns.append([k, b, 1])

    def load(i, first=False):
        lo = lowoff(i)
        e(f"    buffer_load_dwordx4 {r(vR+4*i,4)}, v{vOff}, s[{sR}:{sR+3}], s{sOff} offen offset:{lo & immm} {fl}")
        cur = lo & ~immm
        if first and i == 0 and lean:
            touch()
            consts()
        if i < NR - 1:
            d = cur ^ (lowoff(i + 1) & ~immm)
            if d:
                e(f"    s_xor_b32 s{sOff}, s{sOff}, {'s%d' % xreg[d] if d in xreg else hex(d)}")
            elif i % 4 == 3:
                e("    s_nop 0")
            if scatter and first:
                if i == 8:
                    e(f"    s_mov_b32 s{sHi}, 1")
                    e(f"    s_xor_b32 s{sNx}, {'s%d' % sXr if xrs else 0}, {hex(1 << hi[0])}")
            elif scatter and 8 <= i < 8 + len(hruns):
                cb, db, n = hruns[i - 8]
                if i == 8:
                    e(f"    s_add_u32 s{sHi}, s{sHi}, 1")
                e(f"    s_bfe_u32 s{sT2}, s{sHi}, {hex((n << 16) | cb)}")
                e(f"    s_lshl_b32 s{sT2}, s{sT2}, {db}")
                e(f"    s_xor_b32 s{sNx}, {('s%d' % sXr if xrs else 0) if i == 8 else 's%d' % sNx}, s{sT2}")
            if not scatter and not contiguous and i == 11:
                e(f"    s_or_b32 s{sHi}, s{sHi}, {hex(~himask & 0xffffffff)}")
                e(f"    s_add_u32 s{sHi}, s{sHi}, 1")
                e(f"    s_and_b32 s{sHi}, s{sHi}, {hex(himask)}")
        elif contiguous:
            e(f"    s_add_u32 s{sOff}, s{sOff}, {hex(((1 << hi[0]) - cur) & 0xffffffff)}")
        elif scatter:
            e(f"    s_mov_b32 s{sOff}, s{sNx}")
        elif xrs:
            e(f"    s_xor_b32 s{sOff}, s{sHi}, s{sXr}")
        else:
            e(f"    s_mov_b32 s{sOff}, s{sHi}")

    for i in range(nk0):
        load(i, True)
        if i == tpos and (stl & 5) == 5 and not lean:
            touch()
    if lean:
        assert nk0 >= 1 and (stl & 5) == 5
        small_addr()
    if ms == 10:
        e("    s_memrealtime s[56:57]")
    def tree_loads():
        for p in (sKtp, sVtp):
            e(f"    s_add_u32 s{p}, s{p}, s{sTmp+2}")
            e(f"    s_addc_u32 s{p+1}, s{p+1}, 0")
        e(f"    global_load_dword v{vA0}, v{vMad}, s[{sQp}:{sQp+1}]")
        e(f"    global_load_dword v{vA0+1}, v{vMad}, s[{sKtp}:{sKtp+1}]")
        e(f"    global_load_dwordx2 {r(vVt,2)}, v{vOo}, s[{sVtp}:{sVtp+1}]")

    def snap_loads(ks):
        for k in ks:
            a = (vM1, vM2, vM3, vSl)[k]
            if k < 3 and dt < 2:
                e(f"    v_xor_b32 v{a}, {hex(0x400*(k+1))}, v{vSl}")
            e(f"    global_load_dwordx4 {r(vSn+4*k,4)}, v{a}, s[{sWs}:{sWs+1}] sc1")

    e(f"    s_add_u32 s{sQp}, s{sQp}, s{sTmp+2}")
    e(f"    s_addc_u32 s{sQp+1}, s{sQp+1}, 0")
    e(f"    global_load_dwordx4 {r(vS,4)}, v{vT}, s[{sQp}:{sQp+1}]")
    nsmall = 2
    if not dt:
        e(f"    s_load_dword s{sMaskv}, s[{sMp}:{sMp+1}], 0")
    e(f"    s_getreg_b32 s{sIx}, hwreg(HW_REG_XCC_ID, 0, 3)")
    e(f"    s_mul_i32 s{sT2}, s{sIx}, {max(4096, 64*mstr)+256}")
    e(f"    s_add_u32 s{sT2}, s{sT2}, 0x40000")
    e(f"    s_add_u32 s{sMb}, s{sWs}, s{sT2}")
    e(f"    s_addc_u32 s{sMb+1}, s{sWs+1}, 0")
    if gx:
        e(f"    s_add_u32 s{sGb}, s{sWs}, 0x100000")
        e(f"    s_addc_u32 s{sGb+1}, s{sWs+1}, 0")
    assert mstr == 4
    e(f"    s_add_u32 s{sWs}, s{sWs}, s{sTmp+3}")
    e(f"    s_addc_u32 s{sWs+1}, s{sWs+1}, 0")
    e(f"    global_load_dword v{vMs}, v{vMad}, s[{sMb}:{sMb+1}] sc1")
    if not dt:
        tree_loads()
        nsmall += 3
    if dt < 2:
        snap_loads(range(4))
        nsmall += 4
    if gx:
        e(f"    s_mul_i32 s{sGr}, s{sAcc}, {refm}")
        e(f"    s_add_u32 s{sGr}, s{sGr}, 5")
        e(f"    s_and_b32 s{sGr}, s{sGr}, 31")
        e(f"    s_lshl_b32 s{sT2}, 1, s{sGr}")
        e(f"    v_mul_u32_u24 v{vGad}, 4352, v0")
        e(f"    s_mov_b32 exec_lo, s{sT2}")
        e(f"    s_mov_b32 exec_hi, s{sT2}")
        e(f"    global_load_dword v{vGs}, v{vGad}, s[{sGb}:{sGb+1}] sc1")
        e("    s_mov_b64 exec, -1")
        nsmall += 1
    if not pfe:
        nsmall += prefetch()
    if ms == 11:
        e("    s_memrealtime s[56:57]")
    for i in range(nk0, NI):
        load(i, True)
    pstamp()
    cs = (128 ** -0.5) * math.log2(math.e)

    def late_a():
        e(f"    s_lshl_b32 s{sTmp}, s{sHead}, 22" if not free else f"    s_mov_b32 s{sTmp}, 0")
        e(f"    s_lshl_b32 s{sTmp+2}, s{sHead}, 8")
        if dt:
            tree_loads()
            e(f"    s_mov_b32 s{sIx}, {NC-1}")
        e(f"    s_add_u32 s{sVp}, s{sVp}, s{sTmp}")
        e(f"    s_addc_u32 s{sVp+1}, s{sVp+1}, 0")
        e(f"    s_add_u32 s{sOutp}, s{sOutp}, s{sTmp+2}")
        e(f"    s_addc_u32 s{sOutp+1}, s{sOutp+1}, 0")
        e(f"    v_lshrrev_b32 v{vPk}, 5, v0")
        e(f"    v_lshl_add_u32 v{vOo}, v{vPk}, 2, v{vOo}        ; output offset")
        e(f"    v_lshl_add_u32 v{vVoff}, v{vPk}, {pos['r1']}, v{vVoff}")
        e(f"    v_bfe_u32 v{vPk}, v0, 4, 1")
        e(f"    v_lshl_add_u32 v{vVoff}, v{vPk}, {pos['r0']}, v{vVoff}")
        e(f"    v_add_u32 v{vVoff}, s{sSp}, v{vVoff}")
        e(f"    s_mov_b32 s{sC}, {hex(f2u(cs))}")
        e(f"    s_lshr_b32 s{sTmp}, s{sHead}, 5")
        e(f"    s_lshl_b32 s{sTmp}, s{sTmp}, 4")
        e("    s_waitcnt lgkmcnt(0)")
        e(f"    s_lshr_b32 s{sMaskv}, s{sMaskv}, s{sTmp}")
        e(f"    s_lshl_b32 s{sMaskv}, s{sMaskv}, 16")
        e(f"    v_sub_f32 v{vL}, s{sMaskv}, 1.0               ; mask - 1")
        e(f"    v_mul_f32 v{vL}, {hex(f2u(1e9*math.log2(math.e)))}, v{vL}   ; (1-mask)*-1e9*log2(e)")
        e(f"    s_cmp_eq_u32 s{sSplit}, 0")
        e(f"    s_cselect_b32 s{sTmp}, 0, 0xff800000")
        e(f"    v_add_f32 v{vL}, s{sTmp}, v{vL}")
        if vt & 1:
            e(f"    s_mov_b32 s{sTmp}, 0x200000")
            e(f"    s_load_dword s58, s[{sVp}:{sVp+1}], 0           ; start the translation of the V pages early")
            e(f"    s_load_dword s59, s[{sVp}:{sVp+1}], s{sTmp}")
        if vt & 4:
            e(f"    s_load_dword s62, s[{sOutp}:{sOutp+1}], 0")

    def late_b():
        if dt == 2:
            snap_loads((0, 1))
            e(f"    s_mov_b32 s{sIx}, {NC-1}")
        e(f"    v_and_b32 v{vP}, 1, v0")
        e(f"    v_lshlrev_b32 v{vP}, 4, v{vP}")
        e(f"    v_mov_b32 v{vPk}, 0xffff")
        e(f"    v_lshlrev_b32 v{vPk}, v{vP}, v{vPk}")
        e(f"    v_bfe_u32 v{vP}, v0, 1, 2")
        fill = [[f"    v_lshlrev_b32 v{vA1}, 16, v{vA0}", f"    v_lshlrev_b32 v{vA1+1}, 16, v{vA0+1}"],
                [f"    v_mul_f32 v{vTt}, v{vA1}, v{vA1+1}", f"    v_and_b32 v{vA1}, 0xffff0000, v{vA0}"],
                [f"    v_and_b32 v{vA1+1}, 0xffff0000, v{vA0+1}", f"    v_fmac_f32 v{vTt}, v{vA1}, v{vA1+1}"],
                [f"    v_lshlrev_b32 v{vA0}, 16, v{vVt}", f"    v_and_b32 v{vA0+1}, 0xffff0000, v{vVt}"]]
        for i in range(4):
            e(f"    v_cmp_eq_u32 vcc, {i}, v{vP}")
            for x in fill[i]:
                e(x)
            e(f"    v_cndmask_b32 v{vMask+i}, 0, v{vPk}, vcc")
        e(f"    v_lshlrev_b32 v{vA0+2}, 16, v{vVt+1}")
        e(f"    v_and_b32 v{vA0+3}, 0xffff0000, v{vVt+1}")

    def late_c():
        if dt == 2:
            snap_loads((2, 3))
            e(f"    s_mov_b32 s{sIx}, {NC-1}")
        for k, sh in enumerate((1, 2, 4, 8)):
            e(f"    v_add_f32_dpp v{vTt}, v{vTt}, v{vTt} row_ror:{sh} {DPP}")
            e(f"    v_mov_b32 v{vA1+k}, 0")
            if k < 3:
                e("    s_nop 0")
        for x in xrow(vTt, vP, "v_add_f32"):
            e(x)
        e(f"    v_fma_f32 v{vTt}, v{vTt}, s{sC}, v{vL}")
        if vt & 2:
            e(f"    v_and_b32 v{vP}, 0x200000, v{vVoff}")
            e(f"    global_load_dword v{vX+1}, v{vP}, s[{sVp}:{sVp+1}] nt")

    def xrow(reg, tmp, op):
        L = []
        for sw in ("v_permlane16_swap_b32", "v_permlane32_swap_b32"):
            L += [f"    v_mov_b32 v{tmp}, v{reg}", "    s_nop 1", f"    {sw} v{reg}, v{tmp}", "    s_nop 1",
                  f"    {op} v{reg}, v{reg}, v{tmp}"]
        return L

    if not defer:
        late_a()
    if dt:
        e(f"    s_load_dword s{sMaskv}, s[{sMp}:{sMp+1}], 0")
        e(f"    s_load_dword s60, s[{sKtp}:{sKtp+1}], 0        ; starts the translation of this buffer's page")
        e(f"    s_load_dword s61, s[{sVtp}:{sVtp+1}], 0")
    if dt == 2:
        for k, a in enumerate((vM1, vM2, vM3)):
            e(f"    v_xor_b32 v{a}, {hex(0x400*(k+1))}, v{vSl}")
    e(f"    v_mov_b32 v{vM}, 0xff800000")
    e(f"    v_and_b32 v{vLd}, 60, v0                      ; score slots: group*64 + (lane>>2)*4, slot 0 is a dummy")
    for i in range(4):
        e(f"    v_mov_b32 v{vS+4+i}, v{vM}                  ; 'previous group' of group 0")
    dv = [int(ch, 32) for ch in duty]
    if dv == dv[:2] * 4:
        e(f"    s_bitcmp1_b32 s{sIx}, 0")
        e(f"    s_cselect_b32 s{sDuty}, {dv[1]}, {dv[0]}")
    else:
        tab = sum(d << (5 * i) for i, d in enumerate(dv))
        e(f"    s_mov_b32 s{sTmp+2}, {hex(tab & 0xffffffff)}")
        e(f"    s_mov_b32 s{sTmp+3}, {hex(tab >> 32)}")
        e(f"    s_mul_i32 s{sTmp}, s{sIx}, 5")
        e(f"    s_lshr_b64 s[{sTmp+2}:{sTmp+3}], s[{sTmp+2}:{sTmp+3}], s{sTmp}")
        e(f"    s_and_b32 s{sDuty}, s{sTmp+2}, 31")
    e(f"    ; workgroup row r = wg>>3 publishes the markers of iterations ({refm}r+5)&31 and that + 32")
    e(f"    s_mul_i32 s{sTmp}, s{sAcc}, {refm}")
    e(f"    s_add_u32 s{sTmp}, s{sTmp}, 5")
    e(f"    s_and_b32 s{sTmp}, s{sTmp}, 31")
    e(f"    s_lshl_b64 s[{sEx}:{sEx+1}], 1, s{sTmp}")
    sites = []
    for k, of in enumerate(offs):
        d, st = divmod(mp + of, NR)
        e(f"    s_add_u32 s{sCell[k]}, s{sTmp}, {d}")
        sites.append((st, k))
    if gx:
        e(f"    s_lshr_b32 s{sTmp+1}, s{sGr}, {int(math.log2(gx))}")
        e(f"    s_mul_i32 s{sTmp+1}, s{sTmp+1}, 3")
        e(f"    s_xor_b32 s{sTmp+1}, s{sTmp+1}, s2")
        e(f"    s_and_b32 s{sTmp+2}, s{sGr}, {gx-1}")
        e(f"    s_cselect_b32 s{sGr}, 0x100, s{sGr}")
        e(f"    s_and_b32 s{sTmp+1}, s{sTmp+1}, 7")
        e(f"    s_cselect_b32 s{sGw}, 0x100, s{sGr}")
        if gneg:
            e(f"    s_cmp_eq_u32 s{sGr}, 0")
            e(f"    s_cselect_b32 s{sGr}, 32, s{sGr}")
        gdw = (mp - 1 + gth) // NR
        assert gdw in (0, -1)
        if gdw:
            e(f"    s_sub_u32 s{sGw}, s{sGw}, 1")
            e(f"    s_cselect_b32 s{sGw}, 31, s{sGw}")
    e(f"    s_and_b32 s{sAcc}, s{sAcc}, 15")
    e(f"    s_mov_b32 s{sJ}, 0")
    if not vm:
        e(f"    s_mov_b32 s{sMo}, 0")
    e(f"    s_mov_b32 s{sEv}, {2 if defer else iters-1}")
    if stamp:
        e("    s_mov_b32 s63, 0")
    lvl = [0, 1, 2, 4][:len(inc)]
    inctab = sum(min(v, 15) << (8 * l) for v, l in zip(inc, lvl) if l < 4)
    stubs = []

    def control(i, tag):
        for st, k in sites:
            if st == i:
                e(f"    s_cmp_eq_u32 s{sJ}, s{sCell[k]}")
                e(f"    s_cbranch_scc1 L_pub_{tag}_{k}")
                e(f"L_pubx_{tag}_{k}:")
                stubs.append((tag, k))
        if gx:
            for nm, st, reg in (("gr", mp - 1, sGr), ("gw", (mp - 1 + gth) % NR, sGw), ("ge", 30, sGr)):
                if st == i:
                    e(f"    s_cmp_eq_u32 s{sJ}, s{reg}")
                    e(f"    s_cbranch_scc1 L_pub_{tag}_{nm}")
                    e(f"L_pubx_{tag}_{nm}:")
                    stubs.append((tag, nm))
        if i == mp and not vm:
            e(f"    s_load_dword s{sMk}, s[{sMb}:{sMb+1}], s{sMo} {mfl}")
        if i == mp and vm:
            e(f"    global_load_dword v{vX}, v{vMad}, s[{sMb}:{sMb+1}] sc1")
        if i == 29 and vm:
            e(f"    v_readlane_b32 s{sMk}, v{vX}, s{sJ}")
        if i == 27:
            e(f"    v_readlane_b32 s{sTmp}, v{vMs}, s{sJ}")
            e(f"    s_add_u32 s{sAcc}, s{sAcc}, s{sDuty}")
            e(f"    s_lshr_b32 s{sIx}, s{sAcc}, 4")
            e(f"    s_and_b32 s{sAcc}, s{sAcc}, 15")
        if i == 28 and not vm:
            e(f"    s_add_u32 s{sMo}, s{sMo}, {mstr}")
        if i == (30 if vm else 29):
            e(f"    s_xor_b32 s{sTmp}, s{sTmp}, s{sMk}")
            if gx:
                e(f"    s_bitcmp1_b32 s{sTmp}, 16")
                e(f"    s_cselect_b32 s{sTmp+1}, {0 if gneg else ginc}, {ginc if gneg else 0}")
                e(f"    s_add_u32 s{sIx}, s{sIx}, s{sTmp+1}")
                if stamp:
                    e(f"    s_bfe_u32 s{sTmp+1}, s{sTmp}, 0x10010")
                    e(f"    s_add_u32 s63, s63, s{sTmp+1}")
                e(f"    s_and_b32 s{sTmp}, s{sTmp}, 0xffff")
            e(f"    s_bcnt1_i32_b32 s{sTmp}, s{sTmp}")
            if len(offs) == 3:
                e(f"    s_cmp_gt_u32 s{sTmp}, 16")
                e(f"    s_cselect_b32 s{sIx}, {NC-1}, s{sIx}")
        if i == 30:
            e(f"    s_lshr_b32 s{sTmp}, {hex(inctab)}, s{sTmp}")
            e(f"    s_and_b32 s{sTmp}, s{sTmp}, 15")
            e(f"    s_add_u32 s{sIx}, s{sIx}, s{sTmp}")
            if stamp and not gx:
                e(f"    s_min_u32 s{sIx}, s{sIx}, {NC-1}")
                e(f"    s_add_u32 s63, s63, s{sIx}")

    def dispatch(ph, order):
        for c in order[:-1]:
            e(f"    s_cmp_{'ge' if c == NC-1 else 'eq'}_u32 s{sIx}, {c}")
            e(f"    s_cbranch_scc1 L_{ph}{c}")
        e(f"    s_branch L_{ph}{order[-1]}")

    def endit(ph):
        e(f"    v_add_u32 v{vLd}, {64*gpi}, v{vLd}")
        e(f"    s_add_u32 s{sJ}, s{sJ}, 1")
        if ms == 13 and ph == "k":
            msn.append(0)
            e(f"    s_cmp_lg_u32 s{sJ}, 2")
            e(f"    s_cbranch_scc1 L_ms{len(msn)}")
            e("    s_memrealtime s[56:57]")
            e(f"L_ms{len(msn)}:")
        e(f"    s_cmp_eq_u32 s{sJ}, s{sEv}")
        e(f"    s_cbranch_scc1 L_{ph}ev")
        dispatch(ph, [1, 2, 0] + list(range(3, NC)) if NC > 3 else list(range(NC)))

    def tr():
        if stamp == 2:
            e("    s_waitcnt lgkmcnt(0)")
            e(f"    v_writelane_b32 v{vTr}, s60, m0")
            e("    s_add_u32 m0, m0, 1")
            e("    s_memrealtime s[60:61]")

    def fin_a(S):
        e(f"    v_mov_b32_dpp v{vT}, v{S} quad_perm:[0,0,0,0] {DPP}")
        e(f"    v_mov_b32_dpp v{vT2}, v{S+2} quad_perm:[2,2,2,2] {DPP}")

    def fin_b(S, off):
        e(f"    v_add_f32_dpp v{vT}, v{S+1}, v{vT} quad_perm:[1,1,1,1] {DPP}")
        e(f"    v_add_f32_dpp v{vT2}, v{S+3}, v{vT2} quad_perm:[3,3,3,3] {DPP}")
        e(f"    v_add_f32 v{vT}, v{vT}, v{vT2}")
        e(f"    v_max_f32 v{vM}, v{vM}, v{vT}")
        e(f"    ds_write_b32 v{vLd}, v{vT} offset:{off}")

    def qp(c):
        return f"quad_perm:[{c},{c},{c},{c}] {DPP}"

    def b1(g, vB1=vB1):
        k, c = vK[(g >> 2) & 1], g & 3
        e(f"    v_and_b32_dpp v{vB1}, v{k[0]}, v{vMask} {qp(c)}")
        e(f"    v_and_b32_dpp v{vB1+1}, v{k[0]}, v{vMask+1} {qp(c)}")
        e(f"    v_and_b32_dpp v{vB1+2}, v{k[1]}, v{vMask+2} {qp(c)}")
        e(f"    v_and_b32_dpp v{vB1+3}, v{k[1]}, v{vMask+3} {qp(c)}")

    def b2(g, vB2=vB2):
        k, c = vK[(g >> 2) & 1], g & 3
        e(f"    v_and_b32_dpp v{vB2}, v{k[2]}, v{vMask} {qp(c)}")
        e(f"    v_and_b32_dpp v{vB2+1}, v{k[2]}, v{vMask+1} {qp(c)}")
        e(f"    v_and_b32_dpp v{vB2+2}, v{k[0]}, v{vMask+2} {qp(c)}")
        e(f"    v_and_b32_dpp v{vB2+3}, v{k[0]}, v{vMask+3} {qp(c)}")

    def p_a():
        e(f"    v_fma_f32 v{vP}, v{vSc}, s{sC}, -v{vMt}")
        e(f"    v_exp_f32 v{vP}, v{vP}")

    def p_b(bt):
        e(f"    v_cvt_pk_bf16_f32 v{vK[bt][0]}, v{vP}, v{vP}")
        e(f"    v_add_f32 v{vL}, v{vL}, v{vP}")

    def p_c(bt):
        e(f"    v_mov_b32_dpp v{vK[bt][1]}, v{vK[bt][0]} row_ror:4 {DPP}")
        e(f"    v_mov_b32_dpp v{vK[bt][2]}, v{vK[bt][0]} row_ror:12 {DPP}")

    def pv(i, drain=False):
        u = i % 4
        A = vA0 if u % 2 == 0 else vA1
        Pm = vB1 if u < 2 else vB2
        if drain and pre and i >= 24:
            Pm = vR + 48 + 4 * ((i - 24) // 2)
        e(f"    v_mfma_f32_16x16x32_bf16 {r(A,4)}, {r(Pm,4)}, {r(vR+4*i,4)}, {r(A,4)}")

    def vwork(i, drain):
        g, u = divmod(i, 4)
        bt, j = divmod(i, 16)
        if drain and pre and i in (17, 19, 21, 23):
            k = (i - 17) // 2
            (b1, b2)[k & 1](6 + (k >> 1), vR + 48 + 4 * k)
        if u == 0 and not (drain and pre and g >= 6):
            b2(g)
        if u == 2 and not (drain and g >= (5 if pre else 7)):
            b1(g + 1)
        if drain and bt == 1:
            return
        if j == 1:
            p_a()
            if not drain:
                e(f"    ds_read_b32 v{vSc}, v{vLd} offset:{256*(bt+2)}")
        if j == 3:
            p_b(bt ^ 1)
        if j == 5:
            p_c(bt ^ 1)

    quad = [0, 2, 1, 3]
    pstamp()
    for j in range(NI, NR):
        need = j - NI
        e(f"    s_waitcnt vmcnt({NI-1+(nsmall if need < nk0 else 0)})")
        if ms == 12 and need == 0:
            e("    s_memrealtime s[56:57]")
        load(j, True)
    e(f"    v_bfe_u32 v{vT2}, v0, 2, 2")
    for u in range(4):
        e(f"    v_cmp_eq_u32 s[{sTmp+2*u if u < 3 else sMp}:{sTmp+2*u+1 if u < 3 else sMp+1}], {quad[u]}, v{vT2}")
    e(f"    s_waitcnt vmcnt({NR-nk0+nsmall-1})            ; q")
    pstamp()
    for u in range(4):
        for i in range(4):
            e(f"    v_cndmask_b32 v{vQ+4*u+i}, 0, v{vS+i}, s[{sTmp+2*u if u < 3 else sMp}:{sTmp+2*u+1 if u < 3 else sMp+1}]")
    if not defer:
        e(f"    s_waitcnt vmcnt({NR-nk0+nsmall-5})")
        late_b()
        late_c()
    e(f"    s_waitcnt vmcnt({min(NR-1, NR-nk0+nsmall-2) if nk0 == 0 else NR-nk0+nsmall-2})")
    e(f"    v_not_b32 v{vMn}, v{vMs}")
    pstamp()
    if stamp == 2:
        e(f"    v_mov_b32 v{vTr}, 0")
        e("    s_mov_b32 m0, 0")
        e("    s_memrealtime s[60:61]")
    if stamp == 3:
        e(f"    v_mov_b32 v{vTr}, 0")
        e("    s_waitcnt lgkmcnt(0)")
        for k in range(pst[0]):
            e(f"    v_writelane_b32 v{vTr}, s{68+2*k}, {k}")

    def wcount(i, Wn):
        if not vm:
            return Wn - 1
        n = Wn - 1 + (1 if mp < i < mp + Wn else 0)
        if i == 29:
            n = min(n, 29 - mp - 1)
        return n

    def kbody(c):
        e(f"L_k{c}:                                          ; K iteration, {Ws[c]} loads in flight")
        tr()
        for i in range(NR):
            g, u = divmod(i, 4)
            S = vS + 4 * (g & 1)
            Sp = vS + 4 * ((g + 1) & 1)
            cc = "0" if u == 0 else r(S, 4)
            e(f"    v_mfma_f32_16x16x32_bf16 {r(S,4)}, {r(vR+4*i,4)}, {r(vQ+4*u,4)}, {cc}")
            e(f"    s_waitcnt vmcnt({wcount(i, Ws[c])})" + (" lgkmcnt(0)" if i == 29 and not vm else ""))
            load(i)
            control(i, f"k{c}")
            if u == 1:
                fin_a(Sp)
            if u == 2:
                fin_b(Sp, 64 * g)
        endit("k")

    def vbody(c):
        e(f"L_v{c}:                                          ; V iteration, {Ws[c]} loads in flight")
        tr()
        for i in range(NR):
            pv(i)
            e(f"    s_waitcnt vmcnt({wcount(i, Ws[c])})" + (" lgkmcnt(0)" if i % 16 == 1 else ""))
            load(i)
            control(i, f"v{c}")
            vwork(i, False)
        endit("v")

    def put_stubs():
        for tag, k in stubs:
            e(f"L_pub_{tag}_{k}:")
            if k == "gr":
                e(f"    s_lshl_b64 exec, 1, s{sJ}")
                e(f"    global_load_dword v{vG}, v{vGad}, s[{sGb}:{sGb+1}] sc1")
                e("    s_mov_b64 exec, -1")
                e(f"    s_branch L_pubx_{tag}_{k}")
                continue
            if k == "gw":
                e(f"    v_not_b32 v{vGn}, v{vGs}")
                e(f"    s_lshl_b64 exec, {2 if gdw else 1}, s{sJ}")
                e(f"    global_store_dword v{vGad}, v{vGn}, s[{sGb}:{sGb+1}] sc1")
                e("    s_mov_b64 exec, -1")
                e(f"    s_add_u32 s{sGw}, s{sGw}, 32")
                e(f"    s_branch L_pubx_{tag}_{k}")
                continue
            if k == "ge":
                e(f"    v_cmp_ne_u32 vcc, v{vG}, v{vGs}")
                e(f"    s_add_u32 s{sGr}, s{sGr}, 32")
                e(f"    s_bitcmp1_b64 vcc, s{sJ}")
                e(f"    s_cbranch_scc{1 if gneg else 0} L_pubx_{tag}_{k}")
                e(f"    s_mov_b64 vcc, {((1 << glen) - 1) << gd}")
                e(f"    s_lshl_b64 exec, vcc, s{sJ}")
                e(f"    s_cbranch_scc0 L_pube_{tag}")
                e(f"    global_store_byte_d16_hi v{vMad}, v{vMn}, s[{sMb}:{sMb+1}] offset:2")
                e(f"L_pube_{tag}:")
                e("    s_mov_b64 exec, -1")
                e(f"    s_branch L_pubx_{tag}_{k}")
                continue
            e(f"    s_mov_b64 exec, s[{sEx}:{sEx+1}]")
            op = ("global_store_byte", "global_store_short", "global_store_dword")[k]
            e(f"    {op} v{vMad}, v{vMn}, s[{sMb}:{sMb+1}]")
            e("    s_mov_b64 exec, -1")
            e(f"    s_add_u32 s{sCell[k]}, s{sCell[k]}, 32")
            if k == len(offs) - 1:
                e(f"    s_lshl_b64 s[{sEx}:{sEx+1}], s[{sEx}:{sEx+1}], 32")
            e(f"    s_branch L_pubx_{tag}_{k}")
        stubs.clear()

    korder = [k0] + [c for c in range(NC) if c != k0]
    for c in korder:
        kbody(c)
        put_stubs()
    e("L_kev:")
    e(f"    s_cmp_eq_u32 s{sJ}, {iters}")
    e("    s_cbranch_scc1 L_kdone")
    if defer:
        e("    ; one-time set-up for the V phase, in three small pieces between K iterations")
        for k, (fn, nxt) in enumerate(((late_a, 4), (late_b, 6), (late_c, iters - 1))):
            e(f"    s_cmp_lg_u32 s{sJ}, {2+2*k}")
            e(f"    s_cbranch_scc1 L_late{k}")
            fn()
            e(f"    s_mov_b32 s{sEv}, {nxt}")
            e("    s_branch L_kn")
            e(f"L_late{k}:")
    e(f"    s_mov_b32 s{sR}, s{sVp}")
    e(f"    s_mov_b32 s{sR+1}, s{sVp+1}")
    reset_off()
    e(f"    v_mov_b32 v{vOff}, v{vVoff}")
    e(f"    s_mov_b32 s{sEv}, {iters}")
    if otl == 1:
        e(f"    global_load_dword v{vX+1}, v{vOo}, s[{sOutp}:{sOutp+1}]      ; warms the translation of the output page; value unused")
    e(f"    v_and_b32 v{vPk}, 3, v0")
    e(f"    v_and_b32 v{vP}, 60, v0")
    e(f"    v_lshl_add_u32 v{vPk}, v{vPk}, 6, v{vP}")
    e(f"    v_add_u32 v{vPk}, 64, v{vPk}")
    if kvb > 0:
        e(f"    s_max_u32 s{sIx}, s{sIx}, {kvb}")
    e("L_kn:")
    dispatch("k", list(range(NC)))
    e("L_kdone:")
    mile()
    Sl = vS + 4 * ((gpi - 1) & 1)
    e("    ; V phase reads the scores one key per lane: group 4*batch + (l&3), slot l>>2")
    e(f"    ds_read_b32 v{vSc}, v{vPk}")
    e(f"    ds_read_b32 v{vSc+1}, v{vPk} offset:256")
    fin_a(Sl)
    e(f"    s_mov_b32 s{sEv}, {2*iters-1-(1 if ramp else 0)}")
    fin_b(Sl, 0)
    e(f"    v_mov_b32 v{vLd}, v{vPk}")
    e(f"    v_max_f32_dpp v{vM}, v{vM}, v{vM} row_ror:4 {DPP}")
    e("    s_nop 1")
    e(f"    v_max_f32_dpp v{vM}, v{vM}, v{vM} row_ror:8 {DPP}")
    for x in xrow(vM, vT, "v_max_f32"):
        e(x)
    e(f"    v_mul_f32 v{vMt}, s{sC}, v{vM}")
    e(f"    v_max_f32 v{vMt}, v{vMt}, v{vTt}")
    e(f"    v_and_b32 v{vMt}, -2, v{vMt}")
    e("    s_waitcnt lgkmcnt(0)")
    e(f"    v_sub_f32 v{vTt}, v{vTt}, v{vMt}")
    e(f"    v_exp_f32 v{vTt}, v{vTt}")
    p_a()
    e(f"    v_mul_f32 v{vL}, 0x3c800000, v{vTt}")
    p_b(0)
    e(f"    v_mov_b32 v{vSc}, v{vSc+1}")
    p_c(0)
    for i in range(4):
        e(f"    v_mul_f32 v{vA0+i}, v{vA0+i}, v{vTt}")
    b1(0)
    dispatch("v", list(range(NC)))
    for c in range(NC):
        vbody(c)
        put_stubs()

    vMa = vQ
    vMb = vR + 32
    vOwn = vQ + 12

    def check(d):
        for k, a in enumerate((vM1, vM2, vM3)):
            e(f"    global_load_dwordx4 {r(d+4*k,4)}, v{a}, s[{sWs}:{sWs+1}] sc1")

    def valid(d, target):
        e(f"    v_bitop3_b32 v{vT}, 1, v{d+1}, v{vSn+1} bitop3:0x60")
        for k in range(1, 6):
            e(f"    v_bitop3_b32 v{vT}, v{vT}, v{d+1+2*k}, v{vSn+1+2*k} bitop3:0x60")
        e(f"    v_cmp_eq_u32 vcc, 0, v{vT}")
        e(f"    s_cbranch_vccz {target}")

    def finish(d):
        P = [vOwn, d, d + 4, d + 8]
        Wt = vA0
        T = vR
        if diag & 2:
            e(f"    v_add_f32 v{T}, v{P[0]}, v{P[1]}")
            e(f"    v_add_f32 v{T+1}, v{P[2]}, v{P[3]}")
            e(f"    v_add_f32 v{T+2}, v{P[0]+2}, v{P[1]+2}")
            e(f"    v_add_f32 v{T+3}, v{P[2]+2}, v{P[3]+2}")
            e(f"    v_add_f32 v{T}, v{T}, v{T+1}")
            e(f"    v_add_f32 v{T+2}, v{T+2}, v{T+3}")
            e(f"    v_cvt_pk_bf16_f32 v{T}, v{T}, v{T+2}")
            e(f"    global_store_dword v{vOo}, v{T}, s[{sOutp}:{sOutp+1}]")
            e("    s_endpgm")
            return
        if stamp == 5:
            e("    s_memrealtime s[70:71]")
        for k in range(3):
            e(f"    v_and_b32 v{d+1+4*k}, -2, v{d+1+4*k}")
        e(f"    v_max3_f32 v{vM}, v{vMt}, v{d+1}, v{d+5}")
        e(f"    v_max_f32 v{vM}, v{vM}, v{d+9}")
        for k in range(4):
            e(f"    v_sub_f32 v{Wt+k}, v{vMt if k == 0 else P[k]+1}, v{vM}")
        for k in range(4):
            e(f"    v_exp_f32 v{Wt+k}, v{Wt+k}")
        for k in range(4):
            e(f"    v_and_b32 v{P[k]+3}, -2, v{P[k]+3}")
        for k in range(4):
            sel = "op_sel_hi:[1,0]" if k % 2 == 0 else "op_sel:[0,1] op_sel_hi:[1,1]"
            e(f"    v_pk_mul_f32 {r(T+2*k,2)}, {r(P[k]+2,2)}, {r(Wt+(k&2),2)} {sel}")
        e(f"    v_pk_add_f32 {r(T,2)}, {r(T,2)}, {r(T+2,2)}")
        e(f"    v_pk_add_f32 {r(T+4,2)}, {r(T+4,2)}, {r(T+6,2)}")
        e(f"    v_pk_add_f32 {r(T,2)}, {r(T,2)}, {r(T+4,2)}")
        e(f"    v_rcp_f32 v{vL}, v{T+1}")
        for k in range(4):
            e(f"    v_mul_f32 v{T+8+k}, v{Wt+k}, v{P[k]}")
        e(f"    v_add_f32 v{T+8}, v{T+8}, v{T+9}")
        e(f"    v_add_f32 v{T+10}, v{T+10}, v{T+11}")
        e(f"    v_mul_f32 v{T}, v{T}, v{vL}")
        e(f"    v_add_f32 v{T+8}, v{T+8}, v{T+10}")
        e(f"    v_mul_f32 v{T+8}, v{T+8}, v{vL}")
        e(f"    v_cvt_pk_bf16_f32 v{T}, v{T+8}, v{T}")
        e(f"    global_store_dword v{vOo}, v{T}, s[{sOutp}:{sOutp+1}]")
        if stamp == 5:
            e("    s_memrealtime s[72:73]")
        if stamp:
            e("    s_waitcnt vmcnt(0)")
            e("    s_branch L_st")
        elif ms >= 0:
            e("    s_branch L_pd")
        else:
            e("    s_endpgm")

    e("L_vev:")
    mile()
    if ramp:
        w0, w1, st0 = [int(x) for x in ramp.split(".")]
        tr()
        for i in range(NR):
            pv(i)
            wn = w0 if i < st0 else min(w1, int(round(w0 + (w1 - w0) * (i - st0 + 1) / (NR - st0))))
            e(f"    s_waitcnt vmcnt({wn-1})" + (" lgkmcnt(0)" if i % 16 == 1 else ""))
            load(i)
            vwork(i, False)
        e(f"    v_add_u32 v{vLd}, {64*gpi}, v{vLd}")
    if otl == 2:
        e(f"    global_load_dword v{vX+1}, v{vOo}, s[{sOutp}:{sOutp+1}]      ; warms the translation of the output page; value unused")
    e(f"    v_not_b32 v{vSn+13}, v{vSn+13}")
    e(f"    v_not_b32 v{vSn+15}, v{vSn+15}")
    e(f"    v_and_or_b32 v{vOwn+1}, v{vSn+13}, 1, v{vMt}")
    tr()
    if ck1 == 0:
        check(vMa)
    red = [[f"    v_add_f32_dpp v{vL}, v{vL}, v{vL} row_ror:{sh} {DPP}"] for sh in (1, 2, 4, 8)]
    for sw in ("v_permlane16_swap_b32", "v_permlane32_swap_b32"):
        red += [[f"    v_mov_b32 v{vT}, v{vL}"], [f"    {sw} v{vL}, v{vT}"], [f"    v_add_f32 v{vL}, v{vL}, v{vT}"]]
    red += [[f"    v_and_b32 v{vL}, -2, v{vL}", f"    v_and_or_b32 v{vOwn+3}, v{vSn+15}, 1, v{vL}"]]
    Wmax = max(Ws) if not ramp else NR
    for i in range(NR):
        n = NR - 1 - i + (3 if i >= ck1 else 0) + (1 if otl == 2 else 0)
        if i == 1 or NR - 1 - i < Wmax or i >= 6:
            e(f"    s_waitcnt vmcnt({n})" + (" lgkmcnt(0)" if i == 1 else ""))
        pv(i, True)
        if i == ck1 - 1:
            check(vMa)
        if i >= 6 and red:
            for x in red.pop(0):
                e(x)
        vwork(i, True)
    assert not red
    mile()
    if stamp:
        e(f"    s_memrealtime s[{sSt+2}:{sSt+3}]")
    if dpoll:
        check(vMb)
        e(f"    s_mov_b32 s{sJ}, {NP}")
        e("    s_nop 1")
    else:
        e(f"    s_mov_b32 s{sJ}, {NP}")
        e("    s_nop 4")
    e(f"    v_permlane32_swap_b32 v{vA0}, v{vA0+2}")
    e(f"    v_permlane32_swap_b32 v{vA0+1}, v{vA0+3}")
    e(f"    v_permlane32_swap_b32 v{vA1}, v{vA1+2}")
    e(f"    v_permlane32_swap_b32 v{vA1+1}, v{vA1+3}")
    e("    s_nop 0")
    e(f"    v_add_f32 v{vOwn}, v{vA0}, v{vA1+2}")
    e(f"    v_add_f32 v{vOwn+2}, v{vA0+1}, v{vA1+3}")
    if diag & 16:
        e("    s_endpgm")
    if diag & 32:
        e(f"    global_store_dword v{vOo}, v{vOwn}, s[{sOutp}:{sOutp+1}]")
        e("    s_endpgm")
    e("    ; fast path: plain store, seen at once by workgroups that share this L2; bounded number of looks")
    e(f"    global_store_dwordx4 v{vSl}, {r(vOwn,4)}, s[{sWs}:{sWs+1}]")
    if diag & 8:
        e("    s_endpgm")
    if stamp == 5:
        e("    s_memrealtime s[68:69]")
    if dpoll:
        e("    s_waitcnt vmcnt(4)")
        valid(vMa, "L_fin")
        check(vMa)
        e("    s_waitcnt vmcnt(4)")
        e("L_poll:")
        valid(vMb, "L_finb")
        if diag & 4:
            e("    s_waitcnt vmcnt(0)")
            valid(vMa, "L_fin")
            check(vMa)
            e("    s_waitcnt vmcnt(0)")
            valid(vMa, "L_fin")
            e("    s_endpgm")
        check(vMb)
        e("    s_waitcnt vmcnt(3)")
        valid(vMa, "L_fin")
        check(vMa)
        e(f"    s_sub_u32 s{sJ}, s{sJ}, 1")
        e("    s_waitcnt vmcnt(3)")
        e("    s_cbranch_scc0 L_poll")
    else:
        e("    s_waitcnt vmcnt(1)")
        e("L_poll:")
        valid(vMa, "L_fin")
        check(vMa)
        e(f"    s_sub_u32 s{sJ}, s{sJ}, 1")
        e("    s_waitcnt vmcnt(0)")
        e("    s_cbranch_scc0 L_poll")
    e(f"    s_add_u32 s{sWs}, s{sWs}, 0x80000")
    e(f"    s_addc_u32 s{sWs+1}, s{sWs+1}, 0")
    e(f"    global_store_dwordx4 v{vSl}, {r(vOwn,4)}, s[{sWs}:{sWs+1}] sc1")
    e(f"    s_lshl_b32 s{sTmp}, s{sHead}, 2")
    e(f"    v_mov_b32 v{vX}, s{sTmp}")
    e(f"    v_mov_b32 v{vX+1}, 1")
    e("    s_mov_b64 exec, 1")
    e("    s_waitcnt vmcnt(0)")
    e(f"    global_atomic_add v{vT}, v{vX}, v{vX+1}, s[{sDbg}:{sDbg+1}] sc0")
    e("    s_waitcnt vmcnt(0)")
    e(f"    v_readfirstlane_b32 s{sTmp}, v{vT}")
    e("    s_mov_b64 exec, -1")
    e(f"    s_cmp_lg_u32 s{sTmp}, 3")
    e(f"    s_cbranch_scc1 {'L_st' if stamp else 'L_end'}")
    check(vMa)
    e("    s_waitcnt vmcnt(0)")
    e("L_fin:")
    finish(vMa)
    if dpoll:
        e("L_finb:")
        finish(vMb)
    if stamp:
        e("L_st:")
        e(f"    s_memrealtime s[{sSt+4}:{sSt+5}]")
        e(f"    s_load_dwordx2 s[{sWs}:{sWs+1}], s[0:1], 64")
        e(f"    s_mov_b32 s{sSt+7}, s63")
        e(f"    s_getreg_b32 s{sSt+6}, hwreg(HW_REG_XCC_ID, 0, 4)")
        e(f"    s_getreg_b32 s{sTmp+1}, hwreg(HW_REG_HW_ID, 0, 24)")
        e(f"    s_lshl_b32 s{sTmp+1}, s{sTmp+1}, 8")
        e(f"    s_or_b32 s{sSt+6}, s{sSt+6}, s{sTmp+1}")
        e("    s_waitcnt vmcnt(0) lgkmcnt(0)")
        e(f"    s_lshl_b32 s{sTmp+2}, s2, 5")
        e(f"    s_add_u32 s{sTmp+2}, s{sTmp+2}, 0x1000000")
        e(f"    v_mov_b32 v{vP}, s{sTmp+2}")
        for i in range(8):
            e(f"    v_mov_b32 v{vQ+i}, s{sSt+i}")
        e("    s_mov_b64 exec, 1")
        e(f"    global_store_dwordx4 v{vP}, {r(vQ,4)}, s[{sWs}:{sWs+1}]")
        e(f"    global_store_dwordx4 v{vP}, {r(vQ+4,4)}, s[{sWs}:{sWs+1}] offset:16")
        e("    s_mov_b64 exec, -1")
        if stamp == 5:
            for k in range(3):
                e(f"    v_writelane_b32 v{vTr}, s{68+2*k}, {k}")
        if stamp in (2, 3, 5):
            e(f"    s_lshl_b32 s{sTmp+2}, s2, 8")
            e(f"    s_add_u32 s{sTmp+2}, s{sTmp+2}, 0x2000000")
            e(f"    v_lshlrev_b32 v{vP}, 2, v0")
            e(f"    v_add_u32 v{vP}, s{sTmp+2}, v{vP}")
            e(f"    global_store_dword v{vP}, v{vTr}, s[{sWs}:{sWs+1}]")
    if ms >= 0:
        e("L_pd:")
        e(f"    s_cmp_lg_u32 s2, {mwg}")
        e("    s_cbranch_scc1 L_end")
        e("    s_waitcnt lgkmcnt(0)")
        e(f"    s_sub_u32 s56, s56, s{sSt}")
        e(f"    s_sub_u32 s56, s56, {msb}")
        e("    s_max_i32 s56, s56, 0")
        e("    s_min_i32 s56, s56, 2000")
        e("    s_mul_i32 s56, s56, 10")
        e("    s_add_u32 s56, s56, 8000")
        e("L_pad:")
        e(f"    s_memrealtime s[{sSt+2}:{sSt+3}]")
        e("    s_waitcnt lgkmcnt(0)")
        e(f"    s_sub_u32 s{sSt+2}, s{sSt+2}, s{sSt}")
        e(f"    s_cmp_lt_u32 s{sSt+2}, s56")
        e("    s_cbranch_scc1 L_pad")
    e("L_end:")
    e("    s_endpgm")
    if pfs:
        e("L_tail:")
        e(f"    .fill ({2048 * pfb + pfo} - (L_tail - L_pc)) / 4, 4, 0xbf810000   ; keeps the code prefetch inside .text")
    e('.section .rodata,"a"')
    e(".p2align 6")
    e(f".amdhsa_kernel {NAME}_kernel")
    e(f"  .amdhsa_next_free_vgpr {nv}")
    e(f"  .amdhsa_next_free_sgpr {nsg}")
    e(f"  .amdhsa_accum_offset {(nv+3)//4*4}")
    e("  .amdhsa_group_segment_fixed_size 0")
    e("  .amdhsa_kernarg_size 72")
    e("  .amdhsa_user_sgpr_count 2")
    e("  .amdhsa_user_sgpr_kernarg_segment_ptr 1")
    e("  .amdhsa_system_sgpr_workgroup_id_x 1")
    e("  .amdhsa_float_denorm_mode_32 3")
    e(".end_amdhsa_kernel")
    if stamp == 2:
        e(f"; meta waves={NWG} iters={2*iters} every=1 bytes={1 << 29}")
    return "\n".join(o) + "\n"


if __name__ == "__main__":
    for spec in sys.argv[1:]:
        name, _, kv = spec.partition(":")
        kw = {}
        for p in kv.split(","):
            if p:
                k, v = p.split("=")
                kw[k] = v.replace("+", " ") if k in ("fl", "map", "W", "duty", "xr", "offs", "inc", "mfl", "ramp") else int(v, 0)
        path = f"cdna_kernels/{NAME}.s" if name == "main" else f"var/{name}.s"
        open(path, "w").write(gen(**kw))
```

```python
import math, struct, sys
from gen1 import NAME, HEADER, f2u


def gen(W="20.21.22.24", duty="90909090", offs="0.20", inc="0.1.9", mp=5, mstr=4, mfl="glc",
        fl="nt", stamp=0, nk0=4, NI=28, pfs=1, ck1=28, kvb=2, NP=12, dpoll=1, vm=1, ramp="", gx=0, gth=8, ginc=1, glen=0, gd=2, g0=0, free=0, diag=0, pre=1, pfo=128, otl=0, gneg=0, k0=1, ms=-1, msb=0, mwg=0, stl=5, pfe=1, xc=1, defer=1, vt=1, dt=0, tpos=0, lean=0, near=0, refm=13,
        map="w3n6n4r0n1n2n3n0w4n5n7n8n9r1w1w2w5w6w7w0", xr="14w6", cmt=0):
    Ws = [int(x) for x in W.split(".")]
    NC = len(Ws)
    offs = [int(x) for x in offs.split(".")]
    inc = [int(x) for x in inc.split(".")]
    assert len(inc) == len(offs) + 1 and len(offs) <= 3 and offs == sorted(offs)
    NR, NWG, iters, gpi, ngrp = 32, 256, 32, 8, 256
    lds = (ngrp + 3) * 64
    toks = [map[i:i+2] for i in range(0, len(map), 2)]
    if len(toks) in (10, 16):
        toks = toks[:9] + ["n6", "n7", "n8", "n9"] + toks[9:]
    if len(toks) == 14:
        toks += [f"w{i}" for i in range(8) if f"w{i}" not in toks]
    pos = {t: 8 + i for i, t in enumerate(toks)}
    assert sorted(pos) == sorted(["r0", "r1"] + [f"w{i}" for i in range(8)] + [f"n{i}" for i in range(10)])
    assert free or all(t[0] == "w" for t in toks[14:])
    spl = [t for t in toks[:14] if t[0] == "w"]
    hdt = toks[14:]
    adr = spl
    if free:
        adr = [t for t in toks if t[0] == "w"]
        spl = ["w3", "w4"]
        hdt = ["w0", "w1", "w2", "w5", "w6", "w7"]
    hi = [pos[f"n{i}"] for i in range(5, 10)]
    himask = sum(1 << b for b in hi)
    xrs = [(int(t.split("w")[0]), int(t.split("w")[1])) for t in xr.split(".") if t]
    xrmask = sum(1 << p for p, _ in xrs)
    assert all(toks[p - 8][0] == "n" for p, _ in xrs)
    scatter = hi != sorted(hi)
    contiguous = hi == list(range(hi[0], hi[0] + 5)) and not xrs
    immm = 0xfff & ~xrmask

    def lowoff(n):
        return sum(((n >> i) & 1) << pos[f"n{i}"] for i in range(5))
    o = []
    e = o.append

    vOff, vVoff, vM1 = 1, 2, 3
    vTt, vT, vT2, vP, vPk, vL, vM, vMt = 4, 5, 6, 7, 8, 9, 10, 11
    vMask = 12
    vS = 16
    vB1, vB2 = 16, 20
    vA0, vA1 = 24, 28
    vQ = 32
    vSc = 48
    vM2, vM3 = 50, 51
    vSl, vOo = 52, 53
    vX = 54
    vSn = 56
    vLd, vMad, vMs, vMn = 72, 73, 74, 75
    vGad, vGs, vGn, vG = 76, 77, 78, 79
    vK = [[80, 81, 82], [83, 84, 85]]
    vVt = 86
    vR = 88
    nv = vR + 4 * NR
    vTr = nv
    if stamp in (2, 3, 5):
        nv += 1
    sR = 8
    sT2, sNx, sXr, sSp = 12, 13, 14, 15
    sOff, sHi, sC, sHead, sSplit, sJ, sIx, sMk = 16, 17, 18, 19, 20, 21, 22, 23
    sQp, sKp, sVp, sKtp, sVtp, sMp, sOutp, sDbg, sWs = 24, 26, 28, 30, 32, 34, 36, 38, 40
    sTmp = 42
    sMaskv, sAcc, sDuty, sMo = 48, 49, 50, 51
    sSt = 52
    sEx = 4
    sCell = [3, 6, 7]
    sMb = 64
    sEv = 66
    sGb, sGr, sGw = 94, 96, 97
    nsg = 100 if (stamp in (3, 5) or gx) else 76
    glen = glen or gx
    pst = [0]

    msn = [0]

    def mile():
        if msn[0] == ms:
            e("    s_memrealtime s[56:57]")
        msn[0] += 1

    def pstamp():
        mile()
        if stamp == 3:
            e(f"    s_memrealtime s[{68+2*pst[0]}:{69+2*pst[0]}]")
            pst[0] += 1

    def r(b, n):
        return f"v[{b}:{b+n-1}]"
    DPP = "row_mask:0xf bank_mask:0xf"

    def gather(dst, items, tmp):
        runs = []
        for wb, db in sorted(items):
            if runs and runs[-1][0] + runs[-1][2] == wb and runs[-1][1] + runs[-1][2] == db:
                runs[-1][2] += 1
            else:
                runs.append([wb, db, 1])
        for k, (wb, db, n) in enumerate(runs):
            t = dst if k == 0 else tmp
            e(f"    s_bfe_u32 s{t}, s2, {hex((n << 16) | wb)}")
            if db:
                e(f"    s_lshl_b32 s{t}, s{t}, {db}")
            if k:
                e(f"    s_xor_b32 s{dst}, s{dst}, s{t}")

    e(HEADER.rstrip())
    e(f"; @launch grid=({NWG},1,1) block=(64,1,1) lds={lds}")
    if cmt:
        e(open("notes.txt").read().rstrip())
    e('.amdgcn_target "amdgcn-amd-amdhsa--gfx950"')
    e(".text")
    e(f".globl {NAME}_kernel")
    e(".p2align 8")
    e(f".type {NAME}_kernel,@function")
    e(f"{NAME}_kernel:")
    if stamp or ms >= 0:
        e(f"    s_memrealtime s[{sSt}:{sSt+1}]")
    e(f"    s_load_dwordx16 s[{sQp}:{sQp+15}], s[0:1], 0")
    e(f"    s_load_dwordx2 s[{sWs}:{sWs+1}], s[0:1], 64")
    e(f"    s_cmp_ge_u32 s2, {NWG}")
    e("    s_cbranch_scc1 L_end")
    pfb = pfs if pfs >= 8 else 4 << pfs

    def prefetch():
        if not pfs:
            return 0
        e(f"    s_getpc_b64 s[{sTmp+4}:{sTmp+5}]")
        e("L_pc:")
        e(f"    s_mul_i32 s{sT2}, s{sAcc}, {64*pfb}")
        e(f"    v_mad_u32_u24 v{vMn}, v0, {pfb}, s{sT2}")
        e(f"    global_load_dword v{vSc}, v{vMn}, s[{sTmp+4}:{sTmp+5}] offset:{pfo}")
        return 1
    e(f"    s_lshr_b32 s{sAcc}, s2, 3")
    if pfe:
        prefetch()
    e("    ; head index, byte offset of this split inside a head, order mask")
    gather(sHead, [(int(t[1]), i) for i, t in enumerate(hdt)], sTmp)
    gather(sSp, [(int(t[1]), pos[t]) for t in adr], sTmp)
    if xrs:
        gather(sXr, [(w, p) for p, w in xrs], sTmp)
    e(f"    v_lshrrev_b32 v{vT}, 4, v0")
    e(f"    v_lshlrev_b32 v{vT}, 6, v{vT}")
    e(f"    v_and_b32 v{vT2}, 3, v0")
    e(f"    v_lshl_add_u32 v{vT}, v{vT2}, 4, v{vT}")
    if pos["r1"] == pos["r0"] + 1:
        e(f"    v_bfe_u32 v{vT2}, v0, 2, 2")
        e(f"    v_lshl_add_u32 v{vOff}, v{vT2}, {pos['r0']}, v{vT}")
    else:
        e(f"    v_bfe_u32 v{vT2}, v0, 2, 1")
        e(f"    v_lshl_add_u32 v{vOff}, v{vT2}, {pos['r0']}, v{vT}")
        e(f"    v_bfe_u32 v{vT2}, v0, 3, 1")
        e(f"    v_lshl_add_u32 v{vOff}, v{vT2}, {pos['r1']}, v{vOff}")
    e(f"    v_add_u32 v{vOff}, s{sSp}, v{vOff}")
    e(f"    s_lshl_b32 s{sTmp}, s{sHead}, 22" if not free else f"    s_mov_b32 s{sTmp}, 0")

    dl = sorted({(lowoff(i) & ~immm) ^ (lowoff(i + 1) & ~immm) for i in range(NR - 1)} - {0})
    xreg = {}
    if xc:
        for k, d in enumerate(dl):
            xreg[d] = 68 + k if stamp not in (3, 5) else 88 + k

    def reset_off():
        e(f"    s_mov_b32 s{sOff}, {'s%d' % sXr if xrs else 0}")
        if not contiguous:
            e(f"    s_mov_b32 s{sHi}, 0")
    if scatter:
        e(f"    s_mov_b32 s{sOff}, {'s%d' % sXr if xrs else 0}")
    else:
        reset_off()
    e(f"    s_mov_b32 s{sR+2}, {hex(1 << 28) if free else '0x400000'}")
    e(f"    s_mov_b32 s{sR+3}, 0x20000")
    def consts():
        for d, rg in xreg.items():
            e(f"    s_mov_b32 s{rg}, {hex(d)}")

    def small_addr():
        gather(sSplit, [(int(t[1]), i) for i, t in enumerate(spl)], sTmp + 1)
        e(f"    s_lshl_b32 s{sTmp+1}, s{sSplit}, 10")
        e(f"    s_lshl_b32 s{sTmp+2}, s{sHead}, 8")
        e(f"    s_lshl_b32 s{sTmp+3}, s{sHead}, 12")
        e(f"    v_lshlrev_b32 v{vMad}, 2, v0")
        e(f"    v_lshlrev_b32 v{vSl}, 4, v0")
        e(f"    v_and_b32 v{vVoff}, 0xf0, v{vSl}")
        e(f"    v_bfe_u32 v{vP}, v0, 4, 1")
        e(f"    v_lshl_add_u32 v{vOo}, v{vP}, 3, v{vVoff}       ; v_tree offset: (l&15)*16 + ((l>>4)&1)*8")
        e(f"    v_add_u32 v{vSl}, s{sTmp+1}, v{vSl}")
    if not lean:
        consts()
        small_addr()
    e("    s_waitcnt lgkmcnt(0)")
    pstamp()
    def touch():
        for k, p in enumerate((sQp, sWs) if dt else (sQp, sWs, sKtp, sVtp)):
            e(f"    s_load_dword s{58+k}, s[{p}:{p+1}], 0        ; starts the translation of this buffer's page")
        if stl & 8:
            e(f"    s_load_dword s62, s[{sVp}:{sVp+1}], s{sTmp}")
            e(f"    s_add_u32 s{sT2}, s{sTmp}, 0x200000")
            e(f"    s_load_dword s62, s[{sVp}:{sVp+1}], s{sT2}")
    if (stl & 5) == 1:
        touch()
    e(f"    s_add_u32 s{sR}, s{sKp}, s{sTmp}")
    e(f"    s_addc_u32 s{sR+1}, s{sKp+1}, 0")
    if stl & 2:
        e(f"    s_mov_b32 s{sT2}, 0x200000")
        e(f"    s_load_dword s62, s[{sR}:{sR+1}], s{sT2}")

    hruns = []
    for k, b in enumerate(hi):
        if hruns and hruns[-1][1] + hruns[-1][2] == b:
            hruns[-1][2] += 1
        else:
            hruns.append([k, b, 1])

    def load(i, first=False):
        lo = lowoff(i)
        e(f"    buffer_load_dwordx4 {r(vR+4*i,4)}, v{vOff}, s[{sR}:{sR+3}], s{sOff} offen offset:{lo & immm} {fl}")
        cur = lo & ~immm
        if first and i == 0 and lean:
            touch()
            consts()
        if i < NR - 1:
            d = cur ^ (lowoff(i + 1) & ~immm)
            if d:
                e(f"    s_xor_b32 s{sOff}, s{sOff}, {'s%d' % xreg[d] if d in xreg else hex(d)}")
            elif i % 4 == 3:
                e("    s_nop 0")
            if scatter and first:
                if i == 8:
                    e(f"    s_mov_b32 s{sHi}, 1")
                    e(f"    s_xor_b32 s{sNx}, {'s%d' % sXr if xrs else 0}, {hex(1 << hi[0])}")
            elif scatter and 8 <= i < 8 + len(hruns):
                cb, db, n = hruns[i - 8]
                if i == 8:
                    e(f"    s_add_u32 s{sHi}, s{sHi}, 1")
                e(f"    s_bfe_u32 s{sT2}, s{sHi}, {hex((n << 16) | cb)}")
                e(f"    s_lshl_b32 s{sT2}, s{sT2}, {db}")
                e(f"    s_xor_b32 s{sNx}, {('s%d' % sXr if xrs else 0) if i == 8 else 's%d' % sNx}, s{sT2}")
            if not scatter and not contiguous and i == 11:
                e(f"    s_or_b32 s{sHi}, s{sHi}, {hex(~himask & 0xffffffff)}")
                e(f"    s_add_u32 s{sHi}, s{sHi}, 1")
                e(f"    s_and_b32 s{sHi}, s{sHi}, {hex(himask)}")
        elif contiguous:
            e(f"    s_add_u32 s{sOff}, s{sOff}, {hex(((1 << hi[0]) - cur) & 0xffffffff)}")
        elif scatter:
            e(f"    s_mov_b32 s{sOff}, s{sNx}")
        elif xrs:
            e(f"    s_xor_b32 s{sOff}, s{sHi}, s{sXr}")
        else:
            e(f"    s_mov_b32 s{sOff}, s{sHi}")

    for i in range(nk0):
        load(i, True)
        if i == tpos and (stl & 5) == 5 and not lean:
            touch()
    if lean:
        assert nk0 >= 1 and (stl & 5) == 5
        small_addr()
    if ms == 10:
        e("    s_memrealtime s[56:57]")
    def tree_loads():
        for p in (sKtp, sVtp):
            e(f"    s_add_u32 s{p}, s{p}, s{sTmp+2}")
            e(f"    s_addc_u32 s{p+1}, s{p+1}, 0")
        e(f"    global_load_dword v{vA0}, v{vMad}, s[{sQp}:{sQp+1}]")
        e(f"    global_load_dword v{vA0+1}, v{vMad}, s[{sKtp}:{sKtp+1}]")
        e(f"    global_load_dwordx2 {r(vVt,2)}, v{vOo}, s[{sVtp}:{sVtp+1}]")

    def snap_loads(ks):
        for k in ks:
            a = (vM1, vM2, vM3, vSl)[k]
            if k < 3 and dt < 2:
                e(f"    v_xor_b32 v{a}, {hex(0x400*(k+1))}, v{vSl}")
            e(f"    global_load_dwordx4 {r(vSn+4*k,4)}, v{a}, s[{sWs}:{sWs+1}] sc1")

    e(f"    s_add_u32 s{sQp}, s{sQp}, s{sTmp+2}")
    e(f"    s_addc_u32 s{sQp+1}, s{sQp+1}, 0")
    e(f"    global_load_dwordx4 {r(vS,4)}, v{vT}, s[{sQp}:{sQp+1}]")
    nsmall = 2
    if not dt:
        e(f"    s_load_dword s{sMaskv}, s[{sMp}:{sMp+1}], 0")
    e(f"    s_getreg_b32 s{sIx}, hwreg(HW_REG_XCC_ID, 0, 3)")
    e(f"    s_mul_i32 s{sT2}, s{sIx}, {max(4096, 64*mstr)+256}")
    e(f"    s_add_u32 s{sT2}, s{sT2}, 0x40000")
    e(f"    s_add_u32 s{sMb}, s{sWs}, s{sT2}")
    e(f"    s_addc_u32 s{sMb+1}, s{sWs+1}, 0")
    if gx:
        e(f"    s_add_u32 s{sGb}, s{sWs}, 0x100000")
        e(f"    s_addc_u32 s{sGb+1}, s{sWs+1}, 0")
    assert mstr == 4
    e(f"    s_add_u32 s{sWs}, s{sWs}, s{sTmp+3}")
    e(f"    s_addc_u32 s{sWs+1}, s{sWs+1}, 0")
    e(f"    global_load_dword v{vMs}, v{vMad}, s[{sMb}:{sMb+1}] sc1")
    if not dt:
        tree_loads()
        nsmall += 3
    if dt < 2:
        snap_loads(range(4))
        nsmall += 4
    if gx:
        e(f"    s_mul_i32 s{sGr}, s{sAcc}, {refm}")
        e(f"    s_add_u32 s{sGr}, s{sGr}, 5")
        e(f"    s_and_b32 s{sGr}, s{sGr}, 31")
        e(f"    s_lshl_b32 s{sT2}, 1, s{sGr}")
        e(f"    v_mul_u32_u24 v{vGad}, 4352, v0")
        e(f"    s_mov_b32 exec_lo, s{sT2}")
        e(f"    s_mov_b32 exec_hi, s{sT2}")
        e(f"    global_load_dword v{vGs}, v{vGad}, s[{sGb}:{sGb+1}] sc1")
        e("    s_mov_b64 exec, -1")
        nsmall += 1
    if not pfe:
        nsmall += prefetch()
    if ms == 11:
        e("    s_memrealtime s[56:57]")
    for i in range(nk0, NI):
        load(i, True)
    pstamp()
    cs = (128 ** -0.5) * math.log2(math.e)

    def late_a():
        e(f"    s_lshl_b32 s{sTmp}, s{sHead}, 22" if not free else f"    s_mov_b32 s{sTmp}, 0")
        e(f"    s_lshl_b32 s{sTmp+2}, s{sHead}, 8")
        if dt:
            tree_loads()
            e(f"    s_mov_b32 s{sIx}, {NC-1}")
        e(f"    s_add_u32 s{sVp}, s{sVp}, s{sTmp}")
        e(f"    s_addc_u32 s{sVp+1}, s{sVp+1}, 0")
        e(f"    s_add_u32 s{sOutp}, s{sOutp}, s{sTmp+2}")
        e(f"    s_addc_u32 s{sOutp+1}, s{sOutp+1}, 0")
        e(f"    v_lshrrev_b32 v{vPk}, 5, v0")
        e(f"    v_lshl_add_u32 v{vOo}, v{vPk}, 2, v{vOo}        ; output offset")
        e(f"    v_lshl_add_u32 v{vVoff}, v{vPk}, {pos['r1']}, v{vVoff}")
        e(f"    v_bfe_u32 v{vPk}, v0, 4, 1")
        e(f"    v_lshl_add_u32 v{vVoff}, v{vPk}, {pos['r0']}, v{vVoff}")
        e(f"    v_add_u32 v{vVoff}, s{sSp}, v{vVoff}")
        e(f"    s_mov_b32 s{sC}, {hex(f2u(cs))}")
        e(f"    s_lshr_b32 s{sTmp}, s{sHead}, 5")
        e(f"    s_lshl_b32 s{sTmp}, s{sTmp}, 4")
        e("    s_waitcnt lgkmcnt(0)")
        e(f"    s_lshr_b32 s{sMaskv}, s{sMaskv}, s{sTmp}")
        e(f"    s_lshl_b32 s{sMaskv}, s{sMaskv}, 16")
        e(f"    v_sub_f32 v{vL}, s{sMaskv}, 1.0               ; mask - 1")
        e(f"    v_mul_f32 v{vL}, {hex(f2u(1e9*math.log2(math.e)))}, v{vL}   ; (1-mask)*-1e9*log2(e)")
        e(f"    s_cmp_eq_u32 s{sSplit}, 0")
        e(f"    s_cselect_b32 s{sTmp}, 0, 0xff800000")
        e(f"    v_add_f32 v{vL}, s{sTmp}, v{vL}")
        if vt & 1:
            e(f"    s_mov_b32 s{sTmp}, 0x200000")
            e(f"    s_load_dword s58, s[{sVp}:{sVp+1}], 0           ; start the translation of the V pages early")
            e(f"    s_load_dword s59, s[{sVp}:{sVp+1}], s{sTmp}")
        if vt & 4:
            e(f"    s_load_dword s62, s[{sOutp}:{sOutp+1}], 0")

    def late_b():
        if dt == 2:
            snap_loads((0, 1))
            e(f"    s_mov_b32 s{sIx}, {NC-1}")
        e(f"    v_and_b32 v{vP}, 1, v0")
        e(f"    v_lshlrev_b32 v{vP}, 4, v{vP}")
        e(f"    v_mov_b32 v{vPk}, 0xffff")
        e(f"    v_lshlrev_b32 v{vPk}, v{vP}, v{vPk}")
        e(f"    v_bfe_u32 v{vP}, v0, 1, 2")
        fill = [[f"    v_lshlrev_b32 v{vA1}, 16, v{vA0}", f"    v_lshlrev_b32 v{vA1+1}, 16, v{vA0+1}"],
                [f"    v_mul_f32 v{vTt}, v{vA1}, v{vA1+1}", f"    v_and_b32 v{vA1}, 0xffff0000, v{vA0}"],
                [f"    v_and_b32 v{vA1+1}, 0xffff0000, v{vA0+1}", f"    v_fmac_f32 v{vTt}, v{vA1}, v{vA1+1}"],
                [f"    v_lshlrev_b32 v{vA0}, 16, v{vVt}", f"    v_and_b32 v{vA0+1}, 0xffff0000, v{vVt}"]]
        for i in range(4):
            e(f"    v_cmp_eq_u32 vcc, {i}, v{vP}")
            for x in fill[i]:
                e(x)
            e(f"    v_cndmask_b32 v{vMask+i}, 0, v{vPk}, vcc")
        e(f"    v_lshlrev_b32 v{vA0+2}, 16, v{vVt+1}")
        e(f"    v_and_b32 v{vA0+3}, 0xffff0000, v{vVt+1}")

    def late_c():
        if dt == 2:
            snap_loads((2, 3))
            e(f"    s_mov_b32 s{sIx}, {NC-1}")
        for k, sh in enumerate((1, 2, 4, 8)):
            e(f"    v_add_f32_dpp v{vTt}, v{vTt}, v{vTt} row_ror:{sh} {DPP}")
            e(f"    v_mov_b32 v{vA1+k}, 0")
            if k < 3:
                e("    s_nop 0")
        for x in xrow(vTt, vP, "v_add_f32"):
            e(x)
        e(f"    v_fma_f32 v{vTt}, v{vTt}, s{sC}, v{vL}")
        if vt & 2:
            e(f"    v_and_b32 v{vP}, 0x200000, v{vVoff}")
            e(f"    global_load_dword v{vX+1}, v{vP}, s[{sVp}:{sVp+1}] nt")

    def xrow(reg, tmp, op):
        L = []
        for sw in ("v_permlane16_swap_b32", "v_permlane32_swap_b32"):
            L += [f"    v_mov_b32 v{tmp}, v{reg}", "    s_nop 1", f"    {sw} v{reg}, v{tmp}", "    s_nop 1",
                  f"    {op} v{reg}, v{reg}, v{tmp}"]
        return L

    if not defer:
        late_a()
    if dt:
        e(f"    s_load_dword s{sMaskv}, s[{sMp}:{sMp+1}], 0")
        e(f"    s_load_dword s60, s[{sKtp}:{sKtp+1}], 0        ; starts the translation of this buffer's page")
        e(f"    s_load_dword s61, s[{sVtp}:{sVtp+1}], 0")
    if dt == 2:
        for k, a in enumerate((vM1, vM2, vM3)):
            e(f"    v_xor_b32 v{a}, {hex(0x400*(k+1))}, v{vSl}")
    e(f"    v_mov_b32 v{vM}, 0xff800000")
    e(f"    v_and_b32 v{vLd}, 60, v0                      ; score slots: group*64 + (lane>>2)*4, slot 0 is a dummy")
    for i in range(4):
        e(f"    v_mov_b32 v{vS+4+i}, v{vM}                  ; 'previous group' of group 0")
    dv = [int(ch, 32) for ch in duty]
    if dv == dv[:2] * 4:
        e(f"    s_bitcmp1_b32 s{sIx}, 0")
        e(f"    s_cselect_b32 s{sDuty}, {dv[1]}, {dv[0]}")
    else:
        tab = sum(d << (5 * i) for i, d in enumerate(dv))
        e(f"    s_mov_b32 s{sTmp+2}, {hex(tab & 0xffffffff)}")
        e(f"    s_mov_b32 s{sTmp+3}, {hex(tab >> 32)}")
        e(f"    s_mul_i32 s{sTmp}, s{sIx}, 5")
        e(f"    s_lshr_b64 s[{sTmp+2}:{sTmp+3}], s[{sTmp+2}:{sTmp+3}], s{sTmp}")
        e(f"    s_and_b32 s{sDuty}, s{sTmp+2}, 31")
    e(f"    ; workgroup row r = wg>>3 publishes the markers of iterations ({refm}r+5)&31 and that + 32")
    e(f"    s_mul_i32 s{sTmp}, s{sAcc}, {refm}")
    e(f"    s_add_u32 s{sTmp}, s{sTmp}, 5")
    e(f"    s_and_b32 s{sTmp}, s{sTmp}, 31")
    e(f"    s_lshl_b64 s[{sEx}:{sEx+1}], 1, s{sTmp}")
    sites = []
    for k, of in enumerate(offs):
        d, st = divmod(mp + of, NR)
        e(f"    s_add_u32 s{sCell[k]}, s{sTmp}, {d}")
        sites.append((st, k))
    if gx:
        e(f"    s_lshr_b32 s{sTmp+1}, s{sGr}, {int(math.log2(gx))}")
        e(f"    s_mul_i32 s{sTmp+1}, s{sTmp+1}, 3")
        e(f"    s_xor_b32 s{sTmp+1}, s{sTmp+1}, s2")
        e(f"    s_and_b32 s{sTmp+2}, s{sGr}, {gx-1}")
        e(f"    s_cselect_b32 s{sGr}, 0x100, s{sGr}")
        e(f"    s_and_b32 s{sTmp+1}, s{sTmp+1}, 7")
        e(f"    s_cselect_b32 s{sGw}, 0x100, s{sGr}")
        if gneg:
            e(f"    s_cmp_eq_u32 s{sGr}, 0")
            e(f"    s_cselect_b32 s{sGr}, 32, s{sGr}")
        gdw = (mp - 1 + gth) // NR
        assert gdw in (0, -1)
        if gdw:
            e(f"    s_sub_u32 s{sGw}, s{sGw}, 1")
            e(f"    s_cselect_b32 s{sGw}, 31, s{sGw}")
    e(f"    s_and_b32 s{sAcc}, s{sAcc}, 15")
    e(f"    s_mov_b32 s{sJ}, 0")
    if not vm:
        e(f"    s_mov_b32 s{sMo}, 0")
    e(f"    s_mov_b32 s{sEv}, {2 if defer else iters-1}")
    if stamp:
        e("    s_mov_b32 s63, 0")
    lvl = [0, 1, 2, 4][:len(inc)]
    inctab = sum(min(v, 15) << (8 * l) for v, l in zip(inc, lvl) if l < 4)
    stubs = []

    def control(i, tag):
        for st, k in sites:
            if st == i:
                e(f"    s_cmp_eq_u32 s{sJ}, s{sCell[k]}")
                e(f"    s_cbranch_scc1 L_pub_{tag}_{k}")
                e(f"L_pubx_{tag}_{k}:")
                stubs.append((tag, k))
        if gx:
            for nm, st, reg in (("gr", mp - 1, sGr), ("gw", (mp - 1 + gth) % NR, sGw), ("ge", 30, sGr)):
                if st == i:
                    e(f"    s_cmp_eq_u32 s{sJ}, s{reg}")
                    e(f"    s_cbranch_scc1 L_pub_{tag}_{nm}")
                    e(f"L_pubx_{tag}_{nm}:")
                    stubs.append((tag, nm))
        if i == mp and not vm:
            e(f"    s_load_dword s{sMk}, s[{sMb}:{sMb+1}], s{sMo} {mfl}")
        if i == mp and vm:
            e(f"    global_load_dword v{vX}, v{vMad}, s[{sMb}:{sMb+1}] sc1          ; progress cells of this XCD")
        if i == 29 and vm:
            e(f"    v_readlane_b32 s{sMk}, v{vX}, s{sJ}")
        if i == 27:
            e(f"    v_readlane_b32 s{sTmp}, v{vMs}, s{sJ}")
            e(f"    s_add_u32 s{sAcc}, s{sAcc}, s{sDuty}")
            e(f"    s_lshr_b32 s{sIx}, s{sAcc}, 4")
            e(f"    s_and_b32 s{sAcc}, s{sAcc}, 15")
        if i == 28 and not vm:
            e(f"    s_add_u32 s{sMo}, s{sMo}, {mstr}")
        if i == (30 if vm else 29):
            e(f"    s_xor_b32 s{sTmp}, s{sTmp}, s{sMk}")
            if gx:
                e(f"    s_bitcmp1_b32 s{sTmp}, 16")
                e(f"    s_cselect_b32 s{sTmp+1}, {0 if gneg else ginc}, {ginc if gneg else 0}")
                e(f"    s_add_u32 s{sIx}, s{sIx}, s{sTmp+1}")
                if stamp:
                    e(f"    s_bfe_u32 s{sTmp+1}, s{sTmp}, 0x10010")
                    e(f"    s_add_u32 s63, s63, s{sTmp+1}")
                e(f"    s_and_b32 s{sTmp}, s{sTmp}, 0xffff")
            e(f"    s_bcnt1_i32_b32 s{sTmp}, s{sTmp}")
            if len(offs) == 3:
                e(f"    s_cmp_gt_u32 s{sTmp}, 16")
                e(f"    s_cselect_b32 s{sIx}, {NC-1}, s{sIx}")
        if i == 30:
            e(f"    s_lshr_b32 s{sTmp}, {hex(inctab)}, s{sTmp}")
            e(f"    s_and_b32 s{sTmp}, s{sTmp}, 15")
            e(f"    s_add_u32 s{sIx}, s{sIx}, s{sTmp}")
            if stamp and not gx:
                e(f"    s_min_u32 s{sIx}, s{sIx}, {NC-1}")
                e(f"    s_add_u32 s63, s63, s{sIx}")

    def dispatch(ph, order):
        for c in order[:-1]:
            e(f"    s_cmp_{'ge' if c == NC-1 else 'eq'}_u32 s{sIx}, {c}")
            e(f"    s_cbranch_scc1 L_{ph}{c}")
        e(f"    s_branch L_{ph}{order[-1]}")

    def endit(ph):
        e(f"    v_add_u32 v{vLd}, {64*gpi}, v{vLd}")
        e(f"    s_add_u32 s{sJ}, s{sJ}, 1")
        if ms == 13 and ph == "k":
            msn.append(0)
            e(f"    s_cmp_lg_u32 s{sJ}, 2")
            e(f"    s_cbranch_scc1 L_ms{len(msn)}")
            e("    s_memrealtime s[56:57]")
            e(f"L_ms{len(msn)}:")
        e(f"    s_cmp_eq_u32 s{sJ}, s{sEv}")
        e(f"    s_cbranch_scc1 L_{ph}ev")
        dispatch(ph, [1, 2, 0] + list(range(3, NC)) if NC > 3 else list(range(NC)))

    def tr():
        if stamp == 2:
            e("    s_waitcnt lgkmcnt(0)")
            e(f"    v_writelane_b32 v{vTr}, s60, m0")
            e("    s_add_u32 m0, m0, 1")
            e("    s_memrealtime s[60:61]")

    def fin_a(S):
        e(f"    v_mov_b32_dpp v{vT}, v{S} quad_perm:[0,0,0,0] {DPP}")
        e(f"    v_mov_b32_dpp v{vT2}, v{S+2} quad_perm:[2,2,2,2] {DPP}")

    def fin_b(S, off):
        e(f"    v_add_f32_dpp v{vT}, v{S+1}, v{vT} quad_perm:[1,1,1,1] {DPP}")
        e(f"    v_add_f32_dpp v{vT2}, v{S+3}, v{vT2} quad_perm:[3,3,3,3] {DPP}")
        e(f"    v_add_f32 v{vT}, v{vT}, v{vT2}")
        e(f"    v_max_f32 v{vM}, v{vM}, v{vT}")
        e(f"    ds_write_b32 v{vLd}, v{vT} offset:{off}")

    def qp(c):
        return f"quad_perm:[{c},{c},{c},{c}] {DPP}"

    def b1(g, vB1=vB1):
        k, c = vK[(g >> 2) & 1], g & 3
        e(f"    v_and_b32_dpp v{vB1}, v{k[0]}, v{vMask} {qp(c)}")
        e(f"    v_and_b32_dpp v{vB1+1}, v{k[0]}, v{vMask+1} {qp(c)}")
        e(f"    v_and_b32_dpp v{vB1+2}, v{k[1]}, v{vMask+2} {qp(c)}")
        e(f"    v_and_b32_dpp v{vB1+3}, v{k[1]}, v{vMask+3} {qp(c)}")

    def b2(g, vB2=vB2):
        k, c = vK[(g >> 2) & 1], g & 3
        e(f"    v_and_b32_dpp v{vB2}, v{k[2]}, v{vMask} {qp(c)}")
        e(f"    v_and_b32_dpp v{vB2+1}, v{k[2]}, v{vMask+1} {qp(c)}")
        e(f"    v_and_b32_dpp v{vB2+2}, v{k[0]}, v{vMask+2} {qp(c)}")
        e(f"    v_and_b32_dpp v{vB2+3}, v{k[0]}, v{vMask+3} {qp(c)}")

    def p_a():
        e(f"    v_fma_f32 v{vP}, v{vSc}, s{sC}, -v{vMt}")
        e(f"    v_exp_f32 v{vP}, v{vP}")

    def p_b(bt):
        e(f"    v_cvt_pk_bf16_f32 v{vK[bt][0]}, v{vP}, v{vP}")
        e(f"    v_add_f32 v{vL}, v{vL}, v{vP}")

    def p_c(bt):
        e(f"    v_mov_b32_dpp v{vK[bt][1]}, v{vK[bt][0]} row_ror:4 {DPP}")
        e(f"    v_mov_b32_dpp v{vK[bt][2]}, v{vK[bt][0]} row_ror:12 {DPP}")

    def pv(i, drain=False):
        u = i % 4
        A = vA0 if u % 2 == 0 else vA1
        Pm = vB1 if u < 2 else vB2
        if drain and pre and i >= 24:
            Pm = vR + 48 + 4 * ((i - 24) // 2)
        e(f"    v_mfma_f32_16x16x32_bf16 {r(A,4)}, {r(Pm,4)}, {r(vR+4*i,4)}, {r(A,4)}")

    def vwork(i, drain):
        g, u = divmod(i, 4)
        bt, j = divmod(i, 16)
        if drain and pre and i in (17, 19, 21, 23):
            k = (i - 17) // 2
            (b1, b2)[k & 1](6 + (k >> 1), vR + 48 + 4 * k)
        if u == 0 and not (drain and pre and g >= 6):
            b2(g)
        if u == 2 and not (drain and g >= (5 if pre else 7)):
            b1(g + 1)
        if drain and bt == 1:
            return
        if j == 1:
            p_a()
            if not drain:
                e(f"    ds_read_b32 v{vSc}, v{vLd} offset:{256*(bt+2)}")
        if j == 3:
            p_b(bt ^ 1)
        if j == 5:
            p_c(bt ^ 1)

    quad = [0, 2, 1, 3]
    pstamp()
    for j in range(NI, NR):
        need = j - NI
        e(f"    s_waitcnt vmcnt({NI-1+(nsmall if need < nk0 else 0)})")
        if ms == 12 and need == 0:
            e("    s_memrealtime s[56:57]")
        load(j, True)
    e(f"    v_bfe_u32 v{vT2}, v0, 2, 2")
    for u in range(4):
        e(f"    v_cmp_eq_u32 s[{sTmp+2*u if u < 3 else sMp}:{sTmp+2*u+1 if u < 3 else sMp+1}], {quad[u]}, v{vT2}")
    e(f"    s_waitcnt vmcnt({NR-nk0+nsmall-1})            ; q")
    pstamp()
    for u in range(4):
        for i in range(4):
            e(f"    v_cndmask_b32 v{vQ+4*u+i}, 0, v{vS+i}, s[{sTmp+2*u if u < 3 else sMp}:{sTmp+2*u+1 if u < 3 else sMp+1}]")
    if not defer:
        e(f"    s_waitcnt vmcnt({NR-nk0+nsmall-5})")
        late_b()
        late_c()
    e(f"    s_waitcnt vmcnt({min(NR-1, NR-nk0+nsmall-2) if nk0 == 0 else NR-nk0+nsmall-2})")
    e(f"    v_not_b32 v{vMn}, v{vMs}")
    pstamp()
    if stamp == 2:
        e(f"    v_mov_b32 v{vTr}, 0")
        e("    s_mov_b32 m0, 0")
        e("    s_memrealtime s[60:61]")
    if stamp == 3:
        e(f"    v_mov_b32 v{vTr}, 0")
        e("    s_waitcnt lgkmcnt(0)")
        for k in range(pst[0]):
            e(f"    v_writelane_b32 v{vTr}, s{68+2*k}, {k}")

    def wcount(i, Wn):
        if not vm:
            return Wn - 1
        n = Wn - 1 + (1 if mp < i < mp + Wn else 0)
        if i == 29:
            n = min(n, 29 - mp - 1)
        return n

    def kbody(c):
        e(f"L_k{c}:                                          ; K iteration, {Ws[c]} loads in flight")
        tr()
        for i in range(NR):
            g, u = divmod(i, 4)
            S = vS + 4 * (g & 1)
            Sp = vS + 4 * ((g + 1) & 1)
            cc = "0" if u == 0 else r(S, 4)
            e(f"    v_mfma_f32_16x16x32_bf16 {r(S,4)}, {r(vR+4*i,4)}, {r(vQ+4*u,4)}, {cc}")
            e(f"    s_waitcnt vmcnt({wcount(i, Ws[c])})" + (" lgkmcnt(0)" if i == 29 and not vm else ""))
            load(i)
            control(i, f"k{c}")
            if u == 1:
                fin_a(Sp)
            if u == 2:
                fin_b(Sp, 64 * g)
        endit("k")

    def vbody(c):
        e(f"L_v{c}:                                          ; V iteration, {Ws[c]} loads in flight")
        tr()
        for i in range(NR):
            pv(i)
            e(f"    s_waitcnt vmcnt({wcount(i, Ws[c])})" + (" lgkmcnt(0)" if i % 16 == 1 else ""))
            load(i)
            control(i, f"v{c}")
            vwork(i, False)
        endit("v")

    def put_stubs():
        for tag, k in stubs:
            e(f"L_pub_{tag}_{k}:")
            if k == "gr":
                e(f"    s_lshl_b64 exec, 1, s{sJ}")
                e(f"    global_load_dword v{vG}, v{vGad}, s[{sGb}:{sGb+1}] sc1")
                e("    s_mov_b64 exec, -1")
                e(f"    s_branch L_pubx_{tag}_{k}")
                continue
            if k == "gw":
                e(f"    v_not_b32 v{vGn}, v{vGs}")
                e(f"    s_lshl_b64 exec, {2 if gdw else 1}, s{sJ}")
                e(f"    global_store_dword v{vGad}, v{vGn}, s[{sGb}:{sGb+1}] sc1")
                e("    s_mov_b64 exec, -1")
                e(f"    s_add_u32 s{sGw}, s{sGw}, 32")
                e(f"    s_branch L_pubx_{tag}_{k}")
                continue
            if k == "ge":
                e(f"    v_cmp_ne_u32 vcc, v{vG}, v{vGs}")
                e(f"    s_add_u32 s{sGr}, s{sGr}, 32")
                e(f"    s_bitcmp1_b64 vcc, s{sJ}")
                e(f"    s_cbranch_scc{1 if gneg else 0} L_pubx_{tag}_{k}")
                e(f"    s_mov_b64 vcc, {((1 << glen) - 1) << gd}")
                e(f"    s_lshl_b64 exec, vcc, s{sJ}")
                e(f"    s_cbranch_scc0 L_pube_{tag}")
                e(f"    global_store_byte_d16_hi v{vMad}, v{vMn}, s[{sMb}:{sMb+1}] offset:2")
                e(f"L_pube_{tag}:")
                e("    s_mov_b64 exec, -1")
                e(f"    s_branch L_pubx_{tag}_{k}")
                continue
            e(f"    s_mov_b64 exec, s[{sEx}:{sEx+1}]")
            op = ("global_store_byte", "global_store_short", "global_store_dword")[k]
            e(f"    {op} v{vMad}, v{vMn}, s[{sMb}:{sMb+1}]              ; publish progress mark {k}")
            e("    s_mov_b64 exec, -1")
            e(f"    s_add_u32 s{sCell[k]}, s{sCell[k]}, 32")
            if k == len(offs) - 1:
                e(f"    s_lshl_b64 s[{sEx}:{sEx+1}], s[{sEx}:{sEx+1}], 32")
            e(f"    s_branch L_pubx_{tag}_{k}")
        stubs.clear()

    korder = [k0] + [c for c in range(NC) if c != k0]
    for c in korder:
        kbody(c)
        put_stubs()
    e("L_kev:")
    e(f"    s_cmp_eq_u32 s{sJ}, {iters}")
    e("    s_cbranch_scc1 L_kdone")
    if defer:
        e("    ; one-time set-up for the V phase, in three small pieces between K iterations")
        for k, (fn, nxt) in enumerate(((late_a, 4), (late_b, 6), (late_c, iters - 1))):
            e(f"    s_cmp_lg_u32 s{sJ}, {2+2*k}")
            e(f"    s_cbranch_scc1 L_late{k}")
            fn()
            e(f"    s_mov_b32 s{sEv}, {nxt}")
            e("    s_branch L_kn")
            e(f"L_late{k}:")
    e(f"    s_mov_b32 s{sR}, s{sVp}")
    e(f"    s_mov_b32 s{sR+1}, s{sVp+1}")
    reset_off()
    e(f"    v_mov_b32 v{vOff}, v{vVoff}")
    e(f"    s_mov_b32 s{sEv}, {iters}")
    if otl == 1:
        e(f"    global_load_dword v{vX+1}, v{vOo}, s[{sOutp}:{sOutp+1}]      ; warms the translation of the output page; value unused")
    e(f"    v_and_b32 v{vPk}, 3, v0")
    e(f"    v_and_b32 v{vP}, 60, v0")
    e(f"    v_lshl_add_u32 v{vPk}, v{vPk}, 6, v{vP}")
    e(f"    v_add_u32 v{vPk}, 64, v{vPk}")
    if kvb > 0:
        e(f"    s_max_u32 s{sIx}, s{sIx}, {kvb}")
    e("L_kn:")
    dispatch("k", list(range(NC)))
    e("L_kdone:")
    mile()
    Sl = vS + 4 * ((gpi - 1) & 1)
    e("    ; V phase reads the scores one key per lane: group 4*batch + (l&3), slot l>>2")
    e(f"    ds_read_b32 v{vSc}, v{vPk}")
    e(f"    ds_read_b32 v{vSc+1}, v{vPk} offset:256")
    fin_a(Sl)
    e(f"    s_mov_b32 s{sEv}, {2*iters-1-(1 if ramp else 0)}")
    fin_b(Sl, 0)
    e(f"    v_mov_b32 v{vLd}, v{vPk}")
    e(f"    v_max_f32_dpp v{vM}, v{vM}, v{vM} row_ror:4 {DPP}")
    e("    s_nop 1")
    e(f"    v_max_f32_dpp v{vM}, v{vM}, v{vM} row_ror:8 {DPP}")
    for x in xrow(vM, vT, "v_max_f32"):
        e(x)
    e(f"    v_mul_f32 v{vMt}, s{sC}, v{vM}")
    e(f"    v_max_f32 v{vMt}, v{vMt}, v{vTt}")
    e(f"    v_and_b32 v{vMt}, -2, v{vMt}")
    e("    s_waitcnt lgkmcnt(0)")
    e(f"    v_sub_f32 v{vTt}, v{vTt}, v{vMt}")
    e(f"    v_exp_f32 v{vTt}, v{vTt}")
    p_a()
    e(f"    v_mul_f32 v{vL}, 0x3c800000, v{vTt}")
    p_b(0)
    e(f"    v_mov_b32 v{vSc}, v{vSc+1}")
    p_c(0)
    for i in range(4):
        e(f"    v_mul_f32 v{vA0+i}, v{vA0+i}, v{vTt}")
    b1(0)
    dispatch("v", list(range(NC)))
    for c in range(NC):
        vbody(c)
        put_stubs()

    vMa = vQ
    vMb = vR + 32
    vOwn = vQ + 12

    def check(d):
        for k, a in enumerate((vM1, vM2, vM3)):
            e(f"    global_load_dwordx4 {r(d+4*k,4)}, v{a}, s[{sWs}:{sWs+1}] sc1")

    def valid(d, target):
        e(f"    v_bitop3_b32 v{vT}, 1, v{d+1}, v{vSn+1} bitop3:0x60      ; a & (b ^ c): tag bit flipped since entry?")
        for k in range(1, 6):
            e(f"    v_bitop3_b32 v{vT}, v{vT}, v{d+1+2*k}, v{vSn+1+2*k} bitop3:0x60")
        e(f"    v_cmp_eq_u32 vcc, 0, v{vT}")
        e(f"    s_cbranch_vccz {target}")

    def finish(d):
        P = [vOwn, d, d + 4, d + 8]
        Wt = vA0
        T = vR
        if diag & 2:
            e(f"    v_add_f32 v{T}, v{P[0]}, v{P[1]}")
            e(f"    v_add_f32 v{T+1}, v{P[2]}, v{P[3]}")
            e(f"    v_add_f32 v{T+2}, v{P[0]+2}, v{P[1]+2}")
            e(f"    v_add_f32 v{T+3}, v{P[2]+2}, v{P[3]+2}")
            e(f"    v_add_f32 v{T}, v{T}, v{T+1}")
            e(f"    v_add_f32 v{T+2}, v{T+2}, v{T+3}")
            e(f"    v_cvt_pk_bf16_f32 v{T}, v{T}, v{T+2}")
            e(f"    global_store_dword v{vOo}, v{T}, s[{sOutp}:{sOutp+1}]")
            e("    s_endpgm")
            return
        if stamp == 5:
            e("    s_memrealtime s[70:71]")
        for k in range(3):
            e(f"    v_and_b32 v{d+1+4*k}, -2, v{d+1+4*k}")
        e(f"    v_max3_f32 v{vM}, v{vMt}, v{d+1}, v{d+5}")
        e(f"    v_max_f32 v{vM}, v{vM}, v{d+9}")
        for k in range(4):
            e(f"    v_sub_f32 v{Wt+k}, v{vMt if k == 0 else P[k]+1}, v{vM}")
        for k in range(4):
            e(f"    v_exp_f32 v{Wt+k}, v{Wt+k}")
        for k in range(4):
            e(f"    v_and_b32 v{P[k]+3}, -2, v{P[k]+3}")
        for k in range(4):
            sel = "op_sel_hi:[1,0]" if k % 2 == 0 else "op_sel:[0,1] op_sel_hi:[1,1]"
            e(f"    v_pk_mul_f32 {r(T+2*k,2)}, {r(P[k]+2,2)}, {r(Wt+(k&2),2)} {sel}")
        e(f"    v_pk_add_f32 {r(T,2)}, {r(T,2)}, {r(T+2,2)}")
        e(f"    v_pk_add_f32 {r(T+4,2)}, {r(T+4,2)}, {r(T+6,2)}")
        e(f"    v_pk_add_f32 {r(T,2)}, {r(T,2)}, {r(T+4,2)}")
        e(f"    v_rcp_f32 v{vL}, v{T+1}")
        for k in range(4):
            e(f"    v_mul_f32 v{T+8+k}, v{Wt+k}, v{P[k]}")
        e(f"    v_add_f32 v{T+8}, v{T+8}, v{T+9}")
        e(f"    v_add_f32 v{T+10}, v{T+10}, v{T+11}")
        e(f"    v_mul_f32 v{T}, v{T}, v{vL}")
        e(f"    v_add_f32 v{T+8}, v{T+8}, v{T+10}")
        e(f"    v_mul_f32 v{T+8}, v{T+8}, v{vL}")
        e(f"    v_cvt_pk_bf16_f32 v{T}, v{T+8}, v{T}")
        e(f"    global_store_dword v{vOo}, v{T}, s[{sOutp}:{sOutp+1}]")
        if stamp == 5:
            e("    s_memrealtime s[72:73]")
        if stamp:
            e("    s_waitcnt vmcnt(0)")
            e("    s_branch L_st")
        elif ms >= 0:
            e("    s_branch L_pd")
        else:
            e("    s_endpgm")

    e("L_vev:")
    mile()
    if ramp:
        w0, w1, st0 = [int(x) for x in ramp.split(".")]
        tr()
        for i in range(NR):
            pv(i)
            wn = w0 if i < st0 else min(w1, int(round(w0 + (w1 - w0) * (i - st0 + 1) / (NR - st0))))
            e(f"    s_waitcnt vmcnt({wn-1})" + (" lgkmcnt(0)" if i % 16 == 1 else ""))
            load(i)
            vwork(i, False)
        e(f"    v_add_u32 v{vLd}, {64*gpi}, v{vLd}")
    if otl == 2:
        e(f"    global_load_dword v{vX+1}, v{vOo}, s[{sOutp}:{sOutp+1}]      ; warms the translation of the output page; value unused")
    e(f"    v_not_b32 v{vSn+13}, v{vSn+13}")
    e(f"    v_not_b32 v{vSn+15}, v{vSn+15}")
    e(f"    v_and_or_b32 v{vOwn+1}, v{vSn+13}, 1, v{vMt}")
    tr()
    if ck1 == 0:
        check(vMa)
    red = [[f"    v_add_f32_dpp v{vL}, v{vL}, v{vL} row_ror:{sh} {DPP}"] for sh in (1, 2, 4, 8)]
    for sw in ("v_permlane16_swap_b32", "v_permlane32_swap_b32"):
        red += [[f"    v_mov_b32 v{vT}, v{vL}"], [f"    {sw} v{vL}, v{vT}"], [f"    v_add_f32 v{vL}, v{vL}, v{vT}"]]
    red += [[f"    v_and_b32 v{vL}, -2, v{vL}", f"    v_and_or_b32 v{vOwn+3}, v{vSn+15}, 1, v{vL}"]]
    Wmax = max(Ws) if not ramp else NR
    for i in range(NR):
        n = NR - 1 - i + (3 if i >= ck1 else 0) + (1 if otl == 2 else 0)
        if i == 1 or NR - 1 - i < Wmax or i >= 6:
            e(f"    s_waitcnt vmcnt({n})" + (" lgkmcnt(0)" if i == 1 else ""))
        pv(i, True)
        if i == ck1 - 1:
            check(vMa)
        if i >= 6 and red:
            for x in red.pop(0):
                e(x)
        vwork(i, True)
    assert not red
    mile()
    if stamp:
        e(f"    s_memrealtime s[{sSt+2}:{sSt+3}]")
    if dpoll:
        check(vMb)
        e(f"    s_mov_b32 s{sJ}, {NP}")
        e("    s_nop 1")
    else:
        e(f"    s_mov_b32 s{sJ}, {NP}")
        e("    s_nop 4")
    e(f"    v_permlane32_swap_b32 v{vA0}, v{vA0+2}")
    e(f"    v_permlane32_swap_b32 v{vA0+1}, v{vA0+3}")
    e(f"    v_permlane32_swap_b32 v{vA1}, v{vA1+2}")
    e(f"    v_permlane32_swap_b32 v{vA1+1}, v{vA1+3}")
    e("    s_nop 0")
    e(f"    v_add_f32 v{vOwn}, v{vA0}, v{vA1+2}")
    e(f"    v_add_f32 v{vOwn+2}, v{vA0+1}, v{vA1+3}")
    if diag & 16:
        e("    s_endpgm")
    if diag & 32:
        e(f"    global_store_dword v{vOo}, v{vOwn}, s[{sOutp}:{sOutp+1}]")
        e("    s_endpgm")
    e("    ; fast path: plain store, seen at once by workgroups that share this L2; bounded number of looks")
    e(f"    global_store_dwordx4 v{vSl}, {r(vOwn,4)}, s[{sWs}:{sWs+1}]")
    if diag & 8:
        e("    s_endpgm")
    if stamp == 5:
        e("    s_memrealtime s[68:69]")
    if dpoll:
        e("    s_waitcnt vmcnt(4)")
        valid(vMa, "L_fin")
        check(vMa)
        e("    s_waitcnt vmcnt(4)")
        e("L_poll:")
        valid(vMb, "L_finb")
        if diag & 4:
            e("    s_waitcnt vmcnt(0)")
            valid(vMa, "L_fin")
            check(vMa)
            e("    s_waitcnt vmcnt(0)")
            valid(vMa, "L_fin")
            e("    s_endpgm")
        check(vMb)
        e("    s_waitcnt vmcnt(3)")
        valid(vMa, "L_fin")
        check(vMa)
        e(f"    s_sub_u32 s{sJ}, s{sJ}, 1")
        e("    s_waitcnt vmcnt(3)")
        e("    s_cbranch_scc0 L_poll")
    else:
        e("    s_waitcnt vmcnt(1)")
        e("L_poll:")
        valid(vMa, "L_fin")
        check(vMa)
        e(f"    s_sub_u32 s{sJ}, s{sJ}, 1")
        e("    s_waitcnt vmcnt(0)")
        e("    s_cbranch_scc0 L_poll")
    def slow():
        e("    ; placement-independent path: write-through copy, then count; whoever counts last finishes the head")
        e(f"    s_add_u32 s{sWs}, s{sWs}, 0x80000")
        e(f"    s_addc_u32 s{sWs+1}, s{sWs+1}, 0")
        e(f"    global_store_dwordx4 v{vSl}, {r(vOwn,4)}, s[{sWs}:{sWs+1}] sc1")
        e(f"    s_lshl_b32 s{sTmp}, s{sHead}, 2")
        e(f"    v_mov_b32 v{vX}, s{sTmp}")
        e(f"    v_mov_b32 v{vX+1}, 1")
        e("    s_mov_b64 exec, 1")
        e("    s_waitcnt vmcnt(0)")
        e(f"    global_atomic_add v{vT}, v{vX}, v{vX+1}, s[{sDbg}:{sDbg+1}] sc0")
        e("    s_waitcnt vmcnt(0)")
        e(f"    v_readfirstlane_b32 s{sTmp}, v{vT}")
        e("    s_mov_b64 exec, -1")
        e(f"    s_cmp_lg_u32 s{sTmp}, 3")
        e(f"    s_cbranch_scc1 {'L_st' if stamp else 'L_end'}")
        check(vMa)
        e("    s_waitcnt vmcnt(0)")

    def fins():
        e("; ---- merge of the four partials (tags masked off), normalise, store bf16")
        e("L_fin:")
        finish(vMa)
        if dpoll:
            e("L_finb:")
            finish(vMb)

    if near:
        e("    s_branch L_slow")
        fins()
        e("L_slow:")
        slow()
        e("    s_branch L_fin")
    else:
        slow()
        fins()
    if stamp:
        e("L_st:")
        e(f"    s_memrealtime s[{sSt+4}:{sSt+5}]")
        e(f"    s_load_dwordx2 s[{sWs}:{sWs+1}], s[0:1], 64")
        e(f"    s_mov_b32 s{sSt+7}, s63")
        e(f"    s_getreg_b32 s{sSt+6}, hwreg(HW_REG_XCC_ID, 0, 4)")
        e(f"    s_getreg_b32 s{sTmp+1}, hwreg(HW_REG_HW_ID, 0, 24)")
        e(f"    s_lshl_b32 s{sTmp+1}, s{sTmp+1}, 8")
        e(f"    s_or_b32 s{sSt+6}, s{sSt+6}, s{sTmp+1}")
        e("    s_waitcnt vmcnt(0) lgkmcnt(0)")
        e(f"    s_lshl_b32 s{sTmp+2}, s2, 5")
        e(f"    s_add_u32 s{sTmp+2}, s{sTmp+2}, 0x1000000")
        e(f"    v_mov_b32 v{vP}, s{sTmp+2}")
        for i in range(8):
            e(f"    v_mov_b32 v{vQ+i}, s{sSt+i}")
        e("    s_mov_b64 exec, 1")
        e(f"    global_store_dwordx4 v{vP}, {r(vQ,4)}, s[{sWs}:{sWs+1}]")
        e(f"    global_store_dwordx4 v{vP}, {r(vQ+4,4)}, s[{sWs}:{sWs+1}] offset:16")
        e("    s_mov_b64 exec, -1")
        if stamp == 5:
            for k in range(3):
                e(f"    v_writelane_b32 v{vTr}, s{68+2*k}, {k}")
        if stamp in (2, 3, 5):
            e(f"    s_lshl_b32 s{sTmp+2}, s2, 8")
            e(f"    s_add_u32 s{sTmp+2}, s{sTmp+2}, 0x2000000")
            e(f"    v_lshlrev_b32 v{vP}, 2, v0")
            e(f"    v_add_u32 v{vP}, s{sTmp+2}, v{vP}")
            e(f"    global_store_dword v{vP}, v{vTr}, s[{sWs}:{sWs+1}]")
    if ms >= 0:
        e("L_pd:")
        e(f"    s_cmp_lg_u32 s2, {mwg}")
        e("    s_cbranch_scc1 L_end")
        e("    s_waitcnt lgkmcnt(0)")
        e(f"    s_sub_u32 s56, s56, s{sSt}")
        e(f"    s_sub_u32 s56, s56, {msb}")
        e("    s_max_i32 s56, s56, 0")
        e("    s_min_i32 s56, s56, 2000")
        e("    s_mul_i32 s56, s56, 10")
        e("    s_add_u32 s56, s56, 8000")
        e("L_pad:")
        e(f"    s_memrealtime s[{sSt+2}:{sSt+3}]")
        e("    s_waitcnt lgkmcnt(0)")
        e(f"    s_sub_u32 s{sSt+2}, s{sSt+2}, s{sSt}")
        e(f"    s_cmp_lt_u32 s{sSt+2}, s56")
        e("    s_cbranch_scc1 L_pad")
    e("L_end:")
    e("    s_endpgm")
    if pfs:
        e("L_tail:")
        e(f"    .fill ({2048 * pfb + pfo} - (L_tail - L_pc)) / 4, 4, 0xbf810000   ; keeps the code prefetch inside .text")
    e('.section .rodata,"a"')
    e(".p2align 6")
    e(f".amdhsa_kernel {NAME}_kernel")
    e(f"  .amdhsa_next_free_vgpr {nv}")
    e(f"  .amdhsa_next_free_sgpr {nsg}")
    e(f"  .amdhsa_accum_offset {(nv+3)//4*4}")
    e("  .amdhsa_group_segment_fixed_size 0")
    e("  .amdhsa_kernarg_size 72")
    e("  .amdhsa_user_sgpr_count 2")
    e("  .amdhsa_user_sgpr_kernarg_segment_ptr 1")
    e("  .amdhsa_system_sgpr_workgroup_id_x 1")
    e("  .amdhsa_float_denorm_mode_32 3")
    e(".end_amdhsa_kernel")
    if stamp == 2:
        e(f"; meta waves={NWG} iters={2*iters} every=1 bytes={1 << 29}")
    return "\n".join(o) + "\n"


if __name__ == "__main__":
    for spec in sys.argv[1:]:
        name, _, kv = spec.partition(":")
        kw = {}
        for p in kv.split(","):
            if p:
                k, v = p.split("=")
                kw[k] = v.replace("+", " ") if k in ("fl", "map", "W", "duty", "xr", "offs", "inc", "mfl", "ramp") else int(v, 0)
        path = f"cdna_kernels/{NAME}.s" if name == "main" else f"var/{name}.s"
        open(path, "w").write(gen(**kw))
```

```python
import math, struct, sys
from gen1 import NAME, HEADER, f2u


def gen(W="20.21.22.24", duty="90909090", offs="0.20", inc="0.1.9", mp=5, mstr=4, mfl="glc",
        fl="nt", stamp=0, nk0=4, NI=28, pfs=1, ck1=28, kvb=2, NP=12, dpoll=1, vm=1, ramp="", gx=0, gth=8, ginc=1, glen=0, gd=2, g0=0, free=0, diag=0, pre=1, pfo=128, otl=0, gneg=0, k0=1, ms=-1, msb=0, mwg=0, stl=5, pfe=1, xc=1, defer=1, vt=1, dt=0, tpos=0, lean=0, near=0, refm=13,
        map="w3n6n4r0n1n2n3n0w4n5n7n8n9r1w1w2w5w6w7w0", xr="14w6", cmt=0):
    Ws = [int(x) for x in W.split(".")]
    NC = len(Ws)
    offs = [int(x) for x in offs.split(".")]
    inc = [int(x) for x in inc.split(".")]
    assert len(inc) == len(offs) + 1 and len(offs) <= 3 and offs == sorted(offs)
    NR, NWG, iters, gpi, ngrp = 32, 256, 32, 8, 256
    lds = (ngrp + 3) * 64
    toks = [map[i:i+2] for i in range(0, len(map), 2)]
    if len(toks) in (10, 16):
        toks = toks[:9] + ["n6", "n7", "n8", "n9"] + toks[9:]
    if len(toks) == 14:
        toks += [f"w{i}" for i in range(8) if f"w{i}" not in toks]
    pos = {t: 8 + i for i, t in enumerate(toks)}
    assert sorted(pos) == sorted(["r0", "r1"] + [f"w{i}" for i in range(8)] + [f"n{i}" for i in range(10)])
    assert free or all(t[0] == "w" for t in toks[14:])
    spl = [t for t in toks[:14] if t[0] == "w"]
    hdt = toks[14:]
    adr = spl
    if free:
        adr = [t for t in toks if t[0] == "w"]
        spl = ["w3", "w4"]
        hdt = ["w0", "w1", "w2", "w5", "w6", "w7"]
    hi = [pos[f"n{i}"] for i in range(5, 10)]
    himask = sum(1 << b for b in hi)
    xrs = [(int(t.split("w")[0]), int(t.split("w")[1])) for t in xr.split(".") if t]
    xrmask = sum(1 << p for p, _ in xrs)
    assert all(toks[p - 8][0] == "n" for p, _ in xrs)
    scatter = hi != sorted(hi)
    contiguous = hi == list(range(hi[0], hi[0] + 5)) and not xrs
    immm = 0xfff & ~xrmask

    def lowoff(n):
        return sum(((n >> i) & 1) << pos[f"n{i}"] for i in range(5))
    o = []
    e = o.append

    vOff, vVoff, vM1 = 1, 2, 3
    vTt, vT, vT2, vP, vPk, vL, vM, vMt = 4, 5, 6, 7, 8, 9, 10, 11
    vMask = 12
    vS = 16
    vB1, vB2 = 16, 20
    vA0, vA1 = 24, 28
    vQ = 32
    vSc = 48
    vM2, vM3 = 50, 51
    vSl, vOo = 52, 53
    vX = 54
    vSn = 56
    vLd, vMad, vMs, vMn = 72, 73, 74, 75
    vGad, vGs, vGn, vG = 76, 77, 78, 79
    vK = [[80, 81, 82], [83, 84, 85]]
    vVt = 86
    vR = 88
    nv = vR + 4 * NR
    vTr = nv
    if stamp in (2, 3, 5):
        nv += 1
    sR = 8
    sT2, sNx, sXr, sSp = 12, 13, 14, 15
    sOff, sHi, sC, sHead, sSplit, sJ, sIx, sMk = 16, 17, 18, 19, 20, 21, 22, 23
    sQp, sKp, sVp, sKtp, sVtp, sMp, sOutp, sDbg, sWs = 24, 26, 28, 30, 32, 34, 36, 38, 40
    sTmp = 42
    sMaskv, sAcc, sDuty, sMo = 48, 49, 50, 51
    sSt = 52
    sEx = 4
    sCell = [3, 6, 7]
    sMb = 64
    sEv = 66
    sGb, sGr, sGw = 94, 96, 97
    nsg = 100 if (stamp in (3, 5) or gx) else 76
    glen = glen or gx
    pst = [0]

    msn = [0]

    def mile():
        if msn[0] == ms:
            e("    s_memrealtime s[56:57]")
        msn[0] += 1

    def pstamp():
        mile()
        if stamp == 3:
            e(f"    s_memrealtime s[{68+2*pst[0]}:{69+2*pst[0]}]")
            pst[0] += 1

    def r(b, n):
        return f"v[{b}:{b+n-1}]"
    DPP = "row_mask:0xf bank_mask:0xf"

    def gather(dst, items, tmp):
        runs = []
        for wb, db in sorted(items):
            if runs and runs[-1][0] + runs[-1][2] == wb and runs[-1][1] + runs[-1][2] == db:
                runs[-1][2] += 1
            else:
                runs.append([wb, db, 1])
        for k, (wb, db, n) in enumerate(runs):
            t = dst if k == 0 else tmp
            e(f"    s_bfe_u32 s{t}, s2, {hex((n << 16) | wb)}")
            if db:
                e(f"    s_lshl_b32 s{t}, s{t}, {db}")
            if k:
                e(f"    s_xor_b32 s{dst}, s{dst}, s{t}")

    e(HEADER.rstrip())
    e(f"; @launch grid=({NWG},1,1) block=(64,1,1) lds={lds}")
    if cmt:
        e(open("notes.txt").read().rstrip())
    e('.amdgcn_target "amdgcn-amd-amdhsa--gfx950"')
    e(".text")
    e(f".globl {NAME}_kernel")
    e(".p2align 8")
    e(f".type {NAME}_kernel,@function")
    e(f"{NAME}_kernel:")
    if stamp or ms >= 0:
        e(f"    s_memrealtime s[{sSt}:{sSt+1}]")
    e(f"    s_load_dwordx16 s[{sQp}:{sQp+15}], s[0:1], 0")
    e(f"    s_load_dwordx2 s[{sWs}:{sWs+1}], s[0:1], 64")
    e(f"    s_cmp_ge_u32 s2, {NWG}")
    e("    s_cbranch_scc1 L_end")
    pfb = pfs if pfs >= 8 else 4 << pfs

    def prefetch():
        if not pfs:
            return 0
        e(f"    s_getpc_b64 s[{sTmp+4}:{sTmp+5}]")
        e("L_pc:")
        e(f"    s_mul_i32 s{sT2}, s{sAcc}, {64*pfb}")
        e(f"    v_mad_u32_u24 v{vMn}, v0, {pfb}, s{sT2}")
        e(f"    global_load_dword v{vSc}, v{vMn}, s[{sTmp+4}:{sTmp+5}] offset:{pfo}")
        return 1
    e(f"    s_lshr_b32 s{sAcc}, s2, 3")
    if pfe:
        prefetch()
    e("    ; head index, byte offset of this split inside a head, order mask")
    gather(sHead, [(int(t[1]), i) for i, t in enumerate(hdt)], sTmp)
    gather(sSp, [(int(t[1]), pos[t]) for t in adr], sTmp)
    if xrs:
        gather(sXr, [(w, p) for p, w in xrs], sTmp)
    e(f"    v_lshrrev_b32 v{vT}, 4, v0")
    e(f"    v_lshlrev_b32 v{vT}, 6, v{vT}")
    e(f"    v_and_b32 v{vT2}, 3, v0")
    e(f"    v_lshl_add_u32 v{vT}, v{vT2}, 4, v{vT}")
    if pos["r1"] == pos["r0"] + 1:
        e(f"    v_bfe_u32 v{vT2}, v0, 2, 2")
        e(f"    v_lshl_add_u32 v{vOff}, v{vT2}, {pos['r0']}, v{vT}")
    else:
        e(f"    v_bfe_u32 v{vT2}, v0, 2, 1")
        e(f"    v_lshl_add_u32 v{vOff}, v{vT2}, {pos['r0']}, v{vT}")
        e(f"    v_bfe_u32 v{vT2}, v0, 3, 1")
        e(f"    v_lshl_add_u32 v{vOff}, v{vT2}, {pos['r1']}, v{vOff}")
    e(f"    v_add_u32 v{vOff}, s{sSp}, v{vOff}")
    e(f"    s_lshl_b32 s{sTmp}, s{sHead}, 22" if not free else f"    s_mov_b32 s{sTmp}, 0")

    dl = sorted({(lowoff(i) & ~immm) ^ (lowoff(i + 1) & ~immm) for i in range(NR - 1)} - {0})
    xreg = {}
    if xc:
        for k, d in enumerate(dl):
            xreg[d] = 68 + k if stamp not in (3, 5) else 88 + k

    def reset_off():
        e(f"    s_mov_b32 s{sOff}, {'s%d' % sXr if xrs else 0}")
        if not contiguous:
            e(f"    s_mov_b32 s{sHi}, 0")
    if scatter:
        e(f"    s_mov_b32 s{sOff}, {'s%d' % sXr if xrs else 0}")
    else:
        reset_off()
    e(f"    s_mov_b32 s{sR+2}, {hex(1 << 28) if free else '0x400000'}")
    e(f"    s_mov_b32 s{sR+3}, 0x20000")
    def consts():
        for d, rg in xreg.items():
            e(f"    s_mov_b32 s{rg}, {hex(d)}")

    def small_addr():
        gather(sSplit, [(int(t[1]), i) for i, t in enumerate(spl)], sTmp + 1)
        e(f"    s_lshl_b32 s{sTmp+1}, s{sSplit}, 10")
        e(f"    s_lshl_b32 s{sTmp+2}, s{sHead}, 8")
        e(f"    s_lshl_b32 s{sTmp+3}, s{sHead}, 12")
        e(f"    v_lshlrev_b32 v{vMad}, 2, v0")
        e(f"    v_lshlrev_b32 v{vSl}, 4, v0")
        e(f"    v_and_b32 v{vVoff}, 0xf0, v{vSl}")
        e(f"    v_bfe_u32 v{vP}, v0, 4, 1")
        e(f"    v_lshl_add_u32 v{vOo}, v{vP}, 3, v{vVoff}       ; v_tree offset: (l&15)*16 + ((l>>4)&1)*8")
        e(f"    v_add_u32 v{vSl}, s{sTmp+1}, v{vSl}")
    if not lean:
        consts()
        small_addr()
    e("    s_waitcnt lgkmcnt(0)")
    pstamp()
    def touch():
        for k, p in enumerate((sQp, sWs) if dt else (sQp, sWs, sKtp, sVtp)):
            e(f"    s_load_dword s{58+k}, s[{p}:{p+1}], 0        ; starts the translation of this buffer's page")
        if stl & 8:
            e(f"    s_load_dword s62, s[{sVp}:{sVp+1}], s{sTmp}")
            e(f"    s_add_u32 s{sT2}, s{sTmp}, 0x200000")
            e(f"    s_load_dword s62, s[{sVp}:{sVp+1}], s{sT2}")
    if (stl & 5) == 1:
        touch()
    e(f"    s_add_u32 s{sR}, s{sKp}, s{sTmp}")
    e(f"    s_addc_u32 s{sR+1}, s{sKp+1}, 0")
    if stl & 2:
        e(f"    s_mov_b32 s{sT2}, 0x200000")
        e(f"    s_load_dword s62, s[{sR}:{sR+1}], s{sT2}")

    hruns = []
    for k, b in enumerate(hi):
        if hruns and hruns[-1][1] + hruns[-1][2] == b:
            hruns[-1][2] += 1
        else:
            hruns.append([k, b, 1])

    def load(i, first=False):
        lo = lowoff(i)
        e(f"    buffer_load_dwordx4 {r(vR+4*i,4)}, v{vOff}, s[{sR}:{sR+3}], s{sOff} offen offset:{lo & immm} {fl}")
        cur = lo & ~immm
        if first and i == 0 and lean:
            touch()
            consts()
        if i < NR - 1:
            d = cur ^ (lowoff(i + 1) & ~immm)
            if d:
                e(f"    s_xor_b32 s{sOff}, s{sOff}, {'s%d' % xreg[d] if d in xreg else hex(d)}")
            elif i % 4 == 3:
                e("    s_nop 0")
            if scatter and first:
                if i == 8:
                    e(f"    s_mov_b32 s{sHi}, 1")
                    e(f"    s_xor_b32 s{sNx}, {'s%d' % sXr if xrs else 0}, {hex(1 << hi[0])}")
            elif scatter and 8 <= i < 8 + len(hruns):
                cb, db, n = hruns[i - 8]
                if i == 8:
                    e(f"    s_add_u32 s{sHi}, s{sHi}, 1")
                e(f"    s_bfe_u32 s{sT2}, s{sHi}, {hex((n << 16) | cb)}")
                e(f"    s_lshl_b32 s{sT2}, s{sT2}, {db}")
                e(f"    s_xor_b32 s{sNx}, {('s%d' % sXr if xrs else 0) if i == 8 else 's%d' % sNx}, s{sT2}")
            if not scatter and not contiguous and i == 11:
                e(f"    s_or_b32 s{sHi}, s{sHi}, {hex(~himask & 0xffffffff)}")
                e(f"    s_add_u32 s{sHi}, s{sHi}, 1")
                e(f"    s_and_b32 s{sHi}, s{sHi}, {hex(himask)}")
        elif contiguous:
            e(f"    s_add_u32 s{sOff}, s{sOff}, {hex(((1 << hi[0]) - cur) & 0xffffffff)}")
        elif scatter:
            e(f"    s_mov_b32 s{sOff}, s{sNx}")
        elif xrs:
            e(f"    s_xor_b32 s{sOff}, s{sHi}, s{sXr}")
        else:
            e(f"    s_mov_b32 s{sOff}, s{sHi}")

    for i in range(nk0):
        load(i, True)
        if i == tpos and (stl & 5) == 5 and not lean:
            touch()
    if lean:
        assert nk0 >= 1 and (stl & 5) == 5
        small_addr()
    if ms == 10:
        e("    s_memrealtime s[56:57]")
    def tree_loads():
        for p in (sKtp, sVtp):
            e(f"    s_add_u32 s{p}, s{p}, s{sTmp+2}")
            e(f"    s_addc_u32 s{p+1}, s{p+1}, 0")
        e(f"    global_load_dword v{vA0}, v{vMad}, s[{sQp}:{sQp+1}]")
        e(f"    global_load_dword v{vA0+1}, v{vMad}, s[{sKtp}:{sKtp+1}]")
        e(f"    global_load_dwordx2 {r(vVt,2)}, v{vOo}, s[{sVtp}:{sVtp+1}]")

    def snap_loads(ks):
        for k in ks:
            a = (vM1, vM2, vM3, vSl)[k]
            if k < 3 and dt < 2:
                e(f"    v_xor_b32 v{a}, {hex(0x400*(k+1))}, v{vSl}")
            e(f"    global_load_dwordx4 {r(vSn+4*k,4)}, v{a}, s[{sWs}:{sWs+1}] sc1")

    e(f"    s_add_u32 s{sQp}, s{sQp}, s{sTmp+2}")
    e(f"    s_addc_u32 s{sQp+1}, s{sQp+1}, 0")
    e(f"    global_load_dwordx4 {r(vS,4)}, v{vT}, s[{sQp}:{sQp+1}]")
    nsmall = 2
    if not dt:
        e(f"    s_load_dword s{sMaskv}, s[{sMp}:{sMp+1}], 0")
    e(f"    s_getreg_b32 s{sIx}, hwreg(HW_REG_XCC_ID, 0, 3)")
    e(f"    s_mul_i32 s{sT2}, s{sIx}, {max(4096, 64*mstr)+256}")
    e(f"    s_add_u32 s{sT2}, s{sT2}, 0x40000")
    e(f"    s_add_u32 s{sMb}, s{sWs}, s{sT2}")
    e(f"    s_addc_u32 s{sMb+1}, s{sWs+1}, 0")
    if gx:
        e(f"    s_add_u32 s{sGb}, s{sWs}, 0x100000")
        e(f"    s_addc_u32 s{sGb+1}, s{sWs+1}, 0")
    assert mstr == 4
    e(f"    s_add_u32 s{sWs}, s{sWs}, s{sTmp+3}")
    e(f"    s_addc_u32 s{sWs+1}, s{sWs+1}, 0")
    e(f"    global_load_dword v{vMs}, v{vMad}, s[{sMb}:{sMb+1}] sc1")
    if not dt:
        tree_loads()
        nsmall += 3
    if dt < 2:
        snap_loads(range(4))
        nsmall += 4
    if gx:
        e(f"    s_mul_i32 s{sGr}, s{sAcc}, {refm}")
        e(f"    s_add_u32 s{sGr}, s{sGr}, 5")
        e(f"    s_and_b32 s{sGr}, s{sGr}, 31")
        e(f"    s_lshl_b32 s{sT2}, 1, s{sGr}")
        e(f"    v_mul_u32_u24 v{vGad}, 4352, v0")
        e(f"    s_mov_b32 exec_lo, s{sT2}")
        e(f"    s_mov_b32 exec_hi, s{sT2}")
        e(f"    global_load_dword v{vGs}, v{vGad}, s[{sGb}:{sGb+1}] sc1")
        e("    s_mov_b64 exec, -1")
        nsmall += 1
    if not pfe:
        nsmall += prefetch()
    if ms == 11:
        e("    s_memrealtime s[56:57]")
    for i in range(nk0, NI):
        load(i, True)
    pstamp()
    cs = (128 ** -0.5) * math.log2(math.e)

    def late_a():
        e(f"    s_lshl_b32 s{sTmp}, s{sHead}, 22" if not free else f"    s_mov_b32 s{sTmp}, 0")
        e(f"    s_lshl_b32 s{sTmp+2}, s{sHead}, 8")
        if dt:
            tree_loads()
            e(f"    s_mov_b32 s{sIx}, {NC-1}")
        e(f"    s_add_u32 s{sVp}, s{sVp}, s{sTmp}")
        e(f"    s_addc_u32 s{sVp+1}, s{sVp+1}, 0")
        e(f"    s_add_u32 s{sOutp}, s{sOutp}, s{sTmp+2}")
        e(f"    s_addc_u32 s{sOutp+1}, s{sOutp+1}, 0")
        e(f"    v_lshrrev_b32 v{vPk}, 5, v0")
        e(f"    v_lshl_add_u32 v{vOo}, v{vPk}, 2, v{vOo}        ; output offset")
        e(f"    v_lshl_add_u32 v{vVoff}, v{vPk}, {pos['r1']}, v{vVoff}")
        e(f"    v_bfe_u32 v{vPk}, v0, 4, 1")
        e(f"    v_lshl_add_u32 v{vVoff}, v{vPk}, {pos['r0']}, v{vVoff}")
        e(f"    v_add_u32 v{vVoff}, s{sSp}, v{vVoff}")
        e(f"    s_mov_b32 s{sC}, {hex(f2u(cs))}")
        e(f"    s_lshr_b32 s{sTmp}, s{sHead}, 5")
        e(f"    s_lshl_b32 s{sTmp}, s{sTmp}, 4")
        e("    s_waitcnt lgkmcnt(0)")
        e(f"    s_lshr_b32 s{sMaskv}, s{sMaskv}, s{sTmp}")
        e(f"    s_lshl_b32 s{sMaskv}, s{sMaskv}, 16")
        e(f"    v_sub_f32 v{vL}, s{sMaskv}, 1.0               ; mask - 1")
        e(f"    v_mul_f32 v{vL}, {hex(f2u(1e9*math.log2(math.e)))}, v{vL}   ; (1-mask)*-1e9*log2(e)")
        e(f"    s_cmp_eq_u32 s{sSplit}, 0")
        e(f"    s_cselect_b32 s{sTmp}, 0, 0xff800000")
        e(f"    v_add_f32 v{vL}, s{sTmp}, v{vL}")
        if vt & 1:
            e(f"    s_mov_b32 s{sTmp}, 0x200000")
            e(f"    s_load_dword s58, s[{sVp}:{sVp+1}], 0           ; start the translation of the V pages early")
            e(f"    s_load_dword s59, s[{sVp}:{sVp+1}], s{sTmp}")
        if vt & 4:
            e(f"    s_load_dword s62, s[{sOutp}:{sOutp+1}], 0")

    def late_b():
        if dt == 2:
            snap_loads((0, 1))
            e(f"    s_mov_b32 s{sIx}, {NC-1}")
        e(f"    v_and_b32 v{vP}, 1, v0")
        e(f"    v_lshlrev_b32 v{vP}, 4, v{vP}")
        e(f"    v_mov_b32 v{vPk}, 0xffff")
        e(f"    v_lshlrev_b32 v{vPk}, v{vP}, v{vPk}")
        e(f"    v_bfe_u32 v{vP}, v0, 1, 2")
        fill = [[f"    v_lshlrev_b32 v{vA1}, 16, v{vA0}", f"    v_lshlrev_b32 v{vA1+1}, 16, v{vA0+1}"],
                [f"    v_mul_f32 v{vTt}, v{vA1}, v{vA1+1}", f"    v_and_b32 v{vA1}, 0xffff0000, v{vA0}"],
                [f"    v_and_b32 v{vA1+1}, 0xffff0000, v{vA0+1}", f"    v_fmac_f32 v{vTt}, v{vA1}, v{vA1+1}"],
                [f"    v_lshlrev_b32 v{vA0}, 16, v{vVt}", f"    v_and_b32 v{vA0+1}, 0xffff0000, v{vVt}"]]
        for i in range(4):
            e(f"    v_cmp_eq_u32 vcc, {i}, v{vP}")
            for x in fill[i]:
                e(x)
            e(f"    v_cndmask_b32 v{vMask+i}, 0, v{vPk}, vcc")
        e(f"    v_lshlrev_b32 v{vA0+2}, 16, v{vVt+1}")
        e(f"    v_and_b32 v{vA0+3}, 0xffff0000, v{vVt+1}")

    def late_c():
        if dt == 2:
            snap_loads((2, 3))
            e(f"    s_mov_b32 s{sIx}, {NC-1}")
        for k, sh in enumerate((1, 2, 4, 8)):
            e(f"    v_add_f32_dpp v{vTt}, v{vTt}, v{vTt} row_ror:{sh} {DPP}")
            e(f"    v_mov_b32 v{vA1+k}, 0")
            if k < 3:
                e("    s_nop 0")
        for x in xrow(vTt, vP, "v_add_f32"):
            e(x)
        e(f"    v_fma_f32 v{vTt}, v{vTt}, s{sC}, v{vL}")
        if vt & 2:
            e(f"    v_and_b32 v{vP}, 0x200000, v{vVoff}")
            e(f"    global_load_dword v{vX+1}, v{vP}, s[{sVp}:{sVp+1}] nt")

    def xrow(reg, tmp, op):
        L = []
        for sw in ("v_permlane16_swap_b32", "v_permlane32_swap_b32"):
            L += [f"    v_mov_b32 v{tmp}, v{reg}", "    s_nop 1", f"    {sw} v{reg}, v{tmp}", "    s_nop 1",
                  f"    {op} v{reg}, v{reg}, v{tmp}"]
        return L

    if not defer:
        late_a()
    if dt:
        e(f"    s_load_dword s{sMaskv}, s[{sMp}:{sMp+1}], 0")
        e(f"    s_load_dword s60, s[{sKtp}:{sKtp+1}], 0        ; starts the translation of this buffer's page")
        e(f"    s_load_dword s61, s[{sVtp}:{sVtp+1}], 0")
    if dt == 2:
        for k, a in enumerate((vM1, vM2, vM3)):
            e(f"    v_xor_b32 v{a}, {hex(0x400*(k+1))}, v{vSl}")
    e(f"    v_mov_b32 v{vM}, 0xff800000")
    e(f"    v_and_b32 v{vLd}, 60, v0                      ; score slots: group*64 + (lane>>2)*4, slot 0 is a dummy")
    for i in range(4):
        e(f"    v_mov_b32 v{vS+4+i}, v{vM}                  ; 'previous group' of group 0")
    dv = [int(ch, 32) for ch in duty]
    if dv == dv[:2] * 4:
        e(f"    s_bitcmp1_b32 s{sIx}, 0")
        e(f"    s_cselect_b32 s{sDuty}, {dv[1]}, {dv[0]}")
    else:
        tab = sum(d << (5 * i) for i, d in enumerate(dv))
        e(f"    s_mov_b32 s{sTmp+2}, {hex(tab & 0xffffffff)}")
        e(f"    s_mov_b32 s{sTmp+3}, {hex(tab >> 32)}")
        e(f"    s_mul_i32 s{sTmp}, s{sIx}, 5")
        e(f"    s_lshr_b64 s[{sTmp+2}:{sTmp+3}], s[{sTmp+2}:{sTmp+3}], s{sTmp}")
        e(f"    s_and_b32 s{sDuty}, s{sTmp+2}, 31")
    e(f"    ; workgroup row r = wg>>3 publishes the markers of iterations ({refm}r+5)&31 and that + 32")
    e(f"    s_mul_i32 s{sTmp}, s{sAcc}, {refm}")
    e(f"    s_add_u32 s{sTmp}, s{sTmp}, 5")
    e(f"    s_and_b32 s{sTmp}, s{sTmp}, 31")
    e(f"    s_lshl_b64 s[{sEx}:{sEx+1}], 1, s{sTmp}")
    sites = []
    for k, of in enumerate(offs):
        d, st = divmod(mp + of, NR)
        e(f"    s_add_u32 s{sCell[k]}, s{sTmp}, {d}")
        sites.append((st, k))
    if gx:
        e(f"    s_lshr_b32 s{sTmp+1}, s{sGr}, {int(math.log2(gx))}")
        e(f"    s_mul_i32 s{sTmp+1}, s{sTmp+1}, 3")
        e(f"    s_xor_b32 s{sTmp+1}, s{sTmp+1}, s2")
        e(f"    s_and_b32 s{sTmp+2}, s{sGr}, {gx-1}")
        e(f"    s_cselect_b32 s{sGr}, 0x100, s{sGr}")
        e(f"    s_and_b32 s{sTmp+1}, s{sTmp+1}, 7")
        e(f"    s_cselect_b32 s{sGw}, 0x100, s{sGr}")
        if gneg:
            e(f"    s_cmp_eq_u32 s{sGr}, 0")
            e(f"    s_cselect_b32 s{sGr}, 32, s{sGr}")
        gdw = (mp - 1 + gth) // NR
        assert gdw in (0, -1)
        if gdw:
            e(f"    s_sub_u32 s{sGw}, s{sGw}, 1")
            e(f"    s_cselect_b32 s{sGw}, 31, s{sGw}")
    e(f"    s_and_b32 s{sAcc}, s{sAcc}, 15")
    e(f"    s_mov_b32 s{sJ}, 0")
    if not vm:
        e(f"    s_mov_b32 s{sMo}, 0")
    e(f"    s_mov_b32 s{sEv}, {2 if defer else iters-1}")
    if stamp:
        e("    s_mov_b32 s63, 0")
    lvl = [0, 1, 2, 4][:len(inc)]
    inctab = sum(min(v, 15) << (8 * l) for v, l in zip(inc, lvl) if l < 4)
    stubs = []

    def control(i, tag):
        for st, k in sites:
            if st == i:
                e(f"    s_cmp_eq_u32 s{sJ}, s{sCell[k]}")
                e(f"    s_cbranch_scc1 L_pub_{tag}_{k}")
                e(f"L_pubx_{tag}_{k}:")
                stubs.append((tag, k))
        if gx:
            for nm, st, reg in (("gr", mp - 1, sGr), ("gw", (mp - 1 + gth) % NR, sGw), ("ge", 30, sGr)):
                if st == i:
                    e(f"    s_cmp_eq_u32 s{sJ}, s{reg}")
                    e(f"    s_cbranch_scc1 L_pub_{tag}_{nm}")
                    e(f"L_pubx_{tag}_{nm}:")
                    stubs.append((tag, nm))
        if i == mp and not vm:
            e(f"    s_load_dword s{sMk}, s[{sMb}:{sMb+1}], s{sMo} {mfl}")
        if i == mp and vm:
            e(f"    global_load_dword v{vX}, v{vMad}, s[{sMb}:{sMb+1}] sc1          ; progress cells of this XCD")
        if i == 29 and vm:
            e(f"    v_readlane_b32 s{sMk}, v{vX}, s{sJ}")
        if i == 27:
            e(f"    v_readlane_b32 s{sTmp}, v{vMs}, s{sJ}")
            e(f"    s_add_u32 s{sAcc}, s{sAcc}, s{sDuty}")
            e(f"    s_lshr_b32 s{sIx}, s{sAcc}, 4")
            e(f"    s_and_b32 s{sAcc}, s{sAcc}, 15")
        if i == 28 and not vm:
            e(f"    s_add_u32 s{sMo}, s{sMo}, {mstr}")
        if i == (30 if vm else 29):
            e(f"    s_xor_b32 s{sTmp}, s{sTmp}, s{sMk}")
            if gx:
                e(f"    s_bitcmp1_b32 s{sTmp}, 16")
                e(f"    s_cselect_b32 s{sTmp+1}, {0 if gneg else ginc}, {ginc if gneg else 0}")
                e(f"    s_add_u32 s{sIx}, s{sIx}, s{sTmp+1}")
                if stamp:
                    e(f"    s_bfe_u32 s{sTmp+1}, s{sTmp}, 0x10010")
                    e(f"    s_add_u32 s63, s63, s{sTmp+1}")
                e(f"    s_and_b32 s{sTmp}, s{sTmp}, 0xffff")
            e(f"    s_bcnt1_i32_b32 s{sTmp}, s{sTmp}")
            if len(offs) == 3:
                e(f"    s_cmp_gt_u32 s{sTmp}, 16")
                e(f"    s_cselect_b32 s{sIx}, {NC-1}, s{sIx}")
        if i == 30:
            e(f"    s_lshr_b32 s{sTmp}, {hex(inctab)}, s{sTmp}")
            e(f"    s_and_b32 s{sTmp}, s{sTmp}, 15")
            e(f"    s_add_u32 s{sIx}, s{sIx}, s{sTmp}")
            if stamp and not gx:
                e(f"    s_min_u32 s{sIx}, s{sIx}, {NC-1}")
                e(f"    s_add_u32 s63, s63, s{sIx}")

    def dispatch(ph, order):
        for c in order[:-1]:
            e(f"    s_cmp_{'ge' if c == NC-1 else 'eq'}_u32 s{sIx}, {c}")
            e(f"    s_cbranch_scc1 L_{ph}{c}")
        e(f"    s_branch L_{ph}{order[-1]}")

    def endit(ph):
        e(f"    v_add_u32 v{vLd}, {64*gpi}, v{vLd}")
        e(f"    s_add_u32 s{sJ}, s{sJ}, 1")
        if ms == 13 and ph == "k":
            msn.append(0)
            e(f"    s_cmp_lg_u32 s{sJ}, 2")
            e(f"    s_cbranch_scc1 L_ms{len(msn)}")
            e("    s_memrealtime s[56:57]")
            e(f"L_ms{len(msn)}:")
        e(f"    s_cmp_eq_u32 s{sJ}, s{sEv}")
        e(f"    s_cbranch_scc1 L_{ph}ev")
        dispatch(ph, [1, 2, 0] + list(range(3, NC)) if NC > 3 else list(range(NC)))

    def tr():
        if stamp == 2:
            e("    s_waitcnt lgkmcnt(0)")
            e(f"    v_writelane_b32 v{vTr}, s60, m0")
            e("    s_add_u32 m0, m0, 1")
            e("    s_memrealtime s[60:61]")

    def fin_a(S):
        e(f"    v_mov_b32_dpp v{vT}, v{S} quad_perm:[0,0,0,0] {DPP}")
        e(f"    v_mov_b32_dpp v{vT2}, v{S+2} quad_perm:[2,2,2,2] {DPP}")

    def fin_b(S, off):
        e(f"    v_add_f32_dpp v{vT}, v{S+1}, v{vT} quad_perm:[1,1,1,1] {DPP}")
        e(f"    v_add_f32_dpp v{vT2}, v{S+3}, v{vT2} quad_perm:[3,3,3,3] {DPP}")
        e(f"    v_add_f32 v{vT}, v{vT}, v{vT2}")
        e(f"    v_max_f32 v{vM}, v{vM}, v{vT}")
        e(f"    ds_write_b32 v{vLd}, v{vT} offset:{off}")

    def qp(c):
        return f"quad_perm:[{c},{c},{c},{c}] {DPP}"

    def b1(g, vB1=vB1):
        k, c = vK[(g >> 2) & 1], g & 3
        e(f"    v_and_b32_dpp v{vB1}, v{k[0]}, v{vMask} {qp(c)}")
        e(f"    v_and_b32_dpp v{vB1+1}, v{k[0]}, v{vMask+1} {qp(c)}")
        e(f"    v_and_b32_dpp v{vB1+2}, v{k[1]}, v{vMask+2} {qp(c)}")
        e(f"    v_and_b32_dpp v{vB1+3}, v{k[1]}, v{vMask+3} {qp(c)}")

    def b2(g, vB2=vB2):
        k, c = vK[(g >> 2) & 1], g & 3
        e(f"    v_and_b32_dpp v{vB2}, v{k[2]}, v{vMask} {qp(c)}")
        e(f"    v_and_b32_dpp v{vB2+1}, v{k[2]}, v{vMask+1} {qp(c)}")
        e(f"    v_and_b32_dpp v{vB2+2}, v{k[0]}, v{vMask+2} {qp(c)}")
        e(f"    v_and_b32_dpp v{vB2+3}, v{k[0]}, v{vMask+3} {qp(c)}")

    def p_a():
        e(f"    v_fma_f32 v{vP}, v{vSc}, s{sC}, -v{vMt}")
        e(f"    v_exp_f32 v{vP}, v{vP}")

    def p_b(bt):
        e(f"    v_cvt_pk_bf16_f32 v{vK[bt][0]}, v{vP}, v{vP}")
        e(f"    v_add_f32 v{vL}, v{vL}, v{vP}")

    def p_c(bt):
        e(f"    v_mov_b32_dpp v{vK[bt][1]}, v{vK[bt][0]} row_ror:4 {DPP}")
        e(f"    v_mov_b32_dpp v{vK[bt][2]}, v{vK[bt][0]} row_ror:12 {DPP}")

    def pv(i, drain=False):
        u = i % 4
        A = vA0 if u % 2 == 0 else vA1
        Pm = vB1 if u < 2 else vB2
        if drain and pre and i >= 24:
            Pm = vR + 48 + 4 * ((i - 24) // 2)
        e(f"    v_mfma_f32_16x16x32_bf16 {r(A,4)}, {r(Pm,4)}, {r(vR+4*i,4)}, {r(A,4)}")

    def vwork(i, drain):
        g, u = divmod(i, 4)
        bt, j = divmod(i, 16)
        if drain and pre and i in (17, 19, 21, 23):
            k = (i - 17) // 2
            (b1, b2)[k & 1](6 + (k >> 1), vR + 48 + 4 * k)
        if u == 0 and not (drain and pre and g >= 6):
            b2(g)
        if u == 2 and not (drain and g >= (5 if pre else 7)):
            b1(g + 1)
        if drain and bt == 1:
            return
        if j == 1:
            p_a()
            if not drain:
                e(f"    ds_read_b32 v{vSc}, v{vLd} offset:{256*(bt+2)}")
        if j == 3:
            p_b(bt ^ 1)
        if j == 5:
            p_c(bt ^ 1)

    quad = [0, 2, 1, 3]
    pstamp()
    for j in range(NI, NR):
        need = j - NI
        e(f"    s_waitcnt vmcnt({NI-1+(nsmall if need < nk0 else 0)})")
        if ms == 12 and need == 0:
            e("    s_memrealtime s[56:57]")
        load(j, True)
    e(f"    v_bfe_u32 v{vT2}, v0, 2, 2")
    for u in range(4):
        e(f"    v_cmp_eq_u32 s[{sTmp+2*u if u < 3 else sMp}:{sTmp+2*u+1 if u < 3 else sMp+1}], {quad[u]}, v{vT2}")
    e(f"    s_waitcnt vmcnt({NR-nk0+nsmall-1})            ; q")
    pstamp()
    for u in range(4):
        for i in range(4):
            e(f"    v_cndmask_b32 v{vQ+4*u+i}, 0, v{vS+i}, s[{sTmp+2*u if u < 3 else sMp}:{sTmp+2*u+1 if u < 3 else sMp+1}]")
    if not defer:
        e(f"    s_waitcnt vmcnt({NR-nk0+nsmall-5})")
        late_b()
        late_c()
    e(f"    s_waitcnt vmcnt({min(NR-1, NR-nk0+nsmall-2) if nk0 == 0 else NR-nk0+nsmall-2})")
    e(f"    v_not_b32 v{vMn}, v{vMs}")
    pstamp()
    if stamp == 2:
        e(f"    v_mov_b32 v{vTr}, 0")
        e("    s_mov_b32 m0, 0")
        e("    s_memrealtime s[60:61]")
    if stamp == 3:
        e(f"    v_mov_b32 v{vTr}, 0")
        e("    s_waitcnt lgkmcnt(0)")
        for k in range(pst[0]):
            e(f"    v_writelane_b32 v{vTr}, s{68+2*k}, {k}")

    def wcount(i, Wn):
        if not vm:
            return Wn - 1
        n = Wn - 1 + (1 if mp < i < mp + Wn else 0)
        if i == 29:
            n = min(n, 29 - mp - 1)
        return n

    def kbody(c):
        e(f"L_k{c}:                                          ; K iteration, {Ws[c]} loads in flight")
        tr()
        for i in range(NR):
            g, u = divmod(i, 4)
            S = vS + 4 * (g & 1)
            Sp = vS + 4 * ((g + 1) & 1)
            cc = "0" if u == 0 else r(S, 4)
            e(f"    v_mfma_f32_16x16x32_bf16 {r(S,4)}, {r(vR+4*i,4)}, {r(vQ+4*u,4)}, {cc}")
            e(f"    s_waitcnt vmcnt({wcount(i, Ws[c])})" + (" lgkmcnt(0)" if i == 29 and not vm else ""))
            load(i)
            control(i, f"k{c}")
            if u == 1:
                fin_a(Sp)
            if u == 2:
                fin_b(Sp, 64 * g)
        endit("k")

    def vbody(c):
        e(f"L_v{c}:                                          ; V iteration, {Ws[c]} loads in flight")
        tr()
        for i in range(NR):
            pv(i)
            e(f"    s_waitcnt vmcnt({wcount(i, Ws[c])})" + (" lgkmcnt(0)" if i % 16 == 1 else ""))
            load(i)
            control(i, f"v{c}")
            vwork(i, False)
        endit("v")

    def put_stubs():
        for tag, k in stubs:
            e(f"L_pub_{tag}_{k}:")
            if k == "gr":
                e(f"    s_lshl_b64 exec, 1, s{sJ}")
                e(f"    global_load_dword v{vG}, v{vGad}, s[{sGb}:{sGb+1}] sc1")
                e("    s_mov_b64 exec, -1")
                e(f"    s_branch L_pubx_{tag}_{k}")
                continue
            if k == "gw":
                e(f"    v_not_b32 v{vGn}, v{vGs}")
                e(f"    s_lshl_b64 exec, {2 if gdw else 1}, s{sJ}")
                e(f"    global_store_dword v{vGad}, v{vGn}, s[{sGb}:{sGb+1}] sc1")
                e("    s_mov_b64 exec, -1")
                e(f"    s_add_u32 s{sGw}, s{sGw}, 32")
                e(f"    s_branch L_pubx_{tag}_{k}")
                continue
            if k == "ge":
                e(f"    v_cmp_ne_u32 vcc, v{vG}, v{vGs}")
                e(f"    s_add_u32 s{sGr}, s{sGr}, 32")
                e(f"    s_bitcmp1_b64 vcc, s{sJ}")
                e(f"    s_cbranch_scc{1 if gneg else 0} L_pubx_{tag}_{k}")
                e(f"    s_mov_b64 vcc, {((1 << glen) - 1) << gd}")
                e(f"    s_lshl_b64 exec, vcc, s{sJ}")
                e(f"    s_cbranch_scc0 L_pube_{tag}")
                e(f"    global_store_byte_d16_hi v{vMad}, v{vMn}, s[{sMb}:{sMb+1}] offset:2")
                e(f"L_pube_{tag}:")
                e("    s_mov_b64 exec, -1")
                e(f"    s_branch L_pubx_{tag}_{k}")
                continue
            e(f"    s_mov_b64 exec, s[{sEx}:{sEx+1}]")
            op = ("global_store_byte", "global_store_short", "global_store_dword")[k]
            e(f"    {op} v{vMad}, v{vMn}, s[{sMb}:{sMb+1}]              ; publish progress mark {k}")
            e("    s_mov_b64 exec, -1")
            e(f"    s_add_u32 s{sCell[k]}, s{sCell[k]}, 32")
            if k == len(offs) - 1:
                e(f"    s_lshl_b64 s[{sEx}:{sEx+1}], s[{sEx}:{sEx+1}], 32")
            e(f"    s_branch L_pubx_{tag}_{k}")
        stubs.clear()

    korder = [k0] + [c for c in range(NC) if c != k0]
    for c in korder:
        kbody(c)
        put_stubs()
    e("L_kev:")
    e(f"    s_cmp_eq_u32 s{sJ}, {iters}")
    e("    s_cbranch_scc1 L_kdone")
    if defer:
        e("    ; one-time set-up for the V phase, in three small pieces between K iterations")
        for k, (fn, nxt) in enumerate(((late_a, 4), (late_b, 6), (late_c, iters - 1))):
            e(f"    s_cmp_lg_u32 s{sJ}, {2+2*k}")
            e(f"    s_cbranch_scc1 L_late{k}")
            fn()
            e(f"    s_mov_b32 s{sEv}, {nxt}")
            e("    s_branch L_kn")
            e(f"L_late{k}:")
    e(f"    s_mov_b32 s{sR}, s{sVp}")
    e(f"    s_mov_b32 s{sR+1}, s{sVp+1}")
    reset_off()
    e(f"    v_mov_b32 v{vOff}, v{vVoff}")
    e(f"    s_mov_b32 s{sEv}, {iters}")
    if otl == 1:
        e(f"    global_load_dword v{vX+1}, v{vOo}, s[{sOutp}:{sOutp+1}]      ; warms the translation of the output page; value unused")
    e(f"    v_and_b32 v{vPk}, 3, v0")
    e(f"    v_and_b32 v{vP}, 60, v0")
    e(f"    v_lshl_add_u32 v{vPk}, v{vPk}, 6, v{vP}")
    e(f"    v_add_u32 v{vPk}, 64, v{vPk}")
    if kvb > 0:
        e(f"    s_max_u32 s{sIx}, s{sIx}, {kvb}")
    e("L_kn:")
    dispatch("k", list(range(NC)))
    e("L_kdone:")
    mile()
    Sl = vS + 4 * ((gpi - 1) & 1)
    e("    ; V phase reads the scores one key per lane: group 4*batch + (l&3), slot l>>2")
    e(f"    ds_read_b32 v{vSc}, v{vPk}")
    e(f"    ds_read_b32 v{vSc+1}, v{vPk} offset:256")
    fin_a(Sl)
    e(f"    s_mov_b32 s{sEv}, {2*iters-1-(1 if ramp else 0)}")
    fin_b(Sl, 0)
    e(f"    v_mov_b32 v{vLd}, v{vPk}")
    e(f"    v_max_f32_dpp v{vM}, v{vM}, v{vM} row_ror:4 {DPP}")
    e("    s_nop 1")
    e(f"    v_max_f32_dpp v{vM}, v{vM}, v{vM} row_ror:8 {DPP}")
    for x in xrow(vM, vT, "v_max_f32"):
        e(x)
    e(f"    v_mul_f32 v{vMt}, s{sC}, v{vM}")
    e(f"    v_max_f32 v{vMt}, v{vMt}, v{vTt}")
    e(f"    v_and_b32 v{vMt}, -2, v{vMt}")
    e("    s_waitcnt lgkmcnt(0)")
    e(f"    v_sub_f32 v{vTt}, v{vTt}, v{vMt}")
    e(f"    v_exp_f32 v{vTt}, v{vTt}")
    p_a()
    e(f"    v_mul_f32 v{vL}, 0x3c800000, v{vTt}")
    p_b(0)
    e(f"    v_mov_b32 v{vSc}, v{vSc+1}")
    p_c(0)
    for i in range(4):
        e(f"    v_mul_f32 v{vA0+i}, v{vA0+i}, v{vTt}")
    b1(0)
    dispatch("v", list(range(NC)))
    for c in range(NC):
        vbody(c)
        put_stubs()

    vMa = vQ
    vMb = vR + 32
    vOwn = vQ + 12

    def check(d):
        for k, a in enumerate((vM1, vM2, vM3)):
            e(f"    global_load_dwordx4 {r(d+4*k,4)}, v{a}, s[{sWs}:{sWs+1}] sc1")

    def valid(d, target):
        e(f"    v_bitop3_b32 v{vT}, 1, v{d+1}, v{vSn+1} bitop3:0x60      ; a & (b ^ c): tag bit flipped since entry?")
        for k in range(1, 6):
            e(f"    v_bitop3_b32 v{vT}, v{vT}, v{d+1+2*k}, v{vSn+1+2*k} bitop3:0x60")
        e(f"    v_cmp_eq_u32 vcc, 0, v{vT}")
        e(f"    s_cbranch_vccz {target}")

    def finish(d):
        P = [vOwn, d, d + 4, d + 8]
        Wt = vA0
        T = vR
        if ms == 20:
            e("    s_memrealtime s[72:73]")
        if diag & 2:
            e(f"    v_add_f32 v{T}, v{P[0]}, v{P[1]}")
            e(f"    v_add_f32 v{T+1}, v{P[2]}, v{P[3]}")
            e(f"    v_add_f32 v{T+2}, v{P[0]+2}, v{P[1]+2}")
            e(f"    v_add_f32 v{T+3}, v{P[2]+2}, v{P[3]+2}")
            e(f"    v_add_f32 v{T}, v{T}, v{T+1}")
            e(f"    v_add_f32 v{T+2}, v{T+2}, v{T+3}")
            e(f"    v_cvt_pk_bf16_f32 v{T}, v{T}, v{T+2}")
            e(f"    global_store_dword v{vOo}, v{T}, s[{sOutp}:{sOutp+1}]")
            e("    s_endpgm")
            return
        if stamp == 5:
            e("    s_memrealtime s[70:71]")
        for k in range(3):
            e(f"    v_and_b32 v{d+1+4*k}, -2, v{d+1+4*k}")
        e(f"    v_max3_f32 v{vM}, v{vMt}, v{d+1}, v{d+5}")
        e(f"    v_max_f32 v{vM}, v{vM}, v{d+9}")
        for k in range(4):
            e(f"    v_sub_f32 v{Wt+k}, v{vMt if k == 0 else P[k]+1}, v{vM}")
        for k in range(4):
            e(f"    v_exp_f32 v{Wt+k}, v{Wt+k}")
        for k in range(4):
            e(f"    v_and_b32 v{P[k]+3}, -2, v{P[k]+3}")
        for k in range(4):
            sel = "op_sel_hi:[1,0]" if k % 2 == 0 else "op_sel:[0,1] op_sel_hi:[1,1]"
            e(f"    v_pk_mul_f32 {r(T+2*k,2)}, {r(P[k]+2,2)}, {r(Wt+(k&2),2)} {sel}")
        e(f"    v_pk_add_f32 {r(T,2)}, {r(T,2)}, {r(T+2,2)}")
        e(f"    v_pk_add_f32 {r(T+4,2)}, {r(T+4,2)}, {r(T+6,2)}")
        e(f"    v_pk_add_f32 {r(T,2)}, {r(T,2)}, {r(T+4,2)}")
        e(f"    v_rcp_f32 v{vL}, v{T+1}")
        for k in range(4):
            e(f"    v_mul_f32 v{T+8+k}, v{Wt+k}, v{P[k]}")
        e(f"    v_add_f32 v{T+8}, v{T+8}, v{T+9}")
        e(f"    v_add_f32 v{T+10}, v{T+10}, v{T+11}")
        e(f"    v_mul_f32 v{T}, v{T}, v{vL}")
        e(f"    v_add_f32 v{T+8}, v{T+8}, v{T+10}")
        e(f"    v_mul_f32 v{T+8}, v{T+8}, v{vL}")
        e(f"    v_cvt_pk_bf16_f32 v{T}, v{T+8}, v{T}")
        e(f"    global_store_dword v{vOo}, v{T}, s[{sOutp}:{sOutp+1}]")
        if stamp == 5:
            e("    s_memrealtime s[72:73]")
        if stamp:
            e("    s_waitcnt vmcnt(0)")
            e("    s_branch L_st")
        elif ms >= 0:
            if ms in (20, 21):
                e("    s_waitcnt vmcnt(0)")
                e("    s_memrealtime s[56:57]")
            e("    s_branch L_pd")
        else:
            e("    s_endpgm")

    e("L_vev:")
    mile()
    if ramp:
        w0, w1, st0 = [int(x) for x in ramp.split(".")]
        tr()
        for i in range(NR):
            pv(i)
            wn = w0 if i < st0 else min(w1, int(round(w0 + (w1 - w0) * (i - st0 + 1) / (NR - st0))))
            e(f"    s_waitcnt vmcnt({wn-1})" + (" lgkmcnt(0)" if i % 16 == 1 else ""))
            load(i)
            vwork(i, False)
        e(f"    v_add_u32 v{vLd}, {64*gpi}, v{vLd}")
    if otl == 2:
        e(f"    global_load_dword v{vX+1}, v{vOo}, s[{sOutp}:{sOutp+1}]      ; warms the translation of the output page; value unused")
    e(f"    v_not_b32 v{vSn+13}, v{vSn+13}")
    e(f"    v_not_b32 v{vSn+15}, v{vSn+15}")
    e(f"    v_and_or_b32 v{vOwn+1}, v{vSn+13}, 1, v{vMt}")
    tr()
    if ck1 == 0:
        check(vMa)
    red = [[f"    v_add_f32_dpp v{vL}, v{vL}, v{vL} row_ror:{sh} {DPP}"] for sh in (1, 2, 4, 8)]
    for sw in ("v_permlane16_swap_b32", "v_permlane32_swap_b32"):
        red += [[f"    v_mov_b32 v{vT}, v{vL}"], [f"    {sw} v{vL}, v{vT}"], [f"    v_add_f32 v{vL}, v{vL}, v{vT}"]]
    red += [[f"    v_and_b32 v{vL}, -2, v{vL}", f"    v_and_or_b32 v{vOwn+3}, v{vSn+15}, 1, v{vL}"]]
    Wmax = max(Ws) if not ramp else NR
    for i in range(NR):
        n = NR - 1 - i + (3 if i >= ck1 else 0) + (1 if otl == 2 else 0)
        if i == 1 or NR - 1 - i < Wmax or i >= 6:
            e(f"    s_waitcnt vmcnt({n})" + (" lgkmcnt(0)" if i == 1 else ""))
        pv(i, True)
        if i == ck1 - 1:
            check(vMa)
        if i >= 6 and red:
            for x in red.pop(0):
                e(x)
        vwork(i, True)
    assert not red
    mile()
    if stamp:
        e(f"    s_memrealtime s[{sSt+2}:{sSt+3}]")
    if dpoll:
        check(vMb)
        e(f"    s_mov_b32 s{sJ}, {NP}")
        e("    s_nop 1")
    else:
        e(f"    s_mov_b32 s{sJ}, {NP}")
        e("    s_nop 4")
    e(f"    v_permlane32_swap_b32 v{vA0}, v{vA0+2}")
    e(f"    v_permlane32_swap_b32 v{vA0+1}, v{vA0+3}")
    e(f"    v_permlane32_swap_b32 v{vA1}, v{vA1+2}")
    e(f"    v_permlane32_swap_b32 v{vA1+1}, v{vA1+3}")
    e("    s_nop 0")
    e(f"    v_add_f32 v{vOwn}, v{vA0}, v{vA1+2}")
    e(f"    v_add_f32 v{vOwn+2}, v{vA0+1}, v{vA1+3}")
    if diag & 16:
        e("    s_endpgm")
    if diag & 32:
        e(f"    global_store_dword v{vOo}, v{vOwn}, s[{sOutp}:{sOutp+1}]")
        e("    s_endpgm")
    e("    ; fast path: plain store, seen at once by workgroups that share this L2; bounded number of looks")
    e(f"    global_store_dwordx4 v{vSl}, {r(vOwn,4)}, s[{sWs}:{sWs+1}]")
    if diag & 8:
        e("    s_endpgm")
    if stamp == 5:
        e("    s_memrealtime s[68:69]")
    if dpoll:
        e("    s_waitcnt vmcnt(4)")
        valid(vMa, "L_fin")
        check(vMa)
        e("    s_waitcnt vmcnt(4)")
        e("L_poll:")
        valid(vMb, "L_finb")
        if diag & 4:
            e("    s_waitcnt vmcnt(0)")
            valid(vMa, "L_fin")
            check(vMa)
            e("    s_waitcnt vmcnt(0)")
            valid(vMa, "L_fin")
            e("    s_endpgm")
        check(vMb)
        e("    s_waitcnt vmcnt(3)")
        valid(vMa, "L_fin")
        check(vMa)
        e(f"    s_sub_u32 s{sJ}, s{sJ}, 1")
        e("    s_waitcnt vmcnt(3)")
        e("    s_cbranch_scc0 L_poll")
    else:
        e("    s_waitcnt vmcnt(1)")
        e("L_poll:")
        valid(vMa, "L_fin")
        check(vMa)
        e(f"    s_sub_u32 s{sJ}, s{sJ}, 1")
        e("    s_waitcnt vmcnt(0)")
        e("    s_cbranch_scc0 L_poll")
    def slow():
        e("    ; placement-independent path: write-through copy, then count; whoever counts last finishes the head")
        e(f"    s_add_u32 s{sWs}, s{sWs}, 0x80000")
        e(f"    s_addc_u32 s{sWs+1}, s{sWs+1}, 0")
        e(f"    global_store_dwordx4 v{vSl}, {r(vOwn,4)}, s[{sWs}:{sWs+1}] sc1")
        e(f"    s_lshl_b32 s{sTmp}, s{sHead}, 2")
        e(f"    v_mov_b32 v{vX}, s{sTmp}")
        e(f"    v_mov_b32 v{vX+1}, 1")
        e("    s_mov_b64 exec, 1")
        e("    s_waitcnt vmcnt(0)")
        e(f"    global_atomic_add v{vT}, v{vX}, v{vX+1}, s[{sDbg}:{sDbg+1}] sc0")
        e("    s_waitcnt vmcnt(0)")
        e(f"    v_readfirstlane_b32 s{sTmp}, v{vT}")
        e("    s_mov_b64 exec, -1")
        e(f"    s_cmp_lg_u32 s{sTmp}, 3")
        e(f"    s_cbranch_scc1 {'L_st' if stamp else 'L_end'}")
        check(vMa)
        e("    s_waitcnt vmcnt(0)")

    def fins():
        e("; ---- merge of the four partials (tags masked off), normalise, store bf16")
        e("L_fin:")
        finish(vMa)
        if dpoll:
            e("L_finb:")
            finish(vMb)

    if near:
        e("    s_branch L_slow")
        fins()
        e("L_slow:")
        slow()
        e("    s_branch L_fin")
    else:
        slow()
        fins()
    if stamp:
        e("L_st:")
        e(f"    s_memrealtime s[{sSt+4}:{sSt+5}]")
        e(f"    s_load_dwordx2 s[{sWs}:{sWs+1}], s[0:1], 64")
        e(f"    s_mov_b32 s{sSt+7}, s63")
        e(f"    s_getreg_b32 s{sSt+6}, hwreg(HW_REG_XCC_ID, 0, 4)")
        e(f"    s_getreg_b32 s{sTmp+1}, hwreg(HW_REG_HW_ID, 0, 24)")
        e(f"    s_lshl_b32 s{sTmp+1}, s{sTmp+1}, 8")
        e(f"    s_or_b32 s{sSt+6}, s{sSt+6}, s{sTmp+1}")
        e("    s_waitcnt vmcnt(0) lgkmcnt(0)")
        e(f"    s_lshl_b32 s{sTmp+2}, s2, 5")
        e(f"    s_add_u32 s{sTmp+2}, s{sTmp+2}, 0x1000000")
        e(f"    v_mov_b32 v{vP}, s{sTmp+2}")
        for i in range(8):
            e(f"    v_mov_b32 v{vQ+i}, s{sSt+i}")
        e("    s_mov_b64 exec, 1")
        e(f"    global_store_dwordx4 v{vP}, {r(vQ,4)}, s[{sWs}:{sWs+1}]")
        e(f"    global_store_dwordx4 v{vP}, {r(vQ+4,4)}, s[{sWs}:{sWs+1}] offset:16")
        e("    s_mov_b64 exec, -1")
        if stamp == 5:
            for k in range(3):
                e(f"    v_writelane_b32 v{vTr}, s{68+2*k}, {k}")
        if stamp in (2, 3, 5):
            e(f"    s_lshl_b32 s{sTmp+2}, s2, 8")
            e(f"    s_add_u32 s{sTmp+2}, s{sTmp+2}, 0x2000000")
            e(f"    v_lshlrev_b32 v{vP}, 2, v0")
            e(f"    v_add_u32 v{vP}, s{sTmp+2}, v{vP}")
            e(f"    global_store_dword v{vP}, v{vTr}, s[{sWs}:{sWs+1}]")
    if ms >= 0:
        e("L_pd:")
        if mwg >= 0:
            e(f"    s_cmp_lg_u32 s2, {mwg}")
            e("    s_cbranch_scc1 L_end")
        e("    s_waitcnt lgkmcnt(0)")
        e(f"    s_sub_u32 s56, s56, s{72 if ms == 20 else sSt}")
        e(f"    s_sub_u32 s56, s56, {msb}")
        e("    s_max_i32 s56, s56, 0")
        e("    s_min_i32 s56, s56, 2000")
        e("    s_mul_i32 s56, s56, 10")
        e("    s_add_u32 s56, s56, 8000")
        e("L_pad:")
        e(f"    s_memrealtime s[{sSt+2}:{sSt+3}]")
        e("    s_waitcnt lgkmcnt(0)")
        e(f"    s_sub_u32 s{sSt+2}, s{sSt+2}, s{sSt}")
        e(f"    s_cmp_lt_u32 s{sSt+2}, s56")
        e("    s_cbranch_scc1 L_pad")
    e("L_end:")
    e("    s_endpgm")
    if pfs:
        e("L_tail:")
        e(f"    .fill ({2048 * pfb + pfo} - (L_tail - L_pc)) / 4, 4, 0xbf810000   ; keeps the code prefetch inside .text")
    e('.section .rodata,"a"')
    e(".p2align 6")
    e(f".amdhsa_kernel {NAME}_kernel")
    e(f"  .amdhsa_next_free_vgpr {nv}")
    e(f"  .amdhsa_next_free_sgpr {nsg}")
    e(f"  .amdhsa_accum_offset {(nv+3)//4*4}")
    e("  .amdhsa_group_segment_fixed_size 0")
    e("  .amdhsa_kernarg_size 72")
    e("  .amdhsa_user_sgpr_count 2")
    e("  .amdhsa_user_sgpr_kernarg_segment_ptr 1")
    e("  .amdhsa_system_sgpr_workgroup_id_x 1")
    e("  .amdhsa_float_denorm_mode_32 3")
    e(".end_amdhsa_kernel")
    if stamp == 2:
        e(f"; meta waves={NWG} iters={2*iters} every=1 bytes={1 << 29}")
    return "\n".join(o) + "\n"


if __name__ == "__main__":
    for spec in sys.argv[1:]:
        name, _, kv = spec.partition(":")
        kw = {}
        for p in kv.split(","):
            if p:
                k, v = p.split("=")
                kw[k] = v.replace("+", " ") if k in ("fl", "map", "W", "duty", "xr", "offs", "inc", "mfl", "ramp") else int(v, 0)
        path = f"cdna_kernels/{NAME}.s" if name == "main" else f"var/{name}.s"
        open(path, "w").write(gen(**kw))
```
